```python
import torch

def _softmax(x, axis=-1):
    return torch.softmax(x, dim=axis)
def _gelu(x):
    return torch.nn.functional.gelu(x, approximate="tanh")
def _silu(x):
    return torch.nn.functional.silu(x)
def _sigmoid(x):
    return torch.sigmoid(x)
def _layernorm(x, axis=-1, eps=1e-5):
    m = x.mean(dim=axis, keepdim=True)
    v = x.var(dim=axis, keepdim=True, unbiased=False)
    return (x - m) / torch.sqrt(v + eps)
def _scatter_add(tgt, idx, src, axis=0):
    return tgt.clone().index_add_(axis, idx, src)
def _segment_sum(src, seg, n):
    out = torch.zeros((n,) + src.shape[1:], dtype=src.dtype)
    return out.index_add_(0, seg, src)
def _pad(x, pw):
    flat = tuple(v for pair in reversed(pw) for v in pair)
    return torch.nn.functional.pad(x, flat)

kernel_name = 'standalone__kv_cache_quant_int4_int2_kv_with_per_channel_or_per_token_scales__sampling'

def setup_inputs():

    _w = (lambda a: (lambda t: t.to(torch.bfloat16) if t.is_floating_point() else t)(torch.as_tensor(a)))
    B = 8
    Sq = 16
    Skv = 8192
    Hq = 32
    Hkv = 8
    Dh = 128
    bits = 4
    G = 128
    if G <= 0 or G >= Skv:
        G = max(1, Skv // 2)
    Skv = (Skv // G) * G
    ngk = Skv // G
    qmax = (1 << bits) - 1
    return {
        "q": _w((lambda *s: torch.randn(*s, dtype=torch.bfloat16) * 1.6)(B, Hq, Sq, Dh)),
        "qk": _w(torch.randint(0, qmax + 1, (B, Hkv, Skv, Dh)).to(torch.int32)),
        "qv": _w(torch.randint(0, qmax + 1, (B, Hkv, Skv, Dh)).to(torch.int32)),
        "k_scales": _w(torch.abs((lambda *s: torch.randn(*s, dtype=torch.bfloat16) * 1.6)(B, Hkv, ngk, Dh)) * 0.05 + 0.02),
        "k_zeros": _w((lambda *s: torch.randn(*s, dtype=torch.bfloat16) * 1.6)(B, Hkv, ngk, Dh) + float(qmax) / 2.0),
        "v_scales": _w(torch.abs((lambda *s: torch.randn(*s, dtype=torch.bfloat16) * 0.05)(B, Hkv, Skv, 1)) * 0.05 + 0.02),
        "v_zeros": _w((lambda *s: torch.randn(*s, dtype=torch.bfloat16) * 0.05)(B, Hkv, Skv, 1) + float(qmax) / 2.0),
    }

def reference(q, qk, qv, k_scales, k_zeros, v_scales, v_zeros):
    B, Hq, Sq, Dh = q.shape
    Hkv, Skv = qk.shape[1], qk.shape[2]
    ngk = k_scales.shape[2]
    G = Skv // ngk
    ks = (lambda x, n, axis: torch.repeat_interleave(x, n, dim=axis))(k_scales, G, axis=2)
    kz = (lambda x, n, axis: torch.repeat_interleave(x, n, dim=axis))(k_zeros, G, axis=2)
    k = ((lambda x, dt: x.to(dt))(qk, q.dtype) - kz) * ks
    v = ((lambda x, dt: x.to(dt))(qv, q.dtype) - v_zeros) * v_scales
    rep = Hq // Hkv
    if rep > 1:
        k = (lambda x, n, axis: torch.repeat_interleave(x, n, dim=axis))(k, rep, axis=1)
        v = (lambda x, n, axis: torch.repeat_interleave(x, n, dim=axis))(v, rep, axis=1)
    scale = float(Dh) ** -0.5
    logits = torch.einsum("bhqd,bhkd->bhqk", q, k) * scale
    p = _softmax(logits, axis=-1)
    o = torch.einsum("bhqk,bhkd->bhqd", p, v)
    return o
```

```python
import re

class Asm:
    def __init__(self):
        self.lines = []
    def __call__(self, s):
        for l in s.split('\n'):
            self.lines.append(l if (l.strip().endswith(':') or l.startswith('.') or l.startswith(';')) else '    ' + l.strip())
    def label(self, s):
        self.lines.append(s + ':')
    def text(self):
        return '\n'.join(self.lines) + '\n'

def vr(base, n=1):
    return f'v{base}' if n == 1 else f'v[{base}:{base+n-1}]'
def ar(base, n=1):
    return f'a{base}' if n == 1 else f'a[{base}:{base+n-1}]'
def sr(base, n=1):
    return f's{base}' if n == 1 else f's[{base}:{base+n-1}]'

_REG = re.compile(r'(?<![\w.])(-?)(?:abs\()?([vas])(?:\[(\d+):(\d+)\]|(\d+))(?![\w])')
def regs_of(op):
    out = []
    for m in _REG.finditer(op):
        k = m.group(2)
        if m.group(3) is not None:
            out += [(k, i) for i in range(int(m.group(3)), int(m.group(4))+1)]
        else:
            out.append((k, int(m.group(5))))
    if re.search(r'\bvcc\b', op): out.append(('s', 'vcc'))
    if re.search(r'\bm0\b', op): out.append(('s', 'm0'))
    if re.search(r'\bexec\b', op): out.append(('s', 'exec'))
    return out

def split_ops(rest):
    ops = []; depth = 0; cur = ''
    for ch in rest:
        if ch in '[(': depth += 1
        if ch in '])': depth -= 1
        if ch == ',' and depth == 0:
            ops.append(cur.strip()); cur = ''
        else: cur += ch
    if cur.strip(): ops.append(cur.strip())
    return ops

TRANS = ('v_exp_f32', 'v_log_f32', 'v_rcp_f32', 'v_rsq_f32', 'v_sqrt_f32', 'v_sin_f32', 'v_cos_f32')
def parse(line):
    s = line.split(';')[0].strip()
    if not s or s.endswith(':') or s.startswith('.'): return None
    parts = s.split(None, 1)
    mn = parts[0]; rest = parts[1] if len(parts) > 1 else ''
    ops = split_ops(rest)
    d = dict(mn=mn, w=[], r=[], kind='other', text=s, srcc=[], states=1)
    if mn == 's_nop':
        d['states'] = int(ops[0], 0) + 1; return d
    if mn.startswith('v_mfma'):
        d['kind'] = 'mfma'; d['w'] = regs_of(ops[0]); d['ab'] = regs_of(ops[1]) + regs_of(ops[2]); d['srcc'] = regs_of(ops[3]); d['r'] = d['ab'] + d['srcc']
        d['passes'] = 8 if '32x32' in mn else 4
        return d
    if mn.startswith('v_'):
        d['kind'] = 'trans' if mn.replace('_e32','').replace('_e64','') in TRANS else 'valu'
        if mn.startswith('v_permlane'):
            d['w'] = regs_of(ops[0]) + regs_of(ops[1]); d['r'] = list(d['w']); d['perm'] = True
        elif mn.startswith('v_cmp'):
            d['w'] = regs_of(ops[0]); d['r'] = sum((regs_of(o) for o in ops[1:]), [])
        else:
            d['w'] = regs_of(ops[0]); d['r'] = sum((regs_of(o.split(' op_sel')[0]) for o in ops[1:]), [])
            if mn.startswith('v_fmac') or mn.startswith('v_pk_fmac'): d['r'] += d['w']
            if '_co_' in mn:
                d['w'] += regs_of(ops[1])
        if mn.startswith('v_readfirstlane') or mn.startswith('v_readlane'): d['rl'] = True
        if 'dpp' in s or 'row_' in s or 'quad_perm' in s: d['dpp'] = True
        return d
    if mn.startswith('ds_'):
        d['kind'] = 'ds'
        if mn.startswith('ds_read') or 'permute' in mn or 'swizzle' in mn or '_rtn' in mn:
            d['w'] = regs_of(ops[0]); d['r'] = sum((regs_of(o) for o in ops[1:]), [])
        else:
            d['r'] = sum((regs_of(o) for o in ops), [])
        return d
    if mn.startswith('buffer_') or mn.startswith('global_'):
        d['kind'] = 'vmem'
        if mn in ('buffer_wbl2', 'buffer_inv'): return d
        islds = ' lds' in s or '_lds_' in mn
        if 'load' in mn and not islds:
            d['w'] = regs_of(ops[0]); d['r'] = sum((regs_of(o) for o in ops[1:]), [])
        elif 'atomic' in mn and 'sc0' in s and mn.startswith('global_'):
            d['w'] = regs_of(ops[0]); d['r'] = sum((regs_of(o) for o in ops[1:]), [])
        else:
            d['r'] = sum((regs_of(o) for o in ops), [])
            if 'store' in mn and ('x4' in mn or 'x3' in mn):
                d['wide_store'] = regs_of(ops[0] if mn.startswith('buffer_') else ops[1])
        if islds: d['r'].append(('s', 'm0')); d['ldsdma'] = True
        return d
    if mn.startswith('s_'):
        d['kind'] = 'salu'
        if mn.startswith('s_cmp') or mn.startswith('s_cbranch') or mn in ('s_waitcnt', 's_barrier', 's_branch', 's_endpgm', 's_setprio', 's_sleep'):
            d['r'] = sum((regs_of(o) for o in ops), []) if mn.startswith('s_cmp') else []
        else:
            d['w'] = regs_of(ops[0]); d['r'] = sum((regs_of(o) for o in ops[1:]), [])
        return d
    return d

def check_hazards(text):
    ins = [p for p in (parse(l) for l in text.split('\n')) if p]
    errs = []
    for i, c in enumerate(ins):
        dist = 0
        for j in range(i-1, max(-1, i-24), -1):
            p = ins[j]
            need = 0; why = ''
            pw = set(p['w']); cr = set(c['r']); cw = set(c['w'])
            isvalu = lambda x: x['kind'] in ('valu', 'trans')
            if isvalu(p) and c['kind'] == 'mfma' and pw & cr: need, why = 2, 'VALU->MFMA src'
            if p['kind'] == 'mfma':
                big = 12 if p['passes'] == 8 else 8
                if c['kind'] == 'mfma':
                    if pw & set(c['ab']): need, why = big, 'MFMA D->MFMA A/B'
                    elif pw & set(c['srcc']) and pw != set(c['srcc']): need, why = big-2, 'MFMA D->partial C'
                    elif pw & cw and not (pw & set(c['srcc'])): need, why = big, 'MFMA WAW'
                elif c['kind'] in ('valu', 'trans', 'ds', 'vmem') and pw & (cr | cw): need, why = big, 'MFMA D->use'
                if isvalu(c) and set(p['srcc']) & cw: need, why = max(need, 7 if p['passes'] == 8 else 3), why or 'MFMA C WAR'
            if p['kind'] == 'trans' and c['kind'] in ('valu',) and pw & cr: need, why = max(need, 1), 'trans->valu'
            if isvalu(p) and c.get('perm') and pw & cr: need, why = 2, 'VALU->permlane'
            if isvalu(p) and c.get('dpp') and pw & cr: need, why = 2, 'VALU->dpp'
            if isvalu(p) and c.get('rl') and any(k == 'v' for k, _ in pw & cr): need, why = max(need, 1), 'VALU->readlane'
            if isvalu(p) and any(k == 's' for k, _ in pw & cr):
                if c['kind'] == 'vmem': need, why = 5, 'VALU sgpr->VMEM'
                elif isvalu(c): need, why = max(need, 2), 'VALU sgpr->VALU'
                elif c['kind'] == 'salu': need, why = max(need, 1), 'VALU sgpr->SALU(pad)'
            if p['kind'] == 'salu' and ('s', 'm0') in pw and c.get('ldsdma'): need, why = 1, 'm0->ldsdma'
            if p.get('wide_store') and set(p['wide_store']) & cw: need, why = (2 if isvalu(c) else 1), 'wide store WAR'
            if need > dist:
                errs.append(f'{why}: need {need} have {dist}: [{p["text"]}] -> [{c["text"]}]')
            dist += p['states']
            if p['mn'] in ('s_branch', 's_endpgm'): break
    return errs
```

```python
import sys, math
sys.path.insert(0, 'gen')
from asmlib import *

NAME = 'standalone__kv_cache_quant_int4_int2_kv_with_per_channel_or_per_token_scales__sampling'
HEADER = open(f'cdna_kernels/{NAME}.s.ref').read().split('; Override launch geometry')[0]

SLOT = 16384
RING = 6*SLOT
KS_T = RING
VS_T = RING + 16384
STATS = RING + 32768
LDS_BYTES = STATS + 4096

CSCALE = (128.0 ** -0.5) * math.log2(math.e)
import struct
def f2u(x): return struct.unpack('<I', struct.pack('<f', x))[0]

KBASE, KSA, VA, VSA, M0_, M1_, L0_, L1_ = 0, 1, 2, 3, 4, 5, 6, 7
P = 8; KADDR = 8; KFRAG = 16; VFRAG = 24; TMP = 24
VSC = 32; KST = (32, 56); VRAW = 64; S = 96; O = 128
def Oreg(qb, j): return O + (qb*4 + j)*16

def srd(A, d, base_lo, off_lo, off_hi, nbytes):
    A(f's_add_u32 s{d}, s{base_lo}, {off_lo}')
    A(f's_addc_u32 s{d+1}, s{base_lo+1}, {off_hi}')
    A(f's_and_b32 s{d+1}, s{d+1}, 0xffff')
    A(f's_mov_b32 s{d+2}, {nbytes}')
    A(f's_mov_b32 s{d+3}, 0x20000')

def gen(W=16, flags='nt', stamps=False, wgmap=0, epi=1):
    A = Asm()
    A.lines += HEADER.rstrip('\n').split('\n')
    main = NAME + '_kernel'
    if epi == 1:
        A(f'; @launch kernel={main} grid=(256,1,1) block=(256,1,1) lds={LDS_BYTES}')
        A(f'; @launch kernel=combine_kernel grid=(128,1,1) block=(256,1,1) lds=0')
    else:
        A(f'; @launch grid=(256,1,1) block=(256,1,1) lds={LDS_BYTES}')
    A('.amdgcn_target "amdgcn-amd-amdhsa--gfx950"')
    A('.text')
    A(f'.globl {main}')
    A('.p2align 8')
    A(f'.type {main},@function')
    A(f'{main}:')
    A('s_cmp_ge_u32 s2, 256')
    A('s_cbranch_scc1 L_end')
    if stamps: A('s_memrealtime s[60:61]')
    A('s_load_dwordx16 s[4:19], s[0:1], 0')
    A('s_load_dwordx4 s[20:23], s[0:1], 64')
    A('v_lshrrev_b32 v1, 6, v0')
    A('v_and_b32 v0, 63, v0')
    A('v_readfirstlane_b32 s3, v1')
    if wgmap == 0:
        A('s_mov_b32 s40, s2')
    elif wgmap == 1:
        A('s_and_b32 s40, s2, 7'); A('s_lshl_b32 s40, s40, 2')
        A('s_lshr_b32 s41, s2, 3'); A('s_and_b32 s41, s41, 3'); A('s_or_b32 s40, s40, s41')
        A('s_and_b32 s41, s2, 0xe0'); A('s_or_b32 s40, s40, s41')
    A('s_cmp_lg_u32 s3, 3')
    A('s_cbranch_scc1 L_consumer')

    A('v_lshrrev_b32 v1, 5, v0')
    A('v_and_b32 v2, 31, v0')
    A('v_xor_b32 v2, v2, v1')
    A('v_lshlrev_b32 v2, 4, v2')
    A('v_lshl_or_b32 v8, v1, 9, v2')
    for j in range(1, 8):
        A(f'v_xor_b32 v{8+j}, {2*j*16}, v8')
    A('v_lshlrev_b32 v16, 4, v0')
    A('s_lshl_b32 s42, s40, 20')
    A('s_waitcnt lgkmcnt(0)')
    srd(A, 24, 6, 's42', 0, 1 << 20)
    srd(A, 28, 8, 's42', 0, 1 << 20)
    G = 4
    def slot(kind, waits, bar_at):
        so, lb, sd = (44, 46, 's[24:27]') if kind == 'K' else (45, 47, 's[28:31]')
        for g in range(4):
            A(f's_add_u32 m0, s{lb}, {g*4096}')
            A(f's_add_u32 s48, s{so}, {g*4096}')
            if waits[g] is not None: A(f's_waitcnt vmcnt({waits[g]})')
            if bar_at == g: A('s_barrier')
            for i in range(4):
                jj = g*4 + i
                vo = 8 + (jj & 7) if kind == 'K' else 16
                A(f'buffer_load_dwordx4 v{vo}, {sd}, s48 offen offset:{i*1024} {flags} lds')
        A(f's_add_u32 s{so}, s{so}, {SLOT}')
        A(f's_add_u32 s{lb}, s{lb}, {2*SLOT}')
        A(f's_cmp_ge_u32 s{lb}, {RING}')
        A(f's_cselect_b32 s49, {RING}, 0')
        A(f's_sub_u32 s{lb}, s{lb}, s49')
    A('s_mov_b32 s44, 0'); A('s_mov_b32 s45, 0'); A('s_mov_b32 s46, 0'); A(f's_mov_b32 s47, {SLOT}')
    assert W % 4 == 0 and 4 <= W <= 28
    lag = 1 + W // 16
    bg = (W % 16) // 4
    slot('K', [W]*4, bg if 0 - lag >= 0 else None)
    slot('K', [W]*4, bg if 1 - lag >= 0 else None)
    slot('V', [W]*4, bg)
    A('s_mov_b32 s50, 62')
    A.label('L_ld_loop')
    slot('K', [W]*4, bg)
    slot('V', [W]*4, bg)
    A('s_sub_u32 s50, s50, 1')
    A('s_cmp_lg_u32 s50, 0')
    A('s_cbranch_scc1 L_ld_loop')
    slot('V', [W]*4, bg)
    if lag == 2:
        A('s_waitcnt vmcnt(16)'); A('s_barrier')
    A('s_waitcnt vmcnt(0)')
    if stamps: A('s_memrealtime s[62:63]'); A('s_waitcnt lgkmcnt(0)')
    A('s_barrier')
    A('s_branch L_epilogue')

    A.label('L_consumer')
    A('v_and_b32 v8, 31, v0')
    A('v_lshrrev_b32 v9, 5, v0')
    A('v_lshlrev_b32 v10, 4, v0')
    A('v_lshlrev_b32 v11, 8, v8')
    A('v_lshl_or_b32 v11, v9, 4, v11')
    A('s_lshl_b32 s42, s40, 12')
    A('s_lshr_b32 s43, s40, 2')
    A('s_lshl_b32 s43, s43, 14')
    A('s_waitcnt lgkmcnt(0)')
    A('s_cmp_eq_u32 s3, 2')
    A('s_cselect_b32 s10, s14, s10'); A('s_cselect_b32 s11, s15, s11')
    A('s_cselect_b32 s12, s16, s12'); A('s_cselect_b32 s13, s17, s13')
    A(f's_cselect_b32 s44, {VS_T-KS_T}, 0')
    A(f's_add_u32 s44, s44, {KS_T}')
    srd(A, 24, 10, 's42', 0, 4096)
    srd(A, 28, 12, 's42', 0, 4096)
    srd(A, 32, 4, 's43', 0, 16384)
    A('s_cmp_eq_u32 s3, 0')
    A('s_cbranch_scc1 L_noTabLoad')
    for p in range(4):
        A(f'buffer_load_dwordx4 v[{64+p*8}:{64+p*8+3}], v10, s[24:27], 0 offen offset:{p*1024}')
        A(f'buffer_load_dwordx4 v[{64+p*8+4}:{64+p*8+7}], v10, s[28:31], 0 offen offset:{p*1024}')
    A.label('L_noTabLoad')
    A('s_mov_b32 s45, 8192')
    for qb in range(2):
        for s in range(8):
            a = (qb*8 + s)*4
            A(f'buffer_load_dwordx4 a[{a}:{a+3}], v11, s[32:35], {"s45" if qb else "0"} offen offset:{s*32}')
    A('s_lshl_b32 s46, s3, 15')
    A('v_and_b32 v12, 15, v8')
    A('v_lshlrev_b32 v13, 1, v9')
    A('v_xor_b32 v12, v12, v13')
    A('v_lshlrev_b32 v12, 4, v12')
    A('v_lshl_or_b32 v12, v8, 9, v12')
    A(f'v_lshlrev_b32 v{KSA}, 6, v9')
    A(f'v_add_u32 v{KSA}, {KS_T}, v{KSA}')
    A(f'v_lshlrev_b32 v{VA}, 4, v8')
    A(f'v_lshl_or_b32 v{VA}, v9, 11, v{VA}')
    A(f's_add_u32 s47, s46, {SLOT}')
    A(f'v_add_u32 v{VA}, s47, v{VA}')
    A(f'v_lshlrev_b32 v{VSA}, 5, v9')
    A(f's_lshl_b32 s47, s3, 8')
    A(f's_add_u32 s47, s47, {VS_T}')
    A(f'v_add_u32 v{VSA}, s47, v{VSA}')
    A('v_lshlrev_b32 v14, 6, v0')
    A('v_add_u32 v14, s44, v14')
    A(f'v_add_u32 v{KBASE}, s46, v12')
    A(f'v_mov_b32 v{M0_}, 0xff800000'); A(f'v_mov_b32 v{M1_}, 0xff800000')
    A(f'v_mov_b32 v{L0_}, 0'); A(f'v_mov_b32 v{L1_}, 0')
    for i in range(128): A(f'v_mov_b32 v{O+i}, 0')
    A(f's_mov_b32 s52, {hex(f2u(CSCALE))}')
    A('s_mov_b32 s53, 0x4b800000')
    A('s_mov_b32 s54, 0xffff0000')
    A('s_mov_b32 s50, s3')
    A('s_cmp_eq_u32 s3, 0')
    A('s_cbranch_scc1 L_tile')
    def table_pass(p):
        sc, zr = 64 + p*8, 64 + p*8 + 4
        t = 16 + (p & 1)*16
        for e in range(8):
            q, i = e >> 2, e & 3
            ds, dc = t + q*8 + i, t + q*8 + 4 + i
            if e & 1:
                A(f'v_and_b32 v{ds}, s54, v{sc + (e>>1)}'); A(f'v_and_b32 v{dc}, s54, v{zr + (e>>1)}')
            else:
                A(f'v_lshlrev_b32 v{ds}, 16, v{sc + (e>>1)}'); A(f'v_lshlrev_b32 v{dc}, 16, v{zr + (e>>1)}')
            A(f'v_mul_f32 v{dc}, -v{dc}, v{ds}'.replace('v_mul_f32', 'v_mul_f32_e64'))
            A(f'v_mul_f32 v{ds}, s53, v{ds}')
        for k in range(4):
            A(f'ds_write_b128 v14, v[{t+4*k}:{t+4*k+3}] offset:{p*4096 + k*16}')
    A('s_waitcnt vmcnt(22)')
    table_pass(0)
    A('s_waitcnt lgkmcnt(0)')
    A('s_barrier')
    A('s_waitcnt vmcnt(16)')
    for p in range(1, 4):
        if p >= 3: A('s_waitcnt lgkmcnt(4)')
        table_pass(p)
    A('s_waitcnt lgkmcnt(0)')
    A('s_cmp_eq_u32 s3, 1')
    A('s_cbranch_scc1 L_tile')
    A('s_barrier'); A('s_barrier')

    A.label('L_tile')
    A('s_lshr_b32 s51, s50, 2')
    A('s_lshl_b32 s51, s51, 10')
    A(f'v_add_u32 v24, s51, v{KSA}')
    KSCUR = 24
    A(f'v_mov_b32 v{KADDR}, v{KBASE}')
    for x in range(1, 8):
        s3_, e = x >> 1, x & 1
        A(f'v_xor_b32 v{KADDR+x}, {(4*s3_+e)*16}, v{KBASE}')
    def kscale_reads(s):
        b = KST[s & 1]
        for k in range(4):
            A(f'ds_read_b128 v[{b+8+4*k}:{b+8+4*k+3}], v{KSCUR} offset:{s*128 + k*16}')
    def kraw_reads(s):
        b = KST[s & 1]
        for e in range(2):
            A(f'ds_read_b128 v[{b+4*e}:{b+4*e+3}], v{KADDR + (s&3)*2 + e} offset:{(s>>2)*256}')
    A('s_waitcnt vmcnt(0)')
    A('s_barrier')
    kraw_reads(0); kscale_reads(0)
    for s in range(8):
        if s + 1 < 8:
            kraw_reads(s+1); kscale_reads(s+1)
            A('s_waitcnt lgkmcnt(6)')
        else:
            A('s_waitcnt lgkmcnt(0)')
        b = KST[s & 1]; f = KFRAG + (s & 1)*4
        for e in range(2):
            for i in range(4):
                A(f'v_fma_mix_f32 v{b+4*e+i}, v{b+4*e+i}, v{b+8+8*e+i}, v{b+8+8*e+4+i} op_sel_hi:[1,0,0]')
        for k in range(4):
            A(f'v_cvt_pk_bf16_f32 v{f+k}, v{b+2*k}, v{b+2*k+1}')
        A('s_nop 1')
        for qb in range(2):
            a = (qb*8 + s)*4
            c = '0' if s == 0 else vr(S + qb*16, 16)
            A(f'v_mfma_f32_32x32x16_bf16 {vr(S+qb*16,16)}, {vr(f,4)}, {ar(a,4)}, {c}')
    A('s_barrier')
    for a in range(4):
        for k in range(2):
            A(f'ds_read_b128 v[{VSC+a*8+4*k}:{VSC+a*8+4*k+3}], v{VSA} offset:{a*64 + k*16}')
    A(f'v_add_u32 v{VSA}, 768, v{VSA}')
    A('s_nop 3')
    T = [24, 25]; T2 = [26, 27]; AL = [28, 30]; Mx = [M0_, M1_]; Lx = [L0_, L1_]
    for qb in range(2):
        A(f'v_max3_f32 v{T[qb]}, v{S+qb*16}, v{S+qb*16+1}, v{S+qb*16+2}')
    for i in range(3, 15, 2):
        for qb in range(2):
            A(f'v_max3_f32 v{T[qb]}, v{T[qb]}, v{S+qb*16+i}, v{S+qb*16+i+1}')
    for qb in range(2):
        A(f'v_max_f32 v{T[qb]}, v{T[qb]}, v{S+qb*16+15}')
    for qb in range(2):
        A(f'v_mov_b32 v{T2[qb]}, v{T[qb]}')
    A('s_nop 1')
    for qb in range(2):
        A(f'v_permlane32_swap_b32 v{T[qb]}, v{T2[qb]}')
    for qb in range(2):
        A(f'v_max_f32 v{T[qb]}, v{T[qb]}, v{T2[qb]}')
    for qb in range(2):
        A(f'v_mul_f32 v{T[qb]}, s52, v{T[qb]}')
    for qb in range(2):
        A(f'v_max_f32 v{T[qb]}, v{T[qb]}, v{Mx[qb]}')
    for qb in range(2):
        A(f'v_sub_f32 v{AL[qb]}, v{Mx[qb]}, v{T[qb]}')
    for qb in range(2):
        A(f'v_exp_f32 v{AL[qb]}, v{AL[qb]}')
    for qb in range(2):
        A(f'v_mov_b32 v{Mx[qb]}, v{T[qb]}')
    for qb in range(2):
        A(f'v_mul_f32 v{Lx[qb]}, v{Lx[qb]}, v{AL[qb]}')
    for qb in range(2):
        for i in range(16):
            A(f'v_fma_f32 v{S+qb*16+i}, v{S+qb*16+i}, s52, -v{Mx[qb]}')
        for i in range(16):
            A(f'v_exp_f32 v{S+qb*16+i}, v{S+qb*16+i}')
    A('s_cmp_eq_u32 s50, 63')
    A('s_cbranch_scc1 L_skipBc')
    A('s_barrier')
    A.label('L_skipBc')
    for qb in range(2):
        for k in range(8):
            A(f'v_cvt_pk_bf16_f32 v{P+qb*8+k}, v{S+qb*16+2*k}, v{S+qb*16+2*k+1}')
        for i in range(0, 8, 2):
            A(f'v_pk_add_f32 {vr(S+qb*16+i,2)}, {vr(S+qb*16+i,2)}, {vr(S+qb*16+8+i,2)}')
        for i in range(0, 4, 2):
            A(f'v_pk_add_f32 {vr(S+qb*16+i,2)}, {vr(S+qb*16+i,2)}, {vr(S+qb*16+4+i,2)}')
        A(f'v_pk_add_f32 {vr(S+qb*16,2)}, {vr(S+qb*16,2)}, {vr(S+qb*16+2,2)}')
        A(f'v_add_f32 v{Lx[qb]}, v{Lx[qb]}, v{S+qb*16}')
        A(f'v_add_f32 v{Lx[qb]}, v{Lx[qb]}, v{S+qb*16+1}')
    for qb in range(2):
        for i in range(0, 64, 2):
            r = O + qb*64 + i
            A(f'v_pk_mul_f32 {vr(r,2)}, {vr(r,2)}, {vr(AL[qb],2)} op_sel_hi:[1,0]')
    A('s_waitcnt lgkmcnt(0)')
    A('s_barrier')
    def vread(t):
        a, b = t >> 2, t & 3
        A(f'ds_read_b128 {vr(VRAW+4*t,4)}, v{VA} offset:{(8*a+b)*512}')
    def vdeq(t):
        a, b = t >> 2, t & 3
        for j in range(4):
            r = VRAW + 4*t + j
            A(f'v_fma_mix_f32 v{r}, v{r}, v{VSC+a*8+b}, v{VSC+a*8+4+b} op_sel_hi:[1,0,0]')
    def vpack(u, j):
        f = VFRAG + (j & 1)*4
        for i in range(4):
            t = 8*u + 2*i
            A(f'v_cvt_pk_bf16_f32 v{f+i}, v{VRAW+4*t+j}, v{VRAW+4*(t+1)+j}')
    def vmfma(u, j, qb):
        f = VFRAG + (j & 1)*4
        A(f'v_mfma_f32_32x32x16_bf16 {vr(Oreg(qb,j),16)}, {vr(f,4)}, {vr(P+qb*8+u*4,4)}, {vr(Oreg(qb,j),16)}')
    for t in range(15): vread(t)
    A('s_waitcnt lgkmcnt(14)')
    vread(15)
    vdeq(0)
    for t in range(1, 8):
        A(f's_waitcnt lgkmcnt({15-t})')
        vdeq(t)
    for j in range(4):
        vpack(0, j)
        A(f's_waitcnt lgkmcnt({15-(8+2*j)})')
        vdeq(8 + 2*j)
        vmfma(0, j, 0)
        A(f's_waitcnt lgkmcnt({15-(9+2*j)})')
        vdeq(9 + 2*j)
        vmfma(0, j, 1)
    vpack(1, 0)
    for j in range(4):
        if j == 0: A('s_nop 1')
        vmfma(1, j, 0)
        if j < 3: vpack(1, j+1)
        vmfma(1, j, 1)
        if j < 3: A('s_nop 0')
    A('s_add_u32 s50, s50, 3')
    A('s_cmp_ge_u32 s50, 64')
    A('s_cbranch_scc1 L_cdone')
    A('s_barrier')
    A('s_cmp_eq_u32 s50, 3')
    A('s_cbranch_scc1 L_tile')
    A('s_barrier')
    A('s_branch L_tile')

    A.label('L_cdone')
    A('s_cmp_eq_u32 s3, 0')
    A('s_cbranch_scc1 L_dump')
    A('s_barrier')
    A.label('L_dump')
    A('v_mbcnt_lo_u32_b32 v8, -1, 0')
    A('v_mbcnt_hi_u32_b32 v8, -1, v8')
    A('v_lshlrev_b32 v9, 3, v8')
    A('s_lshl_b32 s47, s3, 10')
    A(f's_add_u32 s47, s47, {STATS}')
    A('v_add_u32 v9, s47, v9')
    A('v_lshlrev_b32 v10, 4, v8')
    A('v_add_u32 v10, s46, v10')
    for qb in range(2):
        A(f'v_mov_b32 v{12+qb}, v{Lx[qb]}')
    A('s_nop 1')
    for qb in range(2):
        A(f'v_permlane32_swap_b32 v{Lx[qb]}, v{12+qb}')
    for qb in range(2):
        A(f'v_mov_b32 v{16+2*qb}, v{Mx[qb]}')
        A(f'v_add_f32 v{17+2*qb}, v{Lx[qb]}, v{12+qb}')
    for qb in range(2):
        A(f'ds_write_b64 v9, v[{16+2*qb}:{17+2*qb}] offset:{qb*512}')
    for qb in range(2):
        for a in range(4):
            for j in range(4):
                blk = (qb*2 + (a >> 1))*8 + (a & 1)*4 + j
                A(f'ds_write_b128 v10, {vr(Oreg(qb,j)+4*a,4)} offset:{blk*1024}')
    A('s_waitcnt lgkmcnt(0)')
    A('s_cmp_lg_u32 s3, 1')
    A('s_cbranch_scc1 L_epilogue')
    A('s_barrier'); A('s_barrier')

    A.label('L_epilogue')
    A('v_mbcnt_lo_u32_b32 v0, -1, 0')
    A('v_mbcnt_hi_u32_b32 v0, -1, v0')
    A('s_lshr_b32 s47, s3, 1')
    A('s_lshl_b32 s47, s47, 9')
    A(f's_add_u32 s47, s47, {STATS}')
    A('v_lshlrev_b32 v1, 3, v0')
    A('v_add_u32 v1, s47, v1')
    A('s_lshl_b32 s47, s3, 13')
    A('v_lshlrev_b32 v2, 4, v0')
    A('v_add_u32 v3, s47, v2')
    A('v_add_u32 v4, 0x10000, v3')
    A('s_barrier')
    for c in range(3):
        A(f'ds_read_b64 v[{8+2*c}:{9+2*c}], v1 offset:{c*1024}')
    R = 32
    def dread(c, i):
        if c < 2: A(f'ds_read_b128 {vr(R+c*32+4*i,4)}, v3 offset:{c*32768 + i*1024}')
        else: A(f'ds_read_b128 {vr(R+c*32+4*i,4)}, v4 offset:{i*1024}')
    for i in range(4):
        for c in range(3): dread(c, i)
    A('s_waitcnt lgkmcnt(12)')
    A('v_max3_f32 v14, v8, v10, v12')
    for c in range(3): A(f'v_sub_f32 v{16+2*c}, v{8+2*c}, v14')
    for c in range(3): A(f'v_exp_f32 v{16+2*c}, v{16+2*c}')
    A('s_nop 0')
    A('v_mul_f32 v15, v9, v16')
    A('v_fmac_f32 v15, v11, v18')
    A('v_fmac_f32 v15, v13, v20')
    A('s_lshl_b32 s42, s40, 15')
    srd(A, 24, 22, 's42', 0, 32768)
    A('s_lshl_b32 s42, s40, 11')
    A('s_add_u32 s42, s42, 0x800000')
    srd(A, 28, 22, 's42', 0, 2048)
    A('s_lshl_b32 s48, s3, 9')
    A('v_lshlrev_b32 v5, 3, v0')
    A('buffer_store_dwordx2 v[14:15], v5, s[28:31], s48 offen')
    for i in range(8):
        if i < 4:
            A(f's_waitcnt lgkmcnt(9)')
            for c in range(3): dread(c, i+4)
        else:
            A(f's_waitcnt lgkmcnt({3*(7-i)})')
        for k in range(0, 4, 2):
            r = R + 4*i + k
            A(f'v_pk_mul_f32 {vr(r,2)}, {vr(r,2)}, v[16:17] op_sel_hi:[1,0]')
            A(f'v_pk_fma_f32 {vr(r,2)}, {vr(r+32,2)}, v[18:19], {vr(r,2)} op_sel_hi:[1,0,1]')
            A(f'v_pk_fma_f32 {vr(r,2)}, {vr(r+64,2)}, v[20:21], {vr(r,2)} op_sel_hi:[1,0,1]')
        if i == 4: A('s_add_u32 s47, s47, 4096')
        A(f'buffer_store_dwordx4 {vr(R+4*i,4)}, v2, s[24:27], s47 offen offset:{(i&3)*1024}')
    if stamps:
        A('s_waitcnt vmcnt(0)')
        A('s_memrealtime s[64:65]')
        A('s_waitcnt lgkmcnt(0)')
        A('s_cmp_lg_u32 s3, 3')
        A('s_cbranch_scc1 L_end')
        A('s_getreg_b32 s66, hwreg(HW_REG_XCC_ID)')
        for i in range(7): A(f'v_mov_b32 v{8+i}, s{60+i}')
        A('s_lshl_b32 s42, s2, 5')
        A('s_add_u32 s42, s42, 0x10000000')
        A('v_mov_b32 v1, s42')
        A('s_mov_b64 exec, 1')
        A('global_store_dwordx4 v1, v[8:11], s[22:23]')
        A('global_store_dwordx3 v1, v[12:14], s[22:23] offset:16')
    A.label('L_end')
    A('s_endpgm')

    if epi == 1:
        A('.globl combine_kernel')
        A('.p2align 8')
        A('.type combine_kernel,@function')
        A('combine_kernel:')
        A('s_cmp_ge_u32 s2, 128')
        A('s_cbranch_scc1 L_cend')
        A('s_load_dwordx2 s[4:5], s[0:1], 56')
        A('s_load_dwordx2 s[6:7], s[0:1], 72')
        A('v_lshrrev_b32 v1, 6, v0')
        A('v_and_b32 v0, 63, v0')
        A('v_readfirstlane_b32 s3, v1')
        A('s_lshr_b32 s8, s2, 1')
        A('s_and_b32 s9, s2, 1')
        A('s_lshl_b32 s10, s8, 17')
        A('s_lshl_b32 s11, s8, 13')
        A('s_add_u32 s11, s11, 0x800000')
        A('s_lshl_b32 s28, s2, 13')
        A('s_lshl_b32 s24, s9, 2')
        A('s_add_u32 s24, s24, s3')
        A('s_lshr_b32 s25, s24, 1')
        A('s_lshl_b32 s24, s24, 12')
        A('s_lshl_b32 s25, s25, 9')
        A('v_lshlrev_b32 v2, 4, v0')
        A('v_lshlrev_b32 v3, 3, v0')
        A('v_add_u32 v3, s25, v3')
        A('s_waitcnt lgkmcnt(0)')
        srd(A, 12, 6, 's10', 0, 4*32768)
        srd(A, 16, 6, 's11', 0, 4*2048)
        srd(A, 20, 4, 's28', 0, 8192)
        A('s_mov_b32 s26, 4096')
        for sp in range(4):
            A(f'buffer_load_dwordx2 v[{8+2*sp}:{9+2*sp}], v3, s[16:19], {"s26" if sp >= 2 else "0"} offen offset:{(sp&1)*2048}')
        for sp in range(4):
            for j in range(4):
                A(f'buffer_load_dwordx4 {vr(32+sp*16+4*j,4)}, v2, s[12:15], s24 offen offset:{j*1024}')
            if sp < 3: A('s_add_u32 s24, s24, 32768')
        A('v_and_b32 v4, 31, v0'); A('v_lshlrev_b32 v4, 8, v4')
        A('v_lshrrev_b32 v5, 5, v0'); A('v_lshl_or_b32 v4, v5, 5, v4')
        A('s_lshl_b32 s27, s3, 6')
        A('s_waitcnt vmcnt(16)')
        A('v_max3_f32 v16, v8, v10, v12'); A('v_max_f32 v16, v16, v14')
        for sp in range(4): A(f'v_sub_f32 v{18+2*sp}, v{8+2*sp}, v16')
        for sp in range(4): A(f'v_exp_f32 v{18+2*sp}, v{18+2*sp}')
        A('s_nop 0')
        A('v_mul_f32 v17, v9, v18')
        for sp in range(1, 4): A(f'v_fmac_f32 v17, v{9+2*sp}, v{18+2*sp}')
        A('v_rcp_f32 v17, v17')
        A('s_nop 0')
        for sp in range(4): A(f'v_mul_f32 v{18+2*sp}, v{18+2*sp}, v17')
        for sp in range(4):
            A(f's_waitcnt vmcnt({4*(3-sp)})')
            for k in range(0, 16, 2):
                if sp == 0: A(f'v_pk_mul_f32 {vr(32+k,2)}, {vr(32+k,2)}, v[18:19] op_sel_hi:[1,0]')
                else: A(f'v_pk_fma_f32 {vr(32+k,2)}, {vr(32+sp*16+k,2)}, {vr(18+2*sp,2)}, {vr(32+k,2)} op_sel_hi:[1,0,1]')
        for k in range(8):
            b, j = k >> 1, 2*(k & 1)
            A(f'v_cvt_pk_bf16_f32 v{8+k}, v{32+4*j+b}, v{32+4*(j+1)+b}')
        A('buffer_store_dwordx4 v[8:11], v4, s[20:23], s27 offen')
        A('buffer_store_dwordx4 v[12:15], v4, s[20:23], s27 offen offset:16')
        A.label('L_cend')
        A('s_endpgm')

    A('.section .rodata,"a"')
    def kd(name, nv, acc):
        A('.p2align 6')
        A(f'.amdhsa_kernel {name}')
        for l in [f'.amdhsa_next_free_vgpr {nv}', '.amdhsa_next_free_sgpr 96', f'.amdhsa_accum_offset {acc}',
                  '.amdhsa_group_segment_fixed_size 0', '.amdhsa_kernarg_size 80', '.amdhsa_user_sgpr_count 2',
                  '.amdhsa_user_sgpr_kernarg_segment_ptr 1', '.amdhsa_system_sgpr_workgroup_id_x 1',
                  '.amdhsa_float_denorm_mode_32 3', '.amdhsa_float_denorm_mode_16_64 3']:
            A.lines.append('  ' + l)
        A('.end_amdhsa_kernel')
    kd(main, 320, 256)
    if epi == 1: kd('combine_kernel', 96, 96)
    return A.text()

if __name__ == '__main__':
    kw = eval('dict(' + (sys.argv[2] if len(sys.argv) > 2 else '') + ')')
    t = gen(**kw)
    errs = check_hazards(t)
    for e in errs: print('HAZARD', e)
    out = sys.argv[1] if len(sys.argv) > 1 else f'cdna_kernels/{NAME}.s'
    open(out, 'w').write(t)
    print('wrote', out, len(t), 'bytes', 'hazards', len(errs))
```

```python
import sys, math, struct
sys.path.insert(0, 'gen')
from asmlib import *

NAME = 'standalone__kv_cache_quant_int4_int2_kv_with_per_channel_or_per_token_scales__sampling'
HEADER = open(f'cdna_kernels/{NAME}.s.ref').read().split('; Override launch geometry')[0]

SLOT = 16384
RING = 6*SLOT
KS_T = RING
VS_T = RING + 16384
QST = RING + 32768
STATS = QST + 16384
ROLE = STATS + 3072
LDS_BYTES = STATS + 4096
STG = 5*SLOT
WS_STATS = 0x800000
WS_FLAGS = 0x900000

CSCALE = (128.0 ** -0.5) * math.log2(math.e)
def f2u(x): return struct.unpack('<I', struct.pack('<f', x))[0]

KBASE, KSA, VA, VSA, M0_, M1_, L0_, L1_ = 0, 1, 2, 3, 4, 5, 6, 7
P = 8; KADDR = 8; KFRAG = 16; VFRAG = 24
VSC = 32; KST = (32, 56); VRAW = 64; S = 96; O = 128
def Oreg(qb, j): return O + (qb*4 + j)*16

def srd(A, d, base_lo, off_lo, nbytes):
    A(f's_add_u32 s{d}, s{base_lo}, {off_lo}')
    A(f's_addc_u32 s{d+1}, s{base_lo+1}, 0')
    A(f's_and_b32 s{d+1}, s{d+1}, 0xffff')
    A(f's_mov_b32 s{d+2}, {nbytes}')
    A(f's_mov_b32 s{d+3}, 0x20000')

def gen(W=16, flags='nt', stamps=0, wgmap=0, qflags='', sflags='nt', oflags='', touch=0, W0=None):
    A = Asm()
    A.lines += HEADER.rstrip('\n').split('\n')
    main = NAME + '_kernel'
    A(f'; @launch grid=(256,1,1) block=(256,1,1) lds={LDS_BYTES}')
    A('.amdgcn_target "amdgcn-amd-amdhsa--gfx950"')
    A('.text')
    A(f'.globl {main}')
    A('.p2align 8')
    A(f'.type {main},@function')
    A(f'{main}:')
    def stamp(i, cond=True):
        if stamps and cond: A(f's_memrealtime s[{60+2*i}:{61+2*i}]')
    A('s_cmp_ge_u32 s2, 256')
    A('s_cbranch_scc1 L_end')
    stamp(0)
    A('s_load_dwordx16 s[4:19], s[0:1], 0')
    A('s_load_dwordx4 s[20:23], s[0:1], 64')
    A('v_lshrrev_b32 v1, 6, v0')
    A('v_and_b32 v0, 63, v0')
    A('v_readfirstlane_b32 s3, v1')
    if wgmap == 0:
        A('s_mov_b32 s40, s2')
    elif wgmap == 1:
        A('s_and_b32 s40, s2, 7'); A('s_lshl_b32 s40, s40, 2')
        A('s_lshr_b32 s41, s2, 3'); A('s_and_b32 s41, s41, 3'); A('s_or_b32 s40, s40, s41')
        A('s_and_b32 s41, s2, 0xe0'); A('s_or_b32 s40, s40, s41')
    A('s_lshr_b32 s41, s40, 2')
    A('s_cmp_lg_u32 s3, 3')
    A('s_cbranch_scc1 L_consumer')

    A('v_lshlrev_b32 v16, 4, v0')
    A('s_lshl_b32 s42, s40, 12')
    A('v_add_u32 v17, s42, v16')
    A('v_lshrrev_b32 v1, 4, v0')
    A('v_and_b32 v2, 15, v0')
    A('v_xor_b32 v2, v2, v1')
    A('v_lshlrev_b32 v2, 4, v2')
    A('v_lshl_or_b32 v2, v1, 8, v2')
    A('s_lshl_b32 s43, s41, 14')
    A('v_add_u32 v20, s43, v2')
    for jj in range(1, 4):
        A(f'v_xor_b32 v{20+jj}, {4*jj*16}, v20')
    A('v_lshrrev_b32 v1, 5, v0')
    A('v_and_b32 v2, 31, v0')
    A('v_xor_b32 v2, v2, v1')
    A('v_lshlrev_b32 v2, 4, v2')
    A('v_lshl_or_b32 v8, v1, 9, v2')
    for j in range(1, 8):
        A(f'v_xor_b32 v{8+j}, {2*j*16}, v8')
    A('s_lshl_b32 s42, s40, 20')
    A(f's_mov_b32 m0, {STG}')
    A('s_waitcnt lgkmcnt(0)')
    assert W % 4 == 0 and 4 <= W <= 28
    lag = 1 + W // 16
    bg = (W % 16) // 4
    def pre(g, idx, st=None):
        if idx*16 + g*4 > W: A(f's_waitcnt vmcnt({W})')
        if g == bg and idx >= lag:
            if st is not None: stamp(st, stamps == 2)
            A('s_barrier')
    if touch:
        srd(A, 24, 6, 's42', 1 << 20)
        srd(A, 28, 8, 's42', 1 << 20)
        A(f'buffer_load_dword v24, v16, s[24:27], 0 offen {flags}')
        A(f'buffer_load_dword v25, v16, s[28:31], 0 offen {flags}')
    for g in range(4):
        if g: A(f's_mov_b32 m0, {STG + g*4096}')
        pre(g, 0)
        if g: A('s_nop 0')
        for i in range(4):
            A(f'global_load_lds_dwordx4 v17, s[{10+2*g}:{11+2*g}] offset:{i*1024} {sflags}')
    for g in range(4):
        A(f's_mov_b32 m0, {QST + g*4096}')
        pre(g, 1)
        A('s_nop 0')
        for i in range(4):
            A(f'global_load_lds_dwordx4 v{20+i}, s[4:5] offset:{i*1024} {qflags}')
        if g < 3:
            A('s_add_u32 s4, s4, 4096'); A('s_addc_u32 s5, s5, 0')
        if g == 0 and not touch:
            srd(A, 24, 6, 's42', 1 << 20)
            srd(A, 28, 8, 's42', 1 << 20)
    def slot(kind, st=None):
        so, lb, sd = (44, 46, 's[24:27]') if kind == 'K' else (45, 47, 's[28:31]')
        for g in range(4):
            A(f's_add_u32 m0, s{lb}, {g*4096}')
            A(f's_add_u32 s48, s{so}, {g*4096}')
            pre(g, 99, st)
            for i in range(4):
                jj = g*4 + i
                vo = 8 + (jj & 7) if kind == 'K' else 16
                A(f'buffer_load_dwordx4 v{vo}, {sd}, s48 offen offset:{i*1024} {flags} lds')
        A(f's_add_u32 s{so}, s{so}, {SLOT}')
        A(f's_add_u32 s{lb}, s{lb}, {2*SLOT}')
        A(f's_cmp_ge_u32 s{lb}, {RING}')
        A(f's_cselect_b32 s49, {RING}, 0')
        A(f's_sub_u32 s{lb}, s{lb}, s49')
    A('s_mov_b32 s44, 0'); A('s_mov_b32 s45, 0'); A('s_mov_b32 s46, 0'); A(f's_mov_b32 s47, {SLOT}')
    slot('K', 3)
    npeel = 0
    if stamps == 2:
        slot('K', 4); slot('V', 5); slot('K', 6); slot('V'); npeel = 2
    A(f's_mov_b32 s50, {63-npeel}')
    A.label('L_ld_loop')
    slot('K')
    slot('V')
    A('s_sub_u32 s50, s50, 1')
    A('s_cmp_lg_u32 s50, 0')
    A('s_cbranch_scc1 L_ld_loop')
    slot('V')
    if lag == 2:
        A('s_waitcnt vmcnt(16)'); A('s_barrier')
    A('s_waitcnt vmcnt(0)')
    if stamps: stamp(1); A('s_waitcnt lgkmcnt(0)')
    A('s_barrier')
    A('s_branch L_epilogue')

    A.label('L_consumer')
    A('v_and_b32 v8, 31, v0')
    A('v_lshrrev_b32 v9, 5, v0')
    A('v_lshlrev_b32 v10, 4, v0')
    A('v_lshlrev_b32 v14, 6, v0')
    A('s_lshl_b32 s46, s3, 15')
    A('v_and_b32 v12, 15, v8')
    A('v_xor_b32 v11, v12, v9')
    A('v_lshlrev_b32 v11, 4, v11')
    A('v_lshl_or_b32 v11, v8, 8, v11')
    A(f'v_add_u32 v11, {QST}, v11')
    A('v_lshlrev_b32 v13, 1, v9')
    A('v_xor_b32 v12, v12, v13')
    A('v_lshlrev_b32 v12, 4, v12')
    A('v_lshl_or_b32 v12, v8, 9, v12')
    A(f'v_lshlrev_b32 v{KSA}, 6, v9')
    A(f'v_add_u32 v{KSA}, {KS_T}, v{KSA}')
    A(f'v_lshlrev_b32 v{VA}, 4, v8')
    A(f'v_lshl_or_b32 v{VA}, v9, 11, v{VA}')
    A(f's_add_u32 s47, s46, {SLOT}')
    A(f'v_add_u32 v{VA}, s47, v{VA}')
    A(f'v_lshlrev_b32 v{VSA}, 5, v9')
    A(f's_lshl_b32 s47, s3, 8')
    A(f's_add_u32 s47, s47, {VS_T}')
    A(f'v_add_u32 v{VSA}, s47, v{VSA}')
    A('s_and_b32 s43, s40, 3')
    A('s_lshl_b32 s42, s41, 11')
    A('s_lshl_b32 s47, s43, 7')
    A('s_add_u32 s42, s42, s47')
    A(f's_add_u32 s42, s42, {WS_FLAGS}')
    A('v_lshlrev_b32 v15, 9, v0')
    A('v_add_u32 v15, s42, v15')
    A('v_mov_b32 v16, 0')
    A('s_waitcnt lgkmcnt(0)')
    A('s_cmp_lg_u32 s3, 1')
    A('s_cbranch_scc1 L_noReset')
    A('s_mov_b64 exec, 15')
    A('global_store_dword v15, v16, s[22:23] sc1')
    A('s_mov_b64 exec, -1')
    A.label('L_noReset')
    A(f'v_add_u32 v{KBASE}, s46, v12')
    A(f'v_mov_b32 v{M0_}, 0xff800000'); A(f'v_mov_b32 v{M1_}, 0xff800000')
    A(f'v_mov_b32 v{L0_}, 0'); A(f'v_mov_b32 v{L1_}, 0')
    for i in range(128): A(f'v_mov_b32 v{O+i}, 0')
    A(f's_mov_b32 s52, {hex(f2u(CSCALE))}')
    A('s_mov_b32 s53, 0x4b800000')
    A('s_mov_b32 s54, 0xffff0000')
    A('s_mov_b32 s50, s3')
    A('s_barrier')
    A.label('L_tab')
    A('s_lshr_b32 s47, s50, 2'); A('s_lshl_b32 s47, s47, 12')
    A('s_lshl_b32 s48, s50, 10')
    A('s_add_u32 s47, s47, s48')
    A(f's_add_u32 s47, s47, {STG}')
    A('v_add_u32 v15, s47, v10')
    A('s_lshl_b32 s48, s50, 12')
    A(f's_add_u32 s48, s48, {KS_T}')
    A('ds_read_b128 v[64:67], v15')
    A('ds_read_b128 v[68:71], v15 offset:4096')
    A('v_add_u32 v13, s48, v14')
    A('s_waitcnt lgkmcnt(0)')
    sc, zr, t = 64, 68, 16
    for e in range(8):
        q, i = e >> 2, e & 3
        ds, dc = t + q*8 + i, t + q*8 + 4 + i
        if e & 1:
            A(f'v_and_b32 v{ds}, s54, v{sc + (e>>1)}'); A(f'v_and_b32 v{dc}, s54, v{zr + (e>>1)}')
        else:
            A(f'v_lshlrev_b32 v{ds}, 16, v{sc + (e>>1)}'); A(f'v_lshlrev_b32 v{dc}, 16, v{zr + (e>>1)}')
        A(f'v_mul_f32_e64 v{dc}, -v{dc}, v{ds}')
        A(f'v_mul_f32 v{ds}, s53, v{ds}')
    for k in range(4):
        A(f'ds_write_b128 v13, v[{t+4*k}:{t+4*k+3}] offset:{k*16}')
    A('s_add_u32 s50, s50, 3')
    A('s_cmp_lt_u32 s50, 8')
    A('s_cbranch_scc1 L_tab')
    for s in range(1, 8):
        A(f'v_xor_b32 v{32+s}, {2*s*16}, v11')
    A('s_waitcnt lgkmcnt(0)')
    A('s_barrier')
    for qb in range(2):
        for s in range(8):
            a = (qb*8 + s)*4
            if qb == 1 and s == 7: A('s_waitcnt lgkmcnt(8)')
            A(f'ds_read_b128 a[{a}:{a+3}], v{32+s if s else 11} offset:{qb*8192}')
    A('v_accvgpr_write_b32 a65, 1')
    A('s_mov_b32 s50, s3')
    A('s_waitcnt lgkmcnt(0)')
    A('s_cmp_eq_u32 s3, 0')
    A('s_cbranch_scc1 L_tile')
    A('s_barrier')
    A('s_cmp_eq_u32 s3, 1')
    A('s_cbranch_scc1 L_tile')
    A('s_barrier'); A('s_barrier')

    A.label('L_tile')
    A('s_lshr_b32 s51, s50, 2')
    A('s_lshl_b32 s51, s51, 10')
    KSCUR = 24
    A(f'v_add_u32 v{KSCUR}, s51, v{KSA}')
    A(f'v_mov_b32 v{KADDR}, v{KBASE}')
    for x in range(1, 8):
        s3_, e = x >> 1, x & 1
        A(f'v_xor_b32 v{KADDR+x}, {(4*s3_+e)*16}, v{KBASE}')
    def kscale_reads(s):
        b = KST[s & 1]
        for k in range(4):
            A(f'ds_read_b128 v[{b+8+4*k}:{b+8+4*k+3}], v{KSCUR} offset:{s*128 + k*16}')
    def kraw_reads(s):
        b = KST[s & 1]
        for e in range(2):
            A(f'ds_read_b128 v[{b+4*e}:{b+4*e+3}], v{KADDR + (s&3)*2 + e} offset:{(s>>2)*256}')
    kscale_reads(0)
    A('s_barrier')
    kraw_reads(0)
    for s in range(8):
        if s + 1 < 8:
            kraw_reads(s+1); kscale_reads(s+1)
            A('s_waitcnt lgkmcnt(6)')
        else:
            A('s_waitcnt lgkmcnt(0)')
        b = KST[s & 1]; f = KFRAG + (s & 1)*4
        for e in range(2):
            for i in range(4):
                A(f'v_fma_mix_f32 v{b+4*e+i}, v{b+4*e+i}, v{b+8+8*e+i}, v{b+8+8*e+4+i} op_sel_hi:[1,0,0]')
        for k in range(4):
            A(f'v_cvt_pk_bf16_f32 v{f+k}, v{b+2*k}, v{b+2*k+1}')
        A('s_nop 1')
        for qb in range(2):
            a = (qb*8 + s)*4
            c = '0' if s == 0 else vr(S + qb*16, 16)
            A(f'v_mfma_f32_32x32x16_bf16 {vr(S+qb*16,16)}, {vr(f,4)}, {ar(a,4)}, {c}')
    A('s_barrier')
    for a in range(4):
        for k in range(2):
            A(f'ds_read_b128 v[{VSC+a*8+4*k}:{VSC+a*8+4*k+3}], v{VSA} offset:{a*64 + k*16}')
    A(f'v_add_u32 v{VSA}, 768, v{VSA}')
    A('s_nop 3')
    T = [24, 25]; T2 = [26, 27]; AL = [28, 30]; Mx = [M0_, M1_]; Lx = [L0_, L1_]
    for qb in range(2):
        A(f'v_max3_f32 v{T[qb]}, v{S+qb*16}, v{S+qb*16+1}, v{S+qb*16+2}')
    for i in range(3, 15, 2):
        for qb in range(2):
            A(f'v_max3_f32 v{T[qb]}, v{T[qb]}, v{S+qb*16+i}, v{S+qb*16+i+1}')
    for qb in range(2): A(f'v_max_f32 v{T[qb]}, v{T[qb]}, v{S+qb*16+15}')
    for qb in range(2): A(f'v_mov_b32 v{T2[qb]}, v{T[qb]}')
    A('s_nop 1')
    for qb in range(2): A(f'v_permlane32_swap_b32 v{T[qb]}, v{T2[qb]}')
    for qb in range(2): A(f'v_max_f32 v{T[qb]}, v{T[qb]}, v{T2[qb]}')
    for qb in range(2): A(f'v_mul_f32 v{T[qb]}, s52, v{T[qb]}')
    for qb in range(2): A(f'v_max_f32 v{T[qb]}, v{T[qb]}, v{Mx[qb]}')
    for qb in range(2): A(f'v_sub_f32 v{AL[qb]}, v{Mx[qb]}, v{T[qb]}')
    for qb in range(2): A(f'v_exp_f32 v{AL[qb]}, v{AL[qb]}')
    for qb in range(2): A(f'v_mov_b32 v{Mx[qb]}, v{T[qb]}')
    for qb in range(2): A(f'v_mul_f32 v{Lx[qb]}, v{Lx[qb]}, v{AL[qb]}')
    for qb in range(2):
        for i in range(16): A(f'v_fma_f32 v{S+qb*16+i}, v{S+qb*16+i}, s52, -v{Mx[qb]}')
        for i in range(16): A(f'v_exp_f32 v{S+qb*16+i}, v{S+qb*16+i}')
    A('s_cmp_eq_u32 s50, 63')
    A('s_cbranch_scc1 L_skipBc')
    A('s_barrier')
    A.label('L_skipBc')
    for qb in range(2):
        for k in range(8):
            A(f'v_cvt_pk_bf16_f32 v{P+qb*8+k}, v{S+qb*16+2*k}, v{S+qb*16+2*k+1}')
        for i in range(0, 8, 2):
            A(f'v_pk_add_f32 {vr(S+qb*16+i,2)}, {vr(S+qb*16+i,2)}, {vr(S+qb*16+8+i,2)}')
        for i in range(0, 4, 2):
            A(f'v_pk_add_f32 {vr(S+qb*16+i,2)}, {vr(S+qb*16+i,2)}, {vr(S+qb*16+4+i,2)}')
        A(f'v_pk_add_f32 {vr(S+qb*16,2)}, {vr(S+qb*16,2)}, {vr(S+qb*16+2,2)}')
        A(f'v_add_f32 v{Lx[qb]}, v{Lx[qb]}, v{S+qb*16}')
        A(f'v_add_f32 v{Lx[qb]}, v{Lx[qb]}, v{S+qb*16+1}')
    for qb in range(2):
        for i in range(0, 64, 2):
            r = O + qb*64 + i
            A(f'v_pk_mul_f32 {vr(r,2)}, {vr(r,2)}, {vr(AL[qb],2)} op_sel_hi:[1,0]')
    A('s_waitcnt lgkmcnt(0)')
    A('s_barrier')
    def vread(t):
        a, b = t >> 2, t & 3
        A(f'ds_read_b128 {vr(VRAW+4*t,4)}, v{VA} offset:{(8*a+b)*512}')
    def vdeq(t):
        a, b = t >> 2, t & 3
        for j in range(4):
            r = VRAW + 4*t + j
            A(f'v_fma_mix_f32 v{r}, v{r}, v{VSC+a*8+b}, v{VSC+a*8+4+b} op_sel_hi:[1,0,0]')
    def vpack(u, j):
        f = VFRAG + (j & 1)*4
        for i in range(4):
            t = 8*u + 2*i
            A(f'v_cvt_pk_bf16_f32 v{f+i}, v{VRAW+4*t+j}, v{VRAW+4*(t+1)+j}')
    def vmfma(u, j, qb):
        f = VFRAG + (j & 1)*4
        A(f'v_mfma_f32_32x32x16_bf16 {vr(Oreg(qb,j),16)}, {vr(f,4)}, {vr(P+qb*8+u*4,4)}, {vr(Oreg(qb,j),16)}')
    for t in range(15): vread(t)
    A('s_waitcnt lgkmcnt(14)')
    vread(15)
    vdeq(0)
    for t in range(1, 8):
        A(f's_waitcnt lgkmcnt({15-t})')
        vdeq(t)
    for j in range(4):
        vpack(0, j)
        A(f's_waitcnt lgkmcnt({15-(8+2*j)})')
        vdeq(8 + 2*j)
        vmfma(0, j, 0)
        A(f's_waitcnt lgkmcnt({15-(9+2*j)})')
        vdeq(9 + 2*j)
        vmfma(0, j, 1)
    vpack(1, 0)
    for j in range(4):
        if j == 0: A('s_nop 1')
        vmfma(1, j, 0)
        if j < 3: vpack(1, j+1)
        vmfma(1, j, 1)
        if j < 3: A('s_nop 0')
    A('s_add_u32 s50, s50, 3')
    A('s_cmp_ge_u32 s50, 64')
    A('s_cbranch_scc1 L_cdone')
    A('s_barrier')
    A('s_cmp_eq_u32 s50, 3')
    A('s_cbranch_scc1 L_tile')
    A('s_barrier')
    A('s_cmp_lg_u32 s50, 61')
    A('s_cbranch_scc1 L_tile')
    A('s_lshl_b32 s47, s41, 2')
    A('v_mov_b32 v8, s47')
    A('s_waitcnt vmcnt(0)')
    A('s_mov_b64 exec, 1')
    A('global_atomic_add a64, v8, a65, s[20:21] sc0')
    A('s_mov_b64 exec, -1')
    A('s_branch L_tile')

    A.label('L_cdone')
    A('s_cmp_eq_u32 s3, 0')
    A('s_cbranch_scc1 L_dump')
    A('s_barrier')
    A('s_cmp_lg_u32 s3, 1')
    A('s_cbranch_scc1 L_dump')
    A(f'v_mov_b32 v8, {ROLE}')
    A('s_waitcnt vmcnt(0)')
    A('s_mov_b64 exec, 1')
    A('ds_write_b32 v8, a64')
    A('s_mov_b64 exec, -1')
    A.label('L_dump')
    A('v_mbcnt_lo_u32_b32 v8, -1, 0')
    A('v_mbcnt_hi_u32_b32 v8, -1, v8')
    A('v_lshlrev_b32 v9, 3, v8')
    A('s_lshl_b32 s47, s3, 10')
    A(f's_add_u32 s47, s47, {STATS}')
    A('v_add_u32 v9, s47, v9')
    A('v_lshlrev_b32 v10, 4, v8')
    A('v_add_u32 v10, s46, v10')
    for qb in range(2): A(f'v_mov_b32 v{12+qb}, v{Lx[qb]}')
    A('s_nop 1')
    for qb in range(2): A(f'v_permlane32_swap_b32 v{Lx[qb]}, v{12+qb}')
    for qb in range(2):
        A(f'v_mov_b32 v{16+2*qb}, v{Mx[qb]}')
        A(f'v_add_f32 v{17+2*qb}, v{Lx[qb]}, v{12+qb}')
    for qb in range(2):
        A(f'ds_write_b64 v9, v[{16+2*qb}:{17+2*qb}] offset:{qb*512}')
    for qb in range(2):
        for a in range(4):
            for j in range(4):
                blk = (qb*2 + (a >> 1))*8 + (a & 1)*4 + j
                A(f'ds_write_b128 v10, {vr(Oreg(qb,j)+4*a,4)} offset:{blk*1024}')
    A('s_waitcnt lgkmcnt(0)')
    A('s_cmp_lg_u32 s3, 1')
    A('s_cbranch_scc1 L_epilogue')
    A('s_barrier'); A('s_barrier')

    A.label('L_epilogue')
    A(f'v_mov_b32 v6, {ROLE}')
    A('ds_read_b32 v6, v6')
    A('v_mbcnt_lo_u32_b32 v0, -1, 0')
    A('v_mbcnt_hi_u32_b32 v0, -1, v0')
    A('s_lshr_b32 s47, s3, 1')
    A('s_lshl_b32 s47, s47, 9')
    A(f's_add_u32 s47, s47, {STATS}')
    A('v_lshlrev_b32 v5, 3, v0')
    A('v_add_u32 v1, s47, v5')
    A('s_lshl_b32 s47, s3, 13')
    A('v_lshlrev_b32 v2, 4, v0')
    A('v_add_u32 v3, s47, v2')
    A('v_add_u32 v4, 0x10000, v3')
    A('s_and_b32 s43, s40, 3')
    A('s_lshl_b32 s42, s41, 17')
    srd(A, 24, 22, 's42', 4*32768)
    A('s_lshl_b32 s42, s41, 13')
    A(f's_add_u32 s42, s42, {WS_STATS}')
    srd(A, 28, 22, 's42', 4*2048)
    A('s_lshl_b32 s48, s3, 9')
    A('s_lshl_b32 s42, s41, 11')
    A('s_add_u32 s42, s42, s48')
    A(f's_add_u32 s42, s42, {WS_FLAGS}')
    A('v_lshlrev_b32 v7, 7, v0')
    A('v_add_u32 v7, s42, v7')
    A('s_waitcnt lgkmcnt(0)')
    A('v_readfirstlane_b32 s55, v6')
    A('s_nop 1')
    A('s_cmp_lg_u32 s55, 3')
    A('s_cbranch_scc1 L_merge')
    A('s_mov_b64 exec, 15')
    A.label('L_poll')
    A('global_load_dword v6, v7, s[22:23] sc1')
    A('s_waitcnt vmcnt(0)')
    A('v_cmp_ne_u32 vcc, 0, v6')
    A('s_nop 1')
    A('s_and_b32 s56, vcc_lo, 15')
    A('s_bitset1_b32 s56, s43')
    A('s_cmp_lg_u32 s56, 15')
    A('s_cbranch_scc1 L_poll')
    A('s_mov_b64 exec, -1')
    D = 128
    for k in range(3):
        A(f's_add_u32 s56, s43, {k+1}'); A('s_and_b32 s56, s56, 3')
        A('s_lshl_b32 s57, s56, 11'); A('s_add_u32 s57, s57, s48')
        A(f'buffer_load_dwordx2 v[{224+2*k}:{225+2*k}], v5, s[28:31], s57 offen sc1')
        A('s_lshl_b32 s57, s56, 15'); A('s_add_u32 s57, s57, s47')
        for i in range(8):
            if i == 4: A('s_add_u32 s57, s57, 4096')
            A(f'buffer_load_dwordx4 {vr(D+32*k+4*i,4)}, v2, s[24:27], s57 offen offset:{(i&3)*1024} sc1')
    A.label('L_merge')
    A('s_barrier')
    for c in range(3):
        A(f'ds_read_b64 v[{8+2*c}:{9+2*c}], v1 offset:{c*1024}')
    R = 32
    def dread(c, i):
        if c < 2: A(f'ds_read_b128 {vr(R+c*32+4*i,4)}, v3 offset:{c*32768 + i*1024}')
        else: A(f'ds_read_b128 {vr(R+c*32+4*i,4)}, v4 offset:{i*1024}')
    for i in range(4):
        for c in range(3): dread(c, i)
    A('s_waitcnt lgkmcnt(12)')
    A('v_max3_f32 v14, v8, v10, v12')
    for c in range(3): A(f'v_sub_f32 v{16+2*c}, v{8+2*c}, v14')
    for c in range(3): A(f'v_exp_f32 v{16+2*c}, v{16+2*c}')
    A('s_nop 0')
    A('v_mul_f32 v15, v9, v16')
    A('v_fmac_f32 v15, v11, v18')
    A('v_fmac_f32 v15, v13, v20')
    for i in range(8):
        if i < 4:
            A(f's_waitcnt lgkmcnt(9)')
            for c in range(3): dread(c, i+4)
        else:
            A(f's_waitcnt lgkmcnt({3*(7-i)})')
        for k in range(0, 4, 2):
            r = R + 4*i + k
            A(f'v_pk_mul_f32 {vr(r,2)}, {vr(r,2)}, v[16:17] op_sel_hi:[1,0]')
            A(f'v_pk_fma_f32 {vr(r,2)}, {vr(r+32,2)}, v[18:19], {vr(r,2)} op_sel_hi:[1,0,1]')
            A(f'v_pk_fma_f32 {vr(r,2)}, {vr(r+64,2)}, v[20:21], {vr(r,2)} op_sel_hi:[1,0,1]')
    A('s_cmp_eq_u32 s55, 3')
    A('s_cbranch_scc1 L_final')
    A('s_lshl_b32 s57, s43, 15'); A('s_add_u32 s57, s57, s47')
    for i in range(8):
        if i == 4: A('s_add_u32 s57, s57, 4096')
        A(f'buffer_store_dwordx4 {vr(R+4*i,4)}, v2, s[24:27], s57 offen offset:{(i&3)*1024} sc1')
    A('s_lshl_b32 s57, s43, 11'); A('s_add_u32 s57, s57, s48')
    A('buffer_store_dwordx2 v[14:15], v5, s[28:31], s57 offen sc1')
    A('v_mov_b32 v6, 1')
    A('s_lshl_b64 s[58:59], 1, s43')
    A('s_waitcnt vmcnt(0)')
    A('s_mov_b64 exec, s[58:59]')
    A('global_store_dword v7, v6, s[22:23] sc1')
    A('s_mov_b64 exec, -1')
    A('s_branch L_fin')
    A.label('L_final')
    A('s_lshl_b32 s42, s41, 14')
    A('s_lshr_b32 s56, s3, 1'); A('s_lshl_b32 s56, s56, 13')
    A('s_add_u32 s42, s42, s56')
    srd(A, 32, 18, 's42', 8192)
    A('s_and_b32 s56, s3, 1'); A('s_lshl_b32 s56, s56, 7')
    A('v_and_b32 v4, 31, v0'); A('v_lshlrev_b32 v4, 8, v4')
    A('v_lshrrev_b32 v3, 5, v0'); A('v_lshl_or_b32 v4, v3, 5, v4')
    A('s_waitcnt vmcnt(8)')
    A('v_max3_f32 v8, v224, v226, v228'); A('v_max_f32 v8, v8, v14')
    A('v_sub_f32 v16, v14, v8')
    for k in range(3): A(f'v_sub_f32 v{18+2*k}, v{224+2*k}, v8')
    for k in range(4): A(f'v_exp_f32 v{16+2*k}, v{16+2*k}')
    A('s_nop 0')
    A('v_mul_f32 v9, v15, v16')
    for k in range(3): A(f'v_fmac_f32 v9, v{225+2*k}, v{18+2*k}')
    A('v_rcp_f32 v9, v9')
    A('s_nop 0')
    for k in range(4): A(f'v_mul_f32 v{16+2*k}, v{16+2*k}, v9')
    for aa in range(2):
        if aa == 0: A('s_waitcnt vmcnt(4)')
        else: A('s_waitcnt vmcnt(2)')
        for x in range(aa*16, aa*16+16, 2):
            A(f'v_pk_mul_f32 {vr(R+x,2)}, {vr(R+x,2)}, v[16:17] op_sel_hi:[1,0]')
            for k in range(3):
                A(f'v_pk_fma_f32 {vr(R+x,2)}, {vr(D+32*k+x,2)}, {vr(18+2*k,2)}, {vr(R+x,2)} op_sel_hi:[1,0,1]')
        for k in range(8):
            b, j = k >> 1, 2*(k & 1)
            A(f'v_cvt_pk_bf16_f32 v{64+aa*8+k}, v{R+aa*16+4*j+b}, v{R+aa*16+4*(j+1)+b}')
        A(f'buffer_store_dwordx4 {vr(64+aa*8,4)}, v4, s[32:35], s56 offen offset:{aa*64} {oflags}')
        A(f'buffer_store_dwordx4 {vr(64+aa*8+4,4)}, v4, s[32:35], s56 offen offset:{aa*64+16} {oflags}')
    A.label('L_fin')
    if stamps:
        A('s_waitcnt vmcnt(0)')
        stamp(2)
        A('s_waitcnt lgkmcnt(0)')
        A('s_cmp_lg_u32 s3, 3')
        A('s_cbranch_scc1 L_end')
        A('s_getreg_b32 s74, hwreg(HW_REG_XCC_ID)')
        A('s_lshl_b32 s55, s55, 8'); A('s_or_b32 s74, s74, s55')
        A(f's_mov_b32 s75, {7 if stamps == 2 else 3}')
        for i in range(16): A(f'v_mov_b32 v{8+i}, s{60+i}')
        A('s_lshl_b32 s42, s2, 6')
        A('s_add_u32 s42, s42, 0x10000000')
        A('v_mov_b32 v1, s42')
        A('s_mov_b64 exec, 1')
        for i in range(4): A(f'global_store_dwordx4 v1, v[{8+4*i}:{11+4*i}], s[22:23] offset:{16*i}')
    A.label('L_end')
    A('s_endpgm')

    A('.section .rodata,"a"')
    A('.p2align 6')
    A(f'.amdhsa_kernel {main}')
    for l in ['.amdhsa_next_free_vgpr 328', '.amdhsa_next_free_sgpr 96', '.amdhsa_accum_offset 256',
              '.amdhsa_group_segment_fixed_size 0', '.amdhsa_kernarg_size 80', '.amdhsa_user_sgpr_count 2',
              '.amdhsa_user_sgpr_kernarg_segment_ptr 1', '.amdhsa_system_sgpr_workgroup_id_x 1',
              '.amdhsa_float_denorm_mode_32 3', '.amdhsa_float_denorm_mode_16_64 3']:
        A.lines.append('  ' + l)
    A('.end_amdhsa_kernel')
    return A.text()

if __name__ == '__main__':
    kw = eval('dict(' + (sys.argv[2] if len(sys.argv) > 2 else '') + ')')
    t = gen(**kw)
    errs = check_hazards(t)
    for e in errs: print('HAZARD', e)
    out = sys.argv[1] if len(sys.argv) > 1 and sys.argv[1] != '-' else f'cdna_kernels/{NAME}.s'
    open(out, 'w').write(t)
    import subprocess
    r = subprocess.run(['clang', '-x', 'assembler', '-target', 'amdgcn-amd-amdhsa', '-mcpu=gfx950', '-c', out, '-o', 'chk.o'], capture_output=True, text=True)
    print('wrote', out, len(t), 'bytes', 'hazards', len(errs), 'asm rc', r.returncode, r.stderr[:1500])
```

```python
import sys, math, struct
sys.path.insert(0, 'gen')
from asmlib import *

NAME = 'standalone__kv_cache_quant_int4_int2_kv_with_per_channel_or_per_token_scales__sampling'
HEADER = open(f'cdna_kernels/{NAME}.s.ref').read().split('; Override launch geometry')[0]

SLOT = 16384
RING = 6*SLOT
KS_T = RING
VS_T = RING + 16384
QST = RING + 32768
STATS = QST + 16384
ROLE = STATS + 3072
LDS_BYTES = STATS + 4096
STG = 5*SLOT
WS_STATS = 0x800000
WS_FLAGS = 0x900000

CSCALE = (128.0 ** -0.5) * math.log2(math.e)
def f2u(x): return struct.unpack('<I', struct.pack('<f', x))[0]

KBASE, KSA, VA, VSA, M0_, M1_, L0_, L1_ = 0, 1, 2, 3, 4, 5, 6, 7
P = 8; KADDR = 8; KFRAG = 16; VFRAG = 24
VSC = 32; KST = (32, 56); VRAW = 64; S = 96; O = 128
def Oreg(qb, j): return O + (qb*4 + j)*16

def srd(A, d, base_lo, off_lo, nbytes):
    A(f's_add_u32 s{d}, s{base_lo}, {off_lo}')
    A(f's_addc_u32 s{d+1}, s{base_lo+1}, 0')
    A(f's_and_b32 s{d+1}, s{d+1}, 0xffff')
    A(f's_mov_b32 s{d+2}, {nbytes}')
    A(f's_mov_b32 s{d+3}, 0x20000')

def gen(W=16, flags='nt', stamps=0, wgmap=0, qflags='', sflags='nt', oflags='', touch=0, W0=None, diagspin=0):
    A = Asm()
    A.lines += HEADER.rstrip('\n').split('\n')
    main = NAME + '_kernel'
    A(f'; @launch grid=(256,1,1) block=(256,1,1) lds={LDS_BYTES}')
    A('.amdgcn_target "amdgcn-amd-amdhsa--gfx950"')
    A('.text')
    A(f'.globl {main}')
    A('.p2align 8')
    A(f'.type {main},@function')
    A(f'{main}:')
    def stamp(i, cond=True):
        if stamps and cond: A(f's_memrealtime s[{60+2*i}:{61+2*i}]')
    A('s_cmp_ge_u32 s2, 256')
    A('s_cbranch_scc1 L_end')
    stamp(0)
    if diagspin: A('s_memrealtime s[76:77]')
    A('s_load_dwordx16 s[4:19], s[0:1], 0')
    A('s_load_dwordx4 s[20:23], s[0:1], 64')
    A('v_lshrrev_b32 v1, 6, v0')
    A('v_and_b32 v0, 63, v0')
    A('v_readfirstlane_b32 s3, v1')
    if wgmap == 0:
        A('s_mov_b32 s40, s2')
    elif wgmap == 1:
        A('s_and_b32 s40, s2, 7'); A('s_lshl_b32 s40, s40, 2')
        A('s_lshr_b32 s41, s2, 3'); A('s_and_b32 s41, s41, 3'); A('s_or_b32 s40, s40, s41')
        A('s_and_b32 s41, s2, 0xe0'); A('s_or_b32 s40, s40, s41')
    A('s_lshr_b32 s41, s40, 2')
    A('s_cmp_lg_u32 s3, 3')
    A('s_cbranch_scc1 L_consumer')

    A('v_lshlrev_b32 v16, 4, v0')
    A('s_lshl_b32 s42, s40, 12')
    A('v_add_u32 v17, s42, v16')
    A('v_lshrrev_b32 v1, 4, v0')
    A('v_and_b32 v2, 15, v0')
    A('v_xor_b32 v2, v2, v1')
    A('v_lshlrev_b32 v2, 4, v2')
    A('v_lshl_or_b32 v2, v1, 8, v2')
    A('s_lshl_b32 s43, s41, 14')
    A('v_add_u32 v20, s43, v2')
    for jj in range(1, 4):
        A(f'v_xor_b32 v{20+jj}, {4*jj*16}, v20')
    A('v_lshrrev_b32 v1, 5, v0')
    A('v_and_b32 v2, 31, v0')
    A('v_xor_b32 v2, v2, v1')
    A('v_lshlrev_b32 v2, 4, v2')
    A('v_lshl_or_b32 v8, v1, 9, v2')
    for j in range(1, 8):
        A(f'v_xor_b32 v{8+j}, {2*j*16}, v8')
    A('s_lshl_b32 s42, s40, 20')
    A(f's_mov_b32 m0, {STG}')
    A('s_waitcnt lgkmcnt(0)')
    assert W % 4 == 0 and 4 <= W <= 28
    lag = 1 + W // 16
    bg = (W % 16) // 4
    def pre(g, idx, st=None):
        if idx*16 + g*4 > W: A(f's_waitcnt vmcnt({W})')
        if g == bg and idx >= lag:
            if st is not None: stamp(st, stamps == 2)
            A('s_barrier')
    if touch:
        srd(A, 24, 6, 's42', 1 << 20)
        srd(A, 28, 8, 's42', 1 << 20)
        A(f'buffer_load_dword v24, v16, s[24:27], 0 offen {flags}')
        A(f'buffer_load_dword v25, v16, s[28:31], 0 offen {flags}')
    for g in range(4):
        if g: A(f's_mov_b32 m0, {STG + g*4096}')
        pre(g, 0)
        if g: A('s_nop 0')
        for i in range(4):
            A(f'global_load_lds_dwordx4 v17, s[{10+2*g}:{11+2*g}] offset:{i*1024} {sflags}')
    for g in range(4):
        A(f's_mov_b32 m0, {QST + g*4096}')
        pre(g, 1)
        A('s_nop 0')
        for i in range(4):
            A(f'global_load_lds_dwordx4 v{20+i}, s[4:5] offset:{i*1024} {qflags}')
        if g < 3:
            A('s_add_u32 s4, s4, 4096'); A('s_addc_u32 s5, s5, 0')
        if g == 0 and not touch:
            srd(A, 24, 6, 's42', 1 << 20)
            srd(A, 28, 8, 's42', 1 << 20)
    def slot(kind, st=None):
        so, lb, sd = (44, 46, 's[24:27]') if kind == 'K' else (45, 47, 's[28:31]')
        for g in range(4):
            A(f's_add_u32 m0, s{lb}, {g*4096}')
            A(f's_add_u32 s48, s{so}, {g*4096}')
            pre(g, 99, st)
            for i in range(4):
                jj = g*4 + i
                vo = 8 + (jj & 7) if kind == 'K' else 16
                A(f'buffer_load_dwordx4 v{vo}, {sd}, s48 offen offset:{i*1024} {flags} lds')
        A(f's_add_u32 s{so}, s{so}, {SLOT}')
        A(f's_add_u32 s{lb}, s{lb}, {2*SLOT}')
        A(f's_cmp_ge_u32 s{lb}, {RING}')
        A(f's_cselect_b32 s49, {RING}, 0')
        A(f's_sub_u32 s{lb}, s{lb}, s49')
    A('s_mov_b32 s44, 0'); A('s_mov_b32 s45, 0'); A('s_mov_b32 s46, 0'); A(f's_mov_b32 s47, {SLOT}')
    slot('K', 3)
    npeel = 0
    if stamps == 2:
        slot('K', 4); slot('V', 5); slot('K', 6); slot('V'); npeel = 2
    A(f's_mov_b32 s50, {63-npeel}')
    A.label('L_ld_loop')
    slot('K')
    slot('V')
    A('s_sub_u32 s50, s50, 1')
    A('s_cmp_lg_u32 s50, 0')
    A('s_cbranch_scc1 L_ld_loop')
    slot('V')
    if lag == 2:
        A('s_waitcnt vmcnt(16)'); A('s_barrier')
    A('s_waitcnt vmcnt(0)')
    if stamps: stamp(1); A('s_waitcnt lgkmcnt(0)')
    A('s_barrier')
    A('s_branch L_epilogue')

    A.label('L_consumer')
    A('v_and_b32 v8, 31, v0')
    A('v_lshrrev_b32 v9, 5, v0')
    A('v_lshlrev_b32 v10, 4, v0')
    A('v_lshlrev_b32 v14, 6, v0')
    A('s_lshl_b32 s46, s3, 15')
    A('v_and_b32 v12, 15, v8')
    A('v_xor_b32 v11, v12, v9')
    A('v_lshlrev_b32 v11, 4, v11')
    A('v_lshl_or_b32 v11, v8, 8, v11')
    A(f'v_add_u32 v11, {QST}, v11')
    A('v_lshlrev_b32 v13, 1, v9')
    A('v_xor_b32 v12, v12, v13')
    A('v_lshlrev_b32 v12, 4, v12')
    A('v_lshl_or_b32 v12, v8, 9, v12')
    A(f'v_lshlrev_b32 v{KSA}, 6, v9')
    A(f'v_add_u32 v{KSA}, {KS_T}, v{KSA}')
    A(f'v_lshlrev_b32 v{VA}, 4, v8')
    A(f'v_lshl_or_b32 v{VA}, v9, 11, v{VA}')
    A(f's_add_u32 s47, s46, {SLOT}')
    A(f'v_add_u32 v{VA}, s47, v{VA}')
    A(f'v_lshlrev_b32 v{VSA}, 5, v9')
    A(f's_lshl_b32 s47, s3, 8')
    A(f's_add_u32 s47, s47, {VS_T}')
    A(f'v_add_u32 v{VSA}, s47, v{VSA}')
    A('s_and_b32 s43, s40, 3')
    A('s_lshl_b32 s42, s41, 11')
    A('s_lshl_b32 s47, s43, 7')
    A('s_add_u32 s42, s42, s47')
    A(f's_add_u32 s42, s42, {WS_FLAGS}')
    A('v_lshlrev_b32 v15, 9, v0')
    A('v_add_u32 v15, s42, v15')
    A('v_mov_b32 v16, 0')
    A('s_waitcnt lgkmcnt(0)')
    A('s_cmp_lg_u32 s3, 1')
    A('s_cbranch_scc1 L_noReset')
    A('s_mov_b64 exec, 15')
    A('global_store_dword v15, v16, s[22:23] sc1')
    A('s_mov_b64 exec, -1')
    A.label('L_noReset')
    A(f'v_add_u32 v{KBASE}, s46, v12')
    A(f'v_mov_b32 v{M0_}, 0xff800000'); A(f'v_mov_b32 v{M1_}, 0xff800000')
    A(f'v_mov_b32 v{L0_}, 0'); A(f'v_mov_b32 v{L1_}, 0')
    for i in range(128): A(f'v_mov_b32 v{O+i}, 0')
    A(f's_mov_b32 s52, {hex(f2u(CSCALE))}')
    A('s_mov_b32 s53, 0x4b800000')
    A('s_mov_b32 s54, 0xffff0000')
    A('s_mov_b32 s50, s3')
    A('s_barrier')
    A.label('L_tab')
    A('s_lshr_b32 s47, s50, 2'); A('s_lshl_b32 s47, s47, 12')
    A('s_lshl_b32 s48, s50, 10')
    A('s_add_u32 s47, s47, s48')
    A(f's_add_u32 s47, s47, {STG}')
    A('v_add_u32 v15, s47, v10')
    A('s_lshl_b32 s48, s50, 12')
    A(f's_add_u32 s48, s48, {KS_T}')
    A('ds_read_b128 v[64:67], v15')
    A('ds_read_b128 v[68:71], v15 offset:4096')
    A('v_add_u32 v13, s48, v14')
    A('s_waitcnt lgkmcnt(0)')
    sc, zr, t = 64, 68, 16
    for e in range(8):
        q, i = e >> 2, e & 3
        ds, dc = t + q*8 + i, t + q*8 + 4 + i
        if e & 1:
            A(f'v_and_b32 v{ds}, s54, v{sc + (e>>1)}'); A(f'v_and_b32 v{dc}, s54, v{zr + (e>>1)}')
        else:
            A(f'v_lshlrev_b32 v{ds}, 16, v{sc + (e>>1)}'); A(f'v_lshlrev_b32 v{dc}, 16, v{zr + (e>>1)}')
        A(f'v_mul_f32_e64 v{dc}, -v{dc}, v{ds}')
        A(f'v_mul_f32 v{ds}, s53, v{ds}')
    for k in range(4):
        A(f'ds_write_b128 v13, v[{t+4*k}:{t+4*k+3}] offset:{k*16}')
    A('s_add_u32 s50, s50, 3')
    A('s_cmp_lt_u32 s50, 8')
    A('s_cbranch_scc1 L_tab')
    for s in range(1, 8):
        A(f'v_xor_b32 v{32+s}, {2*s*16}, v11')
    A('s_waitcnt lgkmcnt(0)')
    A('s_barrier')
    for qb in range(2):
        for s in range(8):
            a = (qb*8 + s)*4
            if qb == 1 and s == 7: A('s_waitcnt lgkmcnt(8)')
            A(f'ds_read_b128 a[{a}:{a+3}], v{32+s if s else 11} offset:{qb*8192}')
    A('v_accvgpr_write_b32 a65, 1')
    A('s_mov_b32 s50, s3')
    A('s_waitcnt lgkmcnt(0)')
    A('s_cmp_eq_u32 s3, 0')
    A('s_cbranch_scc1 L_tile')
    A('s_barrier')
    A('s_cmp_eq_u32 s3, 1')
    A('s_cbranch_scc1 L_tile')
    A('s_barrier'); A('s_barrier')

    A.label('L_tile')
    A('s_lshr_b32 s51, s50, 2')
    A('s_lshl_b32 s51, s51, 10')
    KSCUR = 24
    A(f'v_add_u32 v{KSCUR}, s51, v{KSA}')
    A(f'v_mov_b32 v{KADDR}, v{KBASE}')
    for x in range(1, 8):
        s3_, e = x >> 1, x & 1
        A(f'v_xor_b32 v{KADDR+x}, {(4*s3_+e)*16}, v{KBASE}')
    def kscale_reads(s):
        b = KST[s & 1]
        for k in range(4):
            A(f'ds_read_b128 v[{b+8+4*k}:{b+8+4*k+3}], v{KSCUR} offset:{s*128 + k*16}')
    def kraw_reads(s):
        b = KST[s & 1]
        for e in range(2):
            A(f'ds_read_b128 v[{b+4*e}:{b+4*e+3}], v{KADDR + (s&3)*2 + e} offset:{(s>>2)*256}')
    kscale_reads(0)
    A('s_barrier')
    kraw_reads(0)
    for s in range(8):
        if s + 1 < 8:
            kraw_reads(s+1); kscale_reads(s+1)
            A('s_waitcnt lgkmcnt(6)')
        else:
            A('s_waitcnt lgkmcnt(0)')
        b = KST[s & 1]; f = KFRAG + (s & 1)*4
        for e in range(2):
            for i in range(4):
                A(f'v_fma_mix_f32 v{b+4*e+i}, v{b+4*e+i}, v{b+8+8*e+i}, v{b+8+8*e+4+i} op_sel_hi:[1,0,0]')
        for k in range(4):
            A(f'v_cvt_pk_bf16_f32 v{f+k}, v{b+2*k}, v{b+2*k+1}')
        A('s_nop 1')
        for qb in range(2):
            a = (qb*8 + s)*4
            c = '0' if s == 0 else vr(S + qb*16, 16)
            A(f'v_mfma_f32_32x32x16_bf16 {vr(S+qb*16,16)}, {vr(f,4)}, {ar(a,4)}, {c}')
    A('s_barrier')
    for a in range(4):
        for k in range(2):
            A(f'ds_read_b128 v[{VSC+a*8+4*k}:{VSC+a*8+4*k+3}], v{VSA} offset:{a*64 + k*16}')
    A(f'v_add_u32 v{VSA}, 768, v{VSA}')
    A('s_nop 3')
    T = [24, 25]; T2 = [26, 27]; AL = [28, 30]; Mx = [M0_, M1_]; Lx = [L0_, L1_]
    for qb in range(2):
        A(f'v_max3_f32 v{T[qb]}, v{S+qb*16}, v{S+qb*16+1}, v{S+qb*16+2}')
    for i in range(3, 15, 2):
        for qb in range(2):
            A(f'v_max3_f32 v{T[qb]}, v{T[qb]}, v{S+qb*16+i}, v{S+qb*16+i+1}')
    for qb in range(2): A(f'v_max_f32 v{T[qb]}, v{T[qb]}, v{S+qb*16+15}')
    for qb in range(2): A(f'v_mov_b32 v{T2[qb]}, v{T[qb]}')
    A('s_nop 1')
    for qb in range(2): A(f'v_permlane32_swap_b32 v{T[qb]}, v{T2[qb]}')
    for qb in range(2): A(f'v_max_f32 v{T[qb]}, v{T[qb]}, v{T2[qb]}')
    for qb in range(2): A(f'v_mul_f32 v{T[qb]}, s52, v{T[qb]}')
    for qb in range(2): A(f'v_max_f32 v{T[qb]}, v{T[qb]}, v{Mx[qb]}')
    for qb in range(2): A(f'v_sub_f32 v{AL[qb]}, v{Mx[qb]}, v{T[qb]}')
    for qb in range(2): A(f'v_exp_f32 v{AL[qb]}, v{AL[qb]}')
    for qb in range(2): A(f'v_mov_b32 v{Mx[qb]}, v{T[qb]}')
    for qb in range(2): A(f'v_mul_f32 v{Lx[qb]}, v{Lx[qb]}, v{AL[qb]}')
    for qb in range(2):
        for i in range(16): A(f'v_fma_f32 v{S+qb*16+i}, v{S+qb*16+i}, s52, -v{Mx[qb]}')
        for i in range(16): A(f'v_exp_f32 v{S+qb*16+i}, v{S+qb*16+i}')
    A('s_cmp_eq_u32 s50, 63')
    A('s_cbranch_scc1 L_skipBc')
    A('s_barrier')
    A.label('L_skipBc')
    for qb in range(2):
        for k in range(8):
            A(f'v_cvt_pk_bf16_f32 v{P+qb*8+k}, v{S+qb*16+2*k}, v{S+qb*16+2*k+1}')
        for i in range(0, 8, 2):
            A(f'v_pk_add_f32 {vr(S+qb*16+i,2)}, {vr(S+qb*16+i,2)}, {vr(S+qb*16+8+i,2)}')
        for i in range(0, 4, 2):
            A(f'v_pk_add_f32 {vr(S+qb*16+i,2)}, {vr(S+qb*16+i,2)}, {vr(S+qb*16+4+i,2)}')
        A(f'v_pk_add_f32 {vr(S+qb*16,2)}, {vr(S+qb*16,2)}, {vr(S+qb*16+2,2)}')
        A(f'v_add_f32 v{Lx[qb]}, v{Lx[qb]}, v{S+qb*16}')
        A(f'v_add_f32 v{Lx[qb]}, v{Lx[qb]}, v{S+qb*16+1}')
    for qb in range(2):
        for i in range(0, 64, 2):
            r = O + qb*64 + i
            A(f'v_pk_mul_f32 {vr(r,2)}, {vr(r,2)}, {vr(AL[qb],2)} op_sel_hi:[1,0]')
    A('s_waitcnt lgkmcnt(0)')
    A('s_barrier')
    def vread(t):
        a, b = t >> 2, t & 3
        A(f'ds_read_b128 {vr(VRAW+4*t,4)}, v{VA} offset:{(8*a+b)*512}')
    def vdeq(t):
        a, b = t >> 2, t & 3
        for j in range(4):
            r = VRAW + 4*t + j
            A(f'v_fma_mix_f32 v{r}, v{r}, v{VSC+a*8+b}, v{VSC+a*8+4+b} op_sel_hi:[1,0,0]')
    def vpack(u, j):
        f = VFRAG + (j & 1)*4
        for i in range(4):
            t = 8*u + 2*i
            A(f'v_cvt_pk_bf16_f32 v{f+i}, v{VRAW+4*t+j}, v{VRAW+4*(t+1)+j}')
    def vmfma(u, j, qb):
        f = VFRAG + (j & 1)*4
        A(f'v_mfma_f32_32x32x16_bf16 {vr(Oreg(qb,j),16)}, {vr(f,4)}, {vr(P+qb*8+u*4,4)}, {vr(Oreg(qb,j),16)}')
    for t in range(15): vread(t)
    A('s_waitcnt lgkmcnt(14)')
    vread(15)
    vdeq(0)
    for t in range(1, 8):
        A(f's_waitcnt lgkmcnt({15-t})')
        vdeq(t)
    for j in range(4):
        vpack(0, j)
        A(f's_waitcnt lgkmcnt({15-(8+2*j)})')
        vdeq(8 + 2*j)
        vmfma(0, j, 0)
        A(f's_waitcnt lgkmcnt({15-(9+2*j)})')
        vdeq(9 + 2*j)
        vmfma(0, j, 1)
    vpack(1, 0)
    for j in range(4):
        if j == 0: A('s_nop 1')
        vmfma(1, j, 0)
        if j < 3: vpack(1, j+1)
        vmfma(1, j, 1)
        if j < 3: A('s_nop 0')
    A('s_add_u32 s50, s50, 3')
    A('s_cmp_ge_u32 s50, 64')
    A('s_cbranch_scc1 L_cdone')
    A('s_barrier')
    A('s_cmp_eq_u32 s50, 3')
    A('s_cbranch_scc1 L_tile')
    A('s_barrier')
    A('s_cmp_lg_u32 s50, 61')
    A('s_cbranch_scc1 L_tile')
    A('s_lshl_b32 s47, s41, 2')
    A('v_mov_b32 v8, s47')
    A('s_waitcnt vmcnt(0)')
    A('s_mov_b64 exec, 1')
    A('global_atomic_add a64, v8, a65, s[20:21] sc0')
    A('s_mov_b64 exec, -1')
    A('s_branch L_tile')

    A.label('L_cdone')
    A('s_cmp_eq_u32 s3, 0')
    A('s_cbranch_scc1 L_dump')
    A('s_barrier')
    A('s_cmp_lg_u32 s3, 1')
    A('s_cbranch_scc1 L_dump')
    A(f'v_mov_b32 v8, {ROLE}')
    A('s_waitcnt vmcnt(0)')
    A('s_mov_b64 exec, 1')
    A('ds_write_b32 v8, a64')
    A('s_mov_b64 exec, -1')
    A.label('L_dump')
    A('v_mbcnt_lo_u32_b32 v8, -1, 0')
    A('v_mbcnt_hi_u32_b32 v8, -1, v8')
    A('v_lshlrev_b32 v9, 3, v8')
    A('s_lshl_b32 s47, s3, 10')
    A(f's_add_u32 s47, s47, {STATS}')
    A('v_add_u32 v9, s47, v9')
    A('v_lshlrev_b32 v10, 4, v8')
    A('v_add_u32 v10, s46, v10')
    for qb in range(2): A(f'v_mov_b32 v{12+qb}, v{Lx[qb]}')
    A('s_nop 1')
    for qb in range(2): A(f'v_permlane32_swap_b32 v{Lx[qb]}, v{12+qb}')
    for qb in range(2):
        A(f'v_mov_b32 v{16+2*qb}, v{Mx[qb]}')
        A(f'v_add_f32 v{17+2*qb}, v{Lx[qb]}, v{12+qb}')
    for qb in range(2):
        A(f'ds_write_b64 v9, v[{16+2*qb}:{17+2*qb}] offset:{qb*512}')
    for qb in range(2):
        for a in range(4):
            for j in range(4):
                blk = (qb*2 + (a >> 1))*8 + (a & 1)*4 + j
                A(f'ds_write_b128 v10, {vr(Oreg(qb,j)+4*a,4)} offset:{blk*1024}')
    A('s_waitcnt lgkmcnt(0)')
    A('s_cmp_lg_u32 s3, 1')
    A('s_cbranch_scc1 L_epilogue')
    A('s_barrier'); A('s_barrier')

    A.label('L_epilogue')
    A(f'v_mov_b32 v6, {ROLE}')
    A('ds_read_b32 v6, v6')
    A('v_mbcnt_lo_u32_b32 v0, -1, 0')
    A('v_mbcnt_hi_u32_b32 v0, -1, v0')
    A('s_lshr_b32 s47, s3, 1')
    A('s_lshl_b32 s47, s47, 9')
    A(f's_add_u32 s47, s47, {STATS}')
    A('v_lshlrev_b32 v5, 3, v0')
    A('v_add_u32 v1, s47, v5')
    A('s_lshl_b32 s47, s3, 13')
    A('v_lshlrev_b32 v2, 4, v0')
    A('v_add_u32 v3, s47, v2')
    A('v_add_u32 v4, 0x10000, v3')
    A('s_and_b32 s43, s40, 3')
    A('s_lshl_b32 s42, s41, 17')
    srd(A, 24, 22, 's42', 4*32768)
    A('s_lshl_b32 s42, s41, 13')
    A(f's_add_u32 s42, s42, {WS_STATS}')
    srd(A, 28, 22, 's42', 4*2048)
    A('s_lshl_b32 s48, s3, 9')
    A('s_lshl_b32 s42, s41, 11')
    A('s_add_u32 s42, s42, s48')
    A(f's_add_u32 s42, s42, {WS_FLAGS}')
    A('v_lshlrev_b32 v7, 7, v0')
    A('v_add_u32 v7, s42, v7')
    A('s_waitcnt lgkmcnt(0)')
    A('v_readfirstlane_b32 s55, v6')
    A('s_nop 1')
    A('s_cmp_lg_u32 s55, 3')
    A('s_cbranch_scc1 L_merge')
    A('s_mov_b64 exec, 15')
    A.label('L_poll')
    A('global_load_dword v6, v7, s[22:23] sc1')
    A('s_waitcnt vmcnt(0)')
    A('v_cmp_ne_u32 vcc, 0, v6')
    A('s_nop 1')
    A('s_and_b32 s56, vcc_lo, 15')
    A('s_bitset1_b32 s56, s43')
    A('s_cmp_lg_u32 s56, 15')
    A('s_cbranch_scc1 L_poll')
    A('s_mov_b64 exec, -1')
    D = 128
    for k in range(3):
        A(f's_add_u32 s56, s43, {k+1}'); A('s_and_b32 s56, s56, 3')
        A('s_lshl_b32 s57, s56, 11'); A('s_add_u32 s57, s57, s48')
        A(f'buffer_load_dwordx2 v[{224+2*k}:{225+2*k}], v5, s[28:31], s57 offen sc1')
        A('s_lshl_b32 s57, s56, 15'); A('s_add_u32 s57, s57, s47')
        for i in range(8):
            if i == 4: A('s_add_u32 s57, s57, 4096')
            A(f'buffer_load_dwordx4 {vr(D+32*k+4*i,4)}, v2, s[24:27], s57 offen offset:{(i&3)*1024} sc1')
    A.label('L_merge')
    A('s_barrier')
    for c in range(3):
        A(f'ds_read_b64 v[{8+2*c}:{9+2*c}], v1 offset:{c*1024}')
    R = 32
    def dread(c, i):
        if c < 2: A(f'ds_read_b128 {vr(R+c*32+4*i,4)}, v3 offset:{c*32768 + i*1024}')
        else: A(f'ds_read_b128 {vr(R+c*32+4*i,4)}, v4 offset:{i*1024}')
    for i in range(4):
        for c in range(3): dread(c, i)
    A('s_waitcnt lgkmcnt(12)')
    A('v_max3_f32 v14, v8, v10, v12')
    for c in range(3): A(f'v_sub_f32 v{16+2*c}, v{8+2*c}, v14')
    for c in range(3): A(f'v_exp_f32 v{16+2*c}, v{16+2*c}')
    A('s_nop 0')
    A('v_mul_f32 v15, v9, v16')
    A('v_fmac_f32 v15, v11, v18')
    A('v_fmac_f32 v15, v13, v20')
    for i in range(8):
        if i < 4:
            A(f's_waitcnt lgkmcnt(9)')
            for c in range(3): dread(c, i+4)
        else:
            A(f's_waitcnt lgkmcnt({3*(7-i)})')
        for k in range(0, 4, 2):
            r = R + 4*i + k
            A(f'v_pk_mul_f32 {vr(r,2)}, {vr(r,2)}, v[16:17] op_sel_hi:[1,0]')
            A(f'v_pk_fma_f32 {vr(r,2)}, {vr(r+32,2)}, v[18:19], {vr(r,2)} op_sel_hi:[1,0,1]')
            A(f'v_pk_fma_f32 {vr(r,2)}, {vr(r+64,2)}, v[20:21], {vr(r,2)} op_sel_hi:[1,0,1]')
    A('s_cmp_eq_u32 s55, 3')
    A('s_cbranch_scc1 L_final')
    A('s_lshl_b32 s57, s43, 15'); A('s_add_u32 s57, s57, s47')
    for i in range(8):
        if i == 4: A('s_add_u32 s57, s57, 4096')
        A(f'buffer_store_dwordx4 {vr(R+4*i,4)}, v2, s[24:27], s57 offen offset:{(i&3)*1024} sc1')
    A('s_lshl_b32 s57, s43, 11'); A('s_add_u32 s57, s57, s48')
    A('buffer_store_dwordx2 v[14:15], v5, s[28:31], s57 offen sc1')
    A('v_mov_b32 v6, 1')
    A('s_lshl_b64 s[58:59], 1, s43')
    A('s_waitcnt vmcnt(0)')
    A('s_mov_b64 exec, s[58:59]')
    A('global_store_dword v7, v6, s[22:23] sc1')
    A('s_mov_b64 exec, -1')
    A('s_branch L_fin')
    A.label('L_final')
    A('s_lshl_b32 s42, s41, 14')
    A('s_lshr_b32 s56, s3, 1'); A('s_lshl_b32 s56, s56, 13')
    A('s_add_u32 s42, s42, s56')
    srd(A, 32, 18, 's42', 8192)
    A('s_and_b32 s56, s3, 1'); A('s_lshl_b32 s56, s56, 7')
    A('v_and_b32 v4, 31, v0'); A('v_lshlrev_b32 v4, 8, v4')
    A('v_lshrrev_b32 v3, 5, v0'); A('v_lshl_or_b32 v4, v3, 5, v4')
    A('s_waitcnt vmcnt(8)')
    A('v_max3_f32 v8, v224, v226, v228'); A('v_max_f32 v8, v8, v14')
    A('v_sub_f32 v16, v14, v8')
    for k in range(3): A(f'v_sub_f32 v{18+2*k}, v{224+2*k}, v8')
    for k in range(4): A(f'v_exp_f32 v{16+2*k}, v{16+2*k}')
    A('s_nop 0')
    A('v_mul_f32 v9, v15, v16')
    for k in range(3): A(f'v_fmac_f32 v9, v{225+2*k}, v{18+2*k}')
    A('v_rcp_f32 v9, v9')
    A('s_nop 0')
    for k in range(4): A(f'v_mul_f32 v{16+2*k}, v{16+2*k}, v9')
    for aa in range(2):
        if aa == 0: A('s_waitcnt vmcnt(4)')
        else: A('s_waitcnt vmcnt(2)')
        for x in range(aa*16, aa*16+16, 2):
            A(f'v_pk_mul_f32 {vr(R+x,2)}, {vr(R+x,2)}, v[16:17] op_sel_hi:[1,0]')
            for k in range(3):
                A(f'v_pk_fma_f32 {vr(R+x,2)}, {vr(D+32*k+x,2)}, {vr(18+2*k,2)}, {vr(R+x,2)} op_sel_hi:[1,0,1]')
        for k in range(8):
            b, j = k >> 1, 2*(k & 1)
            A(f'v_cvt_pk_bf16_f32 v{64+aa*8+k}, v{R+aa*16+4*j+b}, v{R+aa*16+4*(j+1)+b}')
        A(f'buffer_store_dwordx4 {vr(64+aa*8,4)}, v4, s[32:35], s56 offen offset:{aa*64} {oflags}')
        A(f'buffer_store_dwordx4 {vr(64+aa*8+4,4)}, v4, s[32:35], s56 offen offset:{aa*64+16} {oflags}')
    A.label('L_fin')
    if diagspin:
        A.label('L_spin')
        A('s_memrealtime s[78:79]')
        A('s_waitcnt lgkmcnt(0)')
        A('s_sub_u32 s80, s78, s76')
        A(f's_cmp_lt_u32 s80, {diagspin}')
        A('s_cbranch_scc1 L_spin')
    if stamps:
        A('s_waitcnt vmcnt(0)')
        stamp(2)
        A('s_waitcnt lgkmcnt(0)')
        A('s_cmp_lg_u32 s3, 3')
        A('s_cbranch_scc1 L_end')
        A('s_getreg_b32 s74, hwreg(HW_REG_XCC_ID)')
        A('s_lshl_b32 s55, s55, 8'); A('s_or_b32 s74, s74, s55')
        A(f's_mov_b32 s75, {7 if stamps == 2 else 3}')
        for i in range(16): A(f'v_mov_b32 v{8+i}, s{60+i}')
        A('s_lshl_b32 s42, s2, 6')
        A('s_add_u32 s42, s42, 0x10000000')
        A('v_mov_b32 v1, s42')
        A('s_mov_b64 exec, 1')
        for i in range(4): A(f'global_store_dwordx4 v1, v[{8+4*i}:{11+4*i}], s[22:23] offset:{16*i}')
    A.label('L_end')
    A('s_endpgm')

    A('.section .rodata,"a"')
    A('.p2align 6')
    A(f'.amdhsa_kernel {main}')
    for l in ['.amdhsa_next_free_vgpr 328', '.amdhsa_next_free_sgpr 96', '.amdhsa_accum_offset 256',
              '.amdhsa_group_segment_fixed_size 0', '.amdhsa_kernarg_size 80', '.amdhsa_user_sgpr_count 2',
              '.amdhsa_user_sgpr_kernarg_segment_ptr 1', '.amdhsa_system_sgpr_workgroup_id_x 1',
              '.amdhsa_float_denorm_mode_32 3', '.amdhsa_float_denorm_mode_16_64 3']:
        A.lines.append('  ' + l)
    A('.end_amdhsa_kernel')
    return A.text()

if __name__ == '__main__':
    kw = eval('dict(' + (sys.argv[2] if len(sys.argv) > 2 else '') + ')')
    t = gen(**kw)
    errs = check_hazards(t)
    for e in errs: print('HAZARD', e)
    out = sys.argv[1] if len(sys.argv) > 1 and sys.argv[1] != '-' else f'cdna_kernels/{NAME}.s'
    open(out, 'w').write(t)
    import subprocess
    r = subprocess.run(['clang', '-x', 'assembler', '-target', 'amdgcn-amd-amdhsa', '-mcpu=gfx950', '-c', out, '-o', 'chk.o'], capture_output=True, text=True)
    print('wrote', out, len(t), 'bytes', 'hazards', len(errs), 'asm rc', r.returncode, r.stderr[:1500])
```

```python
import sys, math, struct
sys.path.insert(0, 'gen')
from asmlib import *

NAME = 'standalone__kv_cache_quant_int4_int2_kv_with_per_channel_or_per_token_scales__sampling'
HEADER = open(f'cdna_kernels/{NAME}.s.ref').read().split('; Override launch geometry')[0]

SLOT = 16384
RING = 6*SLOT
KS_T = RING
VS_T = RING + 16384
QST = RING + 32768
STATS = QST + 16384
ROLE = STATS + 3072
LDS_BYTES = STATS + 4096
STG = 5*SLOT
WS_STATS = 0x800000
WS_FLAGS = 0x900000

CSCALE = (128.0 ** -0.5) * math.log2(math.e)
def f2u(x): return struct.unpack('<I', struct.pack('<f', x))[0]

KBASE, KSA, VA, VSA, M0_, M1_, L0_, L1_ = 0, 1, 2, 3, 4, 5, 6, 7
P = 8; KADDR = 8; KFRAG = 16; VFRAG = 24
VSC = 32; KST = (32, 56); VRAW = 64; S = 96; O = 128
def Oreg(qb, j): return O + (qb*4 + j)*16

def srd(A, d, base_lo, off_lo, nbytes):
    A(f's_add_u32 s{d}, s{base_lo}, {off_lo}')
    A(f's_addc_u32 s{d+1}, s{base_lo+1}, 0')
    A(f's_and_b32 s{d+1}, s{d+1}, 0xffff')
    A(f's_mov_b32 s{d+2}, {nbytes}')
    A(f's_mov_b32 s{d+3}, 0x20000')

def gen(W=16, flags='nt', stamps=0, wgmap=0, qflags='', sflags='nt', oflags='', touch=0, W0=None, diagspin=0, diag=''):
    A = Asm()
    A.lines += HEADER.rstrip('\n').split('\n')
    main = NAME + '_kernel'
    A(f'; @launch grid=(256,1,1) block=(256,1,1) lds={LDS_BYTES}')
    A('.amdgcn_target "amdgcn-amd-amdhsa--gfx950"')
    A('.text')
    A(f'.globl {main}')
    A('.p2align 8')
    A(f'.type {main},@function')
    A(f'{main}:')
    def stamp(i, cond=True):
        if stamps and cond: A(f's_memrealtime s[{60+2*i}:{61+2*i}]')
    A('s_cmp_ge_u32 s2, 256')
    A('s_cbranch_scc1 L_end')
    stamp(0)
    if diagspin or diag: A('s_memrealtime s[76:77]')
    A('s_load_dwordx16 s[4:19], s[0:1], 0')
    A('s_load_dwordx4 s[20:23], s[0:1], 64')
    A('v_lshrrev_b32 v1, 6, v0')
    A('v_and_b32 v0, 63, v0')
    A('v_readfirstlane_b32 s3, v1')
    if wgmap == 0:
        A('s_mov_b32 s40, s2')
    elif wgmap == 1:
        A('s_and_b32 s40, s2, 7'); A('s_lshl_b32 s40, s40, 2')
        A('s_lshr_b32 s41, s2, 3'); A('s_and_b32 s41, s41, 3'); A('s_or_b32 s40, s40, s41')
        A('s_and_b32 s41, s2, 0xe0'); A('s_or_b32 s40, s40, s41')
    A('s_lshr_b32 s41, s40, 2')
    A('s_cmp_lg_u32 s3, 3')
    A('s_cbranch_scc1 L_consumer')

    A('v_lshlrev_b32 v16, 4, v0')
    A('s_lshl_b32 s42, s40, 12')
    A('v_add_u32 v17, s42, v16')
    A('v_lshrrev_b32 v1, 4, v0')
    A('v_and_b32 v2, 15, v0')
    A('v_xor_b32 v2, v2, v1')
    A('v_lshlrev_b32 v2, 4, v2')
    A('v_lshl_or_b32 v2, v1, 8, v2')
    A('s_lshl_b32 s43, s41, 14')
    A('v_add_u32 v20, s43, v2')
    for jj in range(1, 4):
        A(f'v_xor_b32 v{20+jj}, {4*jj*16}, v20')
    A('v_lshrrev_b32 v1, 5, v0')
    A('v_and_b32 v2, 31, v0')
    A('v_xor_b32 v2, v2, v1')
    A('v_lshlrev_b32 v2, 4, v2')
    A('v_lshl_or_b32 v8, v1, 9, v2')
    for j in range(1, 8):
        A(f'v_xor_b32 v{8+j}, {2*j*16}, v8')
    A('s_lshl_b32 s42, s40, 20')
    A(f's_mov_b32 m0, {STG}')
    A('s_waitcnt lgkmcnt(0)')
    assert W % 4 == 0 and 4 <= W <= 28
    lag = 1 + W // 16
    bg = (W % 16) // 4
    def pre(g, idx, st=None):
        if idx*16 + g*4 > W: A(f's_waitcnt vmcnt({W})')
        if g == bg and idx >= lag:
            if st is not None: stamp(st, stamps == 2)
            A('s_barrier')
    if touch:
        srd(A, 24, 6, 's42', 1 << 20)
        srd(A, 28, 8, 's42', 1 << 20)
        A(f'buffer_load_dword v24, v16, s[24:27], 0 offen {flags}')
        A(f'buffer_load_dword v25, v16, s[28:31], 0 offen {flags}')
    for g in range(4):
        if g: A(f's_mov_b32 m0, {STG + g*4096}')
        pre(g, 0)
        if g: A('s_nop 0')
        for i in range(4):
            A(f'global_load_lds_dwordx4 v17, s[{10+2*g}:{11+2*g}] offset:{i*1024} {sflags}')
    for g in range(4):
        A(f's_mov_b32 m0, {QST + g*4096}')
        pre(g, 1)
        A('s_nop 0')
        for i in range(4):
            A(f'global_load_lds_dwordx4 v{20+i}, s[4:5] offset:{i*1024} {qflags}')
        if g < 3:
            A('s_add_u32 s4, s4, 4096'); A('s_addc_u32 s5, s5, 0')
        if g == 0 and not touch:
            srd(A, 24, 6, 's42', 1 << 20)
            srd(A, 28, 8, 's42', 1 << 20)
    def slot(kind, st=None):
        so, lb, sd = (44, 46, 's[24:27]') if kind == 'K' else (45, 47, 's[28:31]')
        for g in range(4):
            A(f's_add_u32 m0, s{lb}, {g*4096}')
            A(f's_add_u32 s48, s{so}, {g*4096}')
            pre(g, 99, st)
            for i in range(4):
                jj = g*4 + i
                vo = 8 + (jj & 7) if kind == 'K' else 16
                A(f'buffer_load_dwordx4 v{vo}, {sd}, s48 offen offset:{i*1024} {flags} lds')
        A(f's_add_u32 s{so}, s{so}, {SLOT}')
        A(f's_add_u32 s{lb}, s{lb}, {2*SLOT}')
        A(f's_cmp_ge_u32 s{lb}, {RING}')
        A(f's_cselect_b32 s49, {RING}, 0')
        A(f's_sub_u32 s{lb}, s{lb}, s49')
    A('s_mov_b32 s44, 0'); A('s_mov_b32 s45, 0'); A('s_mov_b32 s46, 0'); A(f's_mov_b32 s47, {SLOT}')
    slot('K', 3)
    npeel = 0
    if stamps == 2:
        slot('K', 4); slot('V', 5); slot('K', 6); slot('V'); npeel = 2
    A(f's_mov_b32 s50, {63-npeel}')
    A.label('L_ld_loop')
    slot('K')
    slot('V')
    A('s_sub_u32 s50, s50, 1')
    A('s_cmp_lg_u32 s50, 0')
    A('s_cbranch_scc1 L_ld_loop')
    slot('V')
    if lag == 2:
        A('s_waitcnt vmcnt(16)'); A('s_barrier')
    A('s_waitcnt vmcnt(0)')
    if stamps: stamp(1); A('s_waitcnt lgkmcnt(0)')
    if diag: A('s_memrealtime s[82:83]'); A('s_waitcnt lgkmcnt(0)')
    A('s_barrier')
    A('s_branch L_epilogue')

    A.label('L_consumer')
    A('v_and_b32 v8, 31, v0')
    A('v_lshrrev_b32 v9, 5, v0')
    A('v_lshlrev_b32 v10, 4, v0')
    A('v_lshlrev_b32 v14, 6, v0')
    A('s_lshl_b32 s46, s3, 15')
    A('v_and_b32 v12, 15, v8')
    A('v_xor_b32 v11, v12, v9')
    A('v_lshlrev_b32 v11, 4, v11')
    A('v_lshl_or_b32 v11, v8, 8, v11')
    A(f'v_add_u32 v11, {QST}, v11')
    A('v_lshlrev_b32 v13, 1, v9')
    A('v_xor_b32 v12, v12, v13')
    A('v_lshlrev_b32 v12, 4, v12')
    A('v_lshl_or_b32 v12, v8, 9, v12')
    A(f'v_lshlrev_b32 v{KSA}, 6, v9')
    A(f'v_add_u32 v{KSA}, {KS_T}, v{KSA}')
    A(f'v_lshlrev_b32 v{VA}, 4, v8')
    A(f'v_lshl_or_b32 v{VA}, v9, 11, v{VA}')
    A(f's_add_u32 s47, s46, {SLOT}')
    A(f'v_add_u32 v{VA}, s47, v{VA}')
    A(f'v_lshlrev_b32 v{VSA}, 5, v9')
    A(f's_lshl_b32 s47, s3, 8')
    A(f's_add_u32 s47, s47, {VS_T}')
    A(f'v_add_u32 v{VSA}, s47, v{VSA}')
    A('s_and_b32 s43, s40, 3')
    A('s_lshl_b32 s42, s41, 11')
    A('s_lshl_b32 s47, s43, 7')
    A('s_add_u32 s42, s42, s47')
    A(f's_add_u32 s42, s42, {WS_FLAGS}')
    A('v_lshlrev_b32 v15, 9, v0')
    A('v_add_u32 v15, s42, v15')
    A('v_mov_b32 v16, 0')
    A('s_waitcnt lgkmcnt(0)')
    A('s_cmp_lg_u32 s3, 1')
    A('s_cbranch_scc1 L_noReset')
    A('s_mov_b64 exec, 15')
    A('global_store_dword v15, v16, s[22:23] sc1')
    A('s_mov_b64 exec, -1')
    A.label('L_noReset')
    if diag:
        A('s_cmp_lg_u32 s3, 0')
        A('s_cbranch_scc1 L_noDiag')
        A('s_not_b32 s80, s76')
        A('v_mov_b32 v17, s80')
        A('v_mov_b32 v18, 128')
        A('s_mov_b64 exec, 1')
        A('global_atomic_umax v18, v17, s[20:21]')
        A('s_mov_b64 exec, -1')
        A.label('L_noDiag')
    A(f'v_add_u32 v{KBASE}, s46, v12')
    A(f'v_mov_b32 v{M0_}, 0xff800000'); A(f'v_mov_b32 v{M1_}, 0xff800000')
    A(f'v_mov_b32 v{L0_}, 0'); A(f'v_mov_b32 v{L1_}, 0')
    for i in range(128): A(f'v_mov_b32 v{O+i}, 0')
    A(f's_mov_b32 s52, {hex(f2u(CSCALE))}')
    A('s_mov_b32 s53, 0x4b800000')
    A('s_mov_b32 s54, 0xffff0000')
    A('s_mov_b32 s50, s3')
    A('s_barrier')
    A.label('L_tab')
    A('s_lshr_b32 s47, s50, 2'); A('s_lshl_b32 s47, s47, 12')
    A('s_lshl_b32 s48, s50, 10')
    A('s_add_u32 s47, s47, s48')
    A(f's_add_u32 s47, s47, {STG}')
    A('v_add_u32 v15, s47, v10')
    A('s_lshl_b32 s48, s50, 12')
    A(f's_add_u32 s48, s48, {KS_T}')
    A('ds_read_b128 v[64:67], v15')
    A('ds_read_b128 v[68:71], v15 offset:4096')
    A('v_add_u32 v13, s48, v14')
    A('s_waitcnt lgkmcnt(0)')
    sc, zr, t = 64, 68, 16
    for e in range(8):
        q, i = e >> 2, e & 3
        ds, dc = t + q*8 + i, t + q*8 + 4 + i
        if e & 1:
            A(f'v_and_b32 v{ds}, s54, v{sc + (e>>1)}'); A(f'v_and_b32 v{dc}, s54, v{zr + (e>>1)}')
        else:
            A(f'v_lshlrev_b32 v{ds}, 16, v{sc + (e>>1)}'); A(f'v_lshlrev_b32 v{dc}, 16, v{zr + (e>>1)}')
        A(f'v_mul_f32_e64 v{dc}, -v{dc}, v{ds}')
        A(f'v_mul_f32 v{ds}, s53, v{ds}')
    for k in range(4):
        A(f'ds_write_b128 v13, v[{t+4*k}:{t+4*k+3}] offset:{k*16}')
    A('s_add_u32 s50, s50, 3')
    A('s_cmp_lt_u32 s50, 8')
    A('s_cbranch_scc1 L_tab')
    for s in range(1, 8):
        A(f'v_xor_b32 v{32+s}, {2*s*16}, v11')
    A('s_waitcnt lgkmcnt(0)')
    A('s_barrier')
    for qb in range(2):
        for s in range(8):
            a = (qb*8 + s)*4
            if qb == 1 and s == 7: A('s_waitcnt lgkmcnt(8)')
            A(f'ds_read_b128 a[{a}:{a+3}], v{32+s if s else 11} offset:{qb*8192}')
    if diag:
        A('s_and_b32 s47, s41, 3'); A('s_lshl_b32 s47, s47, 3'); A('s_lshl_b32 s47, 1, s47')
        A('v_mov_b32 v17, s47'); A('v_accvgpr_write_b32 a65, v17')
    else:
        A('v_accvgpr_write_b32 a65, 1')
    A('s_mov_b32 s50, s3')
    A('s_waitcnt lgkmcnt(0)')
    A('s_cmp_eq_u32 s3, 0')
    A('s_cbranch_scc1 L_tile')
    A('s_barrier')
    A('s_cmp_eq_u32 s3, 1')
    A('s_cbranch_scc1 L_tile')
    A('s_barrier'); A('s_barrier')

    A.label('L_tile')
    A('s_lshr_b32 s51, s50, 2')
    A('s_lshl_b32 s51, s51, 10')
    KSCUR = 24
    A(f'v_add_u32 v{KSCUR}, s51, v{KSA}')
    A(f'v_mov_b32 v{KADDR}, v{KBASE}')
    for x in range(1, 8):
        s3_, e = x >> 1, x & 1
        A(f'v_xor_b32 v{KADDR+x}, {(4*s3_+e)*16}, v{KBASE}')
    def kscale_reads(s):
        b = KST[s & 1]
        for k in range(4):
            A(f'ds_read_b128 v[{b+8+4*k}:{b+8+4*k+3}], v{KSCUR} offset:{s*128 + k*16}')
    def kraw_reads(s):
        b = KST[s & 1]
        for e in range(2):
            A(f'ds_read_b128 v[{b+4*e}:{b+4*e+3}], v{KADDR + (s&3)*2 + e} offset:{(s>>2)*256}')
    kscale_reads(0)
    A('s_barrier')
    kraw_reads(0)
    for s in range(8):
        if s + 1 < 8:
            kraw_reads(s+1); kscale_reads(s+1)
            A('s_waitcnt lgkmcnt(6)')
        else:
            A('s_waitcnt lgkmcnt(0)')
        b = KST[s & 1]; f = KFRAG + (s & 1)*4
        for e in range(2):
            for i in range(4):
                A(f'v_fma_mix_f32 v{b+4*e+i}, v{b+4*e+i}, v{b+8+8*e+i}, v{b+8+8*e+4+i} op_sel_hi:[1,0,0]')
        for k in range(4):
            A(f'v_cvt_pk_bf16_f32 v{f+k}, v{b+2*k}, v{b+2*k+1}')
        A('s_nop 1')
        for qb in range(2):
            a = (qb*8 + s)*4
            c = '0' if s == 0 else vr(S + qb*16, 16)
            A(f'v_mfma_f32_32x32x16_bf16 {vr(S+qb*16,16)}, {vr(f,4)}, {ar(a,4)}, {c}')
    A('s_barrier')
    for a in range(4):
        for k in range(2):
            A(f'ds_read_b128 v[{VSC+a*8+4*k}:{VSC+a*8+4*k+3}], v{VSA} offset:{a*64 + k*16}')
    A(f'v_add_u32 v{VSA}, 768, v{VSA}')
    A('s_nop 3')
    T = [24, 25]; T2 = [26, 27]; AL = [28, 30]; Mx = [M0_, M1_]; Lx = [L0_, L1_]
    for qb in range(2):
        A(f'v_max3_f32 v{T[qb]}, v{S+qb*16}, v{S+qb*16+1}, v{S+qb*16+2}')
    for i in range(3, 15, 2):
        for qb in range(2):
            A(f'v_max3_f32 v{T[qb]}, v{T[qb]}, v{S+qb*16+i}, v{S+qb*16+i+1}')
    for qb in range(2): A(f'v_max_f32 v{T[qb]}, v{T[qb]}, v{S+qb*16+15}')
    for qb in range(2): A(f'v_mov_b32 v{T2[qb]}, v{T[qb]}')
    A('s_nop 1')
    for qb in range(2): A(f'v_permlane32_swap_b32 v{T[qb]}, v{T2[qb]}')
    for qb in range(2): A(f'v_max_f32 v{T[qb]}, v{T[qb]}, v{T2[qb]}')
    for qb in range(2): A(f'v_mul_f32 v{T[qb]}, s52, v{T[qb]}')
    for qb in range(2): A(f'v_max_f32 v{T[qb]}, v{T[qb]}, v{Mx[qb]}')
    for qb in range(2): A(f'v_sub_f32 v{AL[qb]}, v{Mx[qb]}, v{T[qb]}')
    for qb in range(2): A(f'v_exp_f32 v{AL[qb]}, v{AL[qb]}')
    for qb in range(2): A(f'v_mov_b32 v{Mx[qb]}, v{T[qb]}')
    for qb in range(2): A(f'v_mul_f32 v{Lx[qb]}, v{Lx[qb]}, v{AL[qb]}')
    for qb in range(2):
        for i in range(16): A(f'v_fma_f32 v{S+qb*16+i}, v{S+qb*16+i}, s52, -v{Mx[qb]}')
        for i in range(16): A(f'v_exp_f32 v{S+qb*16+i}, v{S+qb*16+i}')
    A('s_cmp_eq_u32 s50, 63')
    A('s_cbranch_scc1 L_skipBc')
    A('s_barrier')
    A.label('L_skipBc')
    for qb in range(2):
        for k in range(8):
            A(f'v_cvt_pk_bf16_f32 v{P+qb*8+k}, v{S+qb*16+2*k}, v{S+qb*16+2*k+1}')
        for i in range(0, 8, 2):
            A(f'v_pk_add_f32 {vr(S+qb*16+i,2)}, {vr(S+qb*16+i,2)}, {vr(S+qb*16+8+i,2)}')
        for i in range(0, 4, 2):
            A(f'v_pk_add_f32 {vr(S+qb*16+i,2)}, {vr(S+qb*16+i,2)}, {vr(S+qb*16+4+i,2)}')
        A(f'v_pk_add_f32 {vr(S+qb*16,2)}, {vr(S+qb*16,2)}, {vr(S+qb*16+2,2)}')
        A(f'v_add_f32 v{Lx[qb]}, v{Lx[qb]}, v{S+qb*16}')
        A(f'v_add_f32 v{Lx[qb]}, v{Lx[qb]}, v{S+qb*16+1}')
    for qb in range(2):
        for i in range(0, 64, 2):
            r = O + qb*64 + i
            A(f'v_pk_mul_f32 {vr(r,2)}, {vr(r,2)}, {vr(AL[qb],2)} op_sel_hi:[1,0]')
    A('s_waitcnt lgkmcnt(0)')
    A('s_barrier')
    def vread(t):
        a, b = t >> 2, t & 3
        A(f'ds_read_b128 {vr(VRAW+4*t,4)}, v{VA} offset:{(8*a+b)*512}')
    def vdeq(t):
        a, b = t >> 2, t & 3
        for j in range(4):
            r = VRAW + 4*t + j
            A(f'v_fma_mix_f32 v{r}, v{r}, v{VSC+a*8+b}, v{VSC+a*8+4+b} op_sel_hi:[1,0,0]')
    def vpack(u, j):
        f = VFRAG + (j & 1)*4
        for i in range(4):
            t = 8*u + 2*i
            A(f'v_cvt_pk_bf16_f32 v{f+i}, v{VRAW+4*t+j}, v{VRAW+4*(t+1)+j}')
    def vmfma(u, j, qb):
        f = VFRAG + (j & 1)*4
        A(f'v_mfma_f32_32x32x16_bf16 {vr(Oreg(qb,j),16)}, {vr(f,4)}, {vr(P+qb*8+u*4,4)}, {vr(Oreg(qb,j),16)}')
    for t in range(15): vread(t)
    A('s_waitcnt lgkmcnt(14)')
    vread(15)
    vdeq(0)
    for t in range(1, 8):
        A(f's_waitcnt lgkmcnt({15-t})')
        vdeq(t)
    for j in range(4):
        vpack(0, j)
        A(f's_waitcnt lgkmcnt({15-(8+2*j)})')
        vdeq(8 + 2*j)
        vmfma(0, j, 0)
        A(f's_waitcnt lgkmcnt({15-(9+2*j)})')
        vdeq(9 + 2*j)
        vmfma(0, j, 1)
    vpack(1, 0)
    for j in range(4):
        if j == 0: A('s_nop 1')
        vmfma(1, j, 0)
        if j < 3: vpack(1, j+1)
        vmfma(1, j, 1)
        if j < 3: A('s_nop 0')
    A('s_add_u32 s50, s50, 3')
    A('s_cmp_ge_u32 s50, 64')
    A('s_cbranch_scc1 L_cdone')
    A('s_barrier')
    A('s_cmp_eq_u32 s50, 3')
    A('s_cbranch_scc1 L_tile')
    A('s_barrier')
    A('s_cmp_lg_u32 s50, 61')
    A('s_cbranch_scc1 L_tile')
    if diag: A('s_and_b32 s47, s41, 0xfc')
    else: A('s_lshl_b32 s47, s41, 2')
    A('v_mov_b32 v8, s47')
    A('s_waitcnt vmcnt(0)')
    A('s_mov_b64 exec, 1')
    A('global_atomic_add a64, v8, a65, s[20:21] sc0')
    A('s_mov_b64 exec, -1')
    A('s_branch L_tile')

    A.label('L_cdone')
    A('s_cmp_eq_u32 s3, 0')
    A('s_cbranch_scc1 L_dump')
    A('s_barrier')
    A('s_cmp_lg_u32 s3, 1')
    A('s_cbranch_scc1 L_dump')
    A(f'v_mov_b32 v8, {ROLE}')
    A('s_waitcnt vmcnt(0)')
    A('s_mov_b64 exec, 1')
    A('ds_write_b32 v8, a64')
    A('s_mov_b64 exec, -1')
    A.label('L_dump')
    A('v_mbcnt_lo_u32_b32 v8, -1, 0')
    A('v_mbcnt_hi_u32_b32 v8, -1, v8')
    A('v_lshlrev_b32 v9, 3, v8')
    A('s_lshl_b32 s47, s3, 10')
    A(f's_add_u32 s47, s47, {STATS}')
    A('v_add_u32 v9, s47, v9')
    A('v_lshlrev_b32 v10, 4, v8')
    A('v_add_u32 v10, s46, v10')
    for qb in range(2): A(f'v_mov_b32 v{12+qb}, v{Lx[qb]}')
    A('s_nop 1')
    for qb in range(2): A(f'v_permlane32_swap_b32 v{Lx[qb]}, v{12+qb}')
    for qb in range(2):
        A(f'v_mov_b32 v{16+2*qb}, v{Mx[qb]}')
        A(f'v_add_f32 v{17+2*qb}, v{Lx[qb]}, v{12+qb}')
    for qb in range(2):
        A(f'ds_write_b64 v9, v[{16+2*qb}:{17+2*qb}] offset:{qb*512}')
    for qb in range(2):
        for a in range(4):
            for j in range(4):
                blk = (qb*2 + (a >> 1))*8 + (a & 1)*4 + j
                A(f'ds_write_b128 v10, {vr(Oreg(qb,j)+4*a,4)} offset:{blk*1024}')
    A('s_waitcnt lgkmcnt(0)')
    A('s_cmp_lg_u32 s3, 1')
    A('s_cbranch_scc1 L_epilogue')
    A('s_barrier'); A('s_barrier')

    A.label('L_epilogue')
    A(f'v_mov_b32 v6, {ROLE}')
    A('ds_read_b32 v6, v6')
    A('v_mbcnt_lo_u32_b32 v0, -1, 0')
    A('v_mbcnt_hi_u32_b32 v0, -1, v0')
    A('s_lshr_b32 s47, s3, 1')
    A('s_lshl_b32 s47, s47, 9')
    A(f's_add_u32 s47, s47, {STATS}')
    A('v_lshlrev_b32 v5, 3, v0')
    A('v_add_u32 v1, s47, v5')
    A('s_lshl_b32 s47, s3, 13')
    A('v_lshlrev_b32 v2, 4, v0')
    A('v_add_u32 v3, s47, v2')
    A('v_add_u32 v4, 0x10000, v3')
    A('s_and_b32 s43, s40, 3')
    A('s_lshl_b32 s42, s41, 17')
    srd(A, 24, 22, 's42', 4*32768)
    A('s_lshl_b32 s42, s41, 13')
    A(f's_add_u32 s42, s42, {WS_STATS}')
    srd(A, 28, 22, 's42', 4*2048)
    A('s_lshl_b32 s48, s3, 9')
    A('s_lshl_b32 s42, s41, 11')
    A('s_add_u32 s42, s42, s48')
    A(f's_add_u32 s42, s42, {WS_FLAGS}')
    A('v_lshlrev_b32 v7, 7, v0')
    A('v_add_u32 v7, s42, v7')
    A('s_waitcnt lgkmcnt(0)')
    A('v_readfirstlane_b32 s55, v6')
    A('s_nop 1')
    if diag:
        A('s_and_b32 s56, s41, 3'); A('s_lshl_b32 s56, s56, 3'); A('s_lshr_b32 s55, s55, s56'); A('s_and_b32 s55, s55, 0xff')
    A('s_cmp_lg_u32 s55, 3')
    A('s_cbranch_scc1 L_merge')
    A('s_mov_b64 exec, 15')
    A.label('L_poll')
    A('global_load_dword v6, v7, s[22:23] sc1')
    A('s_waitcnt vmcnt(0)')
    A('v_cmp_ne_u32 vcc, 0, v6')
    A('s_nop 1')
    A('s_and_b32 s56, vcc_lo, 15')
    A('s_bitset1_b32 s56, s43')
    A('s_cmp_lg_u32 s56, 15')
    A('s_cbranch_scc1 L_poll')
    A('s_mov_b64 exec, -1')
    D = 128
    for k in range(3):
        A(f's_add_u32 s56, s43, {k+1}'); A('s_and_b32 s56, s56, 3')
        A('s_lshl_b32 s57, s56, 11'); A('s_add_u32 s57, s57, s48')
        A(f'buffer_load_dwordx2 v[{224+2*k}:{225+2*k}], v5, s[28:31], s57 offen sc1')
        A('s_lshl_b32 s57, s56, 15'); A('s_add_u32 s57, s57, s47')
        for i in range(8):
            if i == 4: A('s_add_u32 s57, s57, 4096')
            A(f'buffer_load_dwordx4 {vr(D+32*k+4*i,4)}, v2, s[24:27], s57 offen offset:{(i&3)*1024} sc1')
    A.label('L_merge')
    A('s_barrier')
    for c in range(3):
        A(f'ds_read_b64 v[{8+2*c}:{9+2*c}], v1 offset:{c*1024}')
    R = 32
    def dread(c, i):
        if c < 2: A(f'ds_read_b128 {vr(R+c*32+4*i,4)}, v3 offset:{c*32768 + i*1024}')
        else: A(f'ds_read_b128 {vr(R+c*32+4*i,4)}, v4 offset:{i*1024}')
    for i in range(4):
        for c in range(3): dread(c, i)
    A('s_waitcnt lgkmcnt(12)')
    A('v_max3_f32 v14, v8, v10, v12')
    for c in range(3): A(f'v_sub_f32 v{16+2*c}, v{8+2*c}, v14')
    for c in range(3): A(f'v_exp_f32 v{16+2*c}, v{16+2*c}')
    A('s_nop 0')
    A('v_mul_f32 v15, v9, v16')
    A('v_fmac_f32 v15, v11, v18')
    A('v_fmac_f32 v15, v13, v20')
    for i in range(8):
        if i < 4:
            A(f's_waitcnt lgkmcnt(9)')
            for c in range(3): dread(c, i+4)
        else:
            A(f's_waitcnt lgkmcnt({3*(7-i)})')
        for k in range(0, 4, 2):
            r = R + 4*i + k
            A(f'v_pk_mul_f32 {vr(r,2)}, {vr(r,2)}, v[16:17] op_sel_hi:[1,0]')
            A(f'v_pk_fma_f32 {vr(r,2)}, {vr(r+32,2)}, v[18:19], {vr(r,2)} op_sel_hi:[1,0,1]')
            A(f'v_pk_fma_f32 {vr(r,2)}, {vr(r+64,2)}, v[20:21], {vr(r,2)} op_sel_hi:[1,0,1]')
    A('s_cmp_eq_u32 s55, 3')
    A('s_cbranch_scc1 L_final')
    A('s_lshl_b32 s57, s43, 15'); A('s_add_u32 s57, s57, s47')
    for i in range(8):
        if i == 4: A('s_add_u32 s57, s57, 4096')
        A(f'buffer_store_dwordx4 {vr(R+4*i,4)}, v2, s[24:27], s57 offen offset:{(i&3)*1024} sc1')
    A('s_lshl_b32 s57, s43, 11'); A('s_add_u32 s57, s57, s48')
    A('buffer_store_dwordx2 v[14:15], v5, s[28:31], s57 offen sc1')
    A('v_mov_b32 v6, 1')
    A('s_lshl_b64 s[58:59], 1, s43')
    A('s_waitcnt vmcnt(0)')
    A('s_mov_b64 exec, s[58:59]')
    A('global_store_dword v7, v6, s[22:23] sc1')
    A('s_mov_b64 exec, -1')
    A('s_branch L_fin')
    A.label('L_final')
    A('s_lshl_b32 s42, s41, 14')
    A('s_lshr_b32 s56, s3, 1'); A('s_lshl_b32 s56, s56, 13')
    A('s_add_u32 s42, s42, s56')
    srd(A, 32, 18, 's42', 8192)
    A('s_and_b32 s56, s3, 1'); A('s_lshl_b32 s56, s56, 7')
    A('v_and_b32 v4, 31, v0'); A('v_lshlrev_b32 v4, 8, v4')
    A('v_lshrrev_b32 v3, 5, v0'); A('v_lshl_or_b32 v4, v3, 5, v4')
    A('s_waitcnt vmcnt(8)')
    A('v_max3_f32 v8, v224, v226, v228'); A('v_max_f32 v8, v8, v14')
    A('v_sub_f32 v16, v14, v8')
    for k in range(3): A(f'v_sub_f32 v{18+2*k}, v{224+2*k}, v8')
    for k in range(4): A(f'v_exp_f32 v{16+2*k}, v{16+2*k}')
    A('s_nop 0')
    A('v_mul_f32 v9, v15, v16')
    for k in range(3): A(f'v_fmac_f32 v9, v{225+2*k}, v{18+2*k}')
    A('v_rcp_f32 v9, v9')
    A('s_nop 0')
    for k in range(4): A(f'v_mul_f32 v{16+2*k}, v{16+2*k}, v9')
    for aa in range(2):
        if aa == 0: A('s_waitcnt vmcnt(4)')
        else: A('s_waitcnt vmcnt(2)')
        for x in range(aa*16, aa*16+16, 2):
            A(f'v_pk_mul_f32 {vr(R+x,2)}, {vr(R+x,2)}, v[16:17] op_sel_hi:[1,0]')
            for k in range(3):
                A(f'v_pk_fma_f32 {vr(R+x,2)}, {vr(D+32*k+x,2)}, {vr(18+2*k,2)}, {vr(R+x,2)} op_sel_hi:[1,0,1]')
        for k in range(8):
            b, j = k >> 1, 2*(k & 1)
            A(f'v_cvt_pk_bf16_f32 v{64+aa*8+k}, v{R+aa*16+4*j+b}, v{R+aa*16+4*(j+1)+b}')
        A(f'buffer_store_dwordx4 {vr(64+aa*8,4)}, v4, s[32:35], s56 offen offset:{aa*64} {oflags}')
        A(f'buffer_store_dwordx4 {vr(64+aa*8+4,4)}, v4, s[32:35], s56 offen offset:{aa*64+16} {oflags}')
    A.label('L_fin')
    if diag:
        A('s_waitcnt vmcnt(0)')
        A('s_memrealtime s[84:85]')
        A('v_mov_b32 v18, 128')
        A('global_load_dword v17, v18, s[20:21] sc1')
        A('s_waitcnt vmcnt(0) lgkmcnt(0)')
        A('v_readfirstlane_b32 s81, v17')
        A('s_nop 1')
        A('s_not_b32 s81, s81')
        A('s_mov_b32 s86, 0')
        A('s_cmp_lg_u32 s3, 3')
        A('s_cbranch_scc1 L_dg')
        if diag == 'tail': A('s_sub_u32 s86, s84, s82'); A('s_mul_i32 s86, s86, 10')
        if diag == 'send': A('s_sub_u32 s86, s82, s81'); A('s_sub_u32 s86, s86, 6500'); A('s_mul_i32 s86, s86, 10')
        if diag == 'fin': A('s_sub_u32 s86, s84, s81'); A('s_sub_u32 s86, s86, 6500'); A('s_mul_i32 s86, s86, 10')
        if diag == 'start': A('s_sub_u32 s86, s76, s81'); A('s_mul_i32 s86, s86, 10')
        if diag == 'sendmin': A('s_sub_u32 s86, s82, s81'); A('s_sub_u32 s86, 9000, s86'); A('s_mul_i32 s86, s86, 10')
        A('s_min_u32 s86, s86, 100000')
        A.label('L_dg')
        A('s_add_u32 s86, s86, 10000')
        A.label('L_spin')
        A('s_memrealtime s[78:79]')
        A('s_waitcnt lgkmcnt(0)')
        A('s_sub_u32 s80, s78, s81')
        A(f's_cmp_lt_u32 s80, s86')
        A('s_cbranch_scc1 L_spin')
    if diagspin:
        A.label('L_spin')
        A('s_memrealtime s[78:79]')
        A('s_waitcnt lgkmcnt(0)')
        A('s_sub_u32 s80, s78, s76')
        A(f's_cmp_lt_u32 s80, {diagspin}')
        A('s_cbranch_scc1 L_spin')
    if stamps:
        A('s_waitcnt vmcnt(0)')
        stamp(2)
        A('s_waitcnt lgkmcnt(0)')
        A('s_cmp_lg_u32 s3, 3')
        A('s_cbranch_scc1 L_end')
        A('s_getreg_b32 s74, hwreg(HW_REG_XCC_ID)')
        A('s_lshl_b32 s55, s55, 8'); A('s_or_b32 s74, s74, s55')
        A(f's_mov_b32 s75, {7 if stamps == 2 else 3}')
        for i in range(16): A(f'v_mov_b32 v{8+i}, s{60+i}')
        A('s_lshl_b32 s42, s2, 6')
        A('s_add_u32 s42, s42, 0x10000000')
        A('v_mov_b32 v1, s42')
        A('s_mov_b64 exec, 1')
        for i in range(4): A(f'global_store_dwordx4 v1, v[{8+4*i}:{11+4*i}], s[22:23] offset:{16*i}')
    A.label('L_end')
    A('s_endpgm')

    A('.section .rodata,"a"')
    A('.p2align 6')
    A(f'.amdhsa_kernel {main}')
    for l in ['.amdhsa_next_free_vgpr 328', '.amdhsa_next_free_sgpr 96', '.amdhsa_accum_offset 256',
              '.amdhsa_group_segment_fixed_size 0', '.amdhsa_kernarg_size 80', '.amdhsa_user_sgpr_count 2',
              '.amdhsa_user_sgpr_kernarg_segment_ptr 1', '.amdhsa_system_sgpr_workgroup_id_x 1',
              '.amdhsa_float_denorm_mode_32 3', '.amdhsa_float_denorm_mode_16_64 3']:
        A.lines.append('  ' + l)
    A('.end_amdhsa_kernel')
    return A.text()

if __name__ == '__main__':
    kw = eval('dict(' + (sys.argv[2] if len(sys.argv) > 2 else '') + ')')
    t = gen(**kw)
    errs = check_hazards(t)
    for e in errs: print('HAZARD', e)
    out = sys.argv[1] if len(sys.argv) > 1 and sys.argv[1] != '-' else f'cdna_kernels/{NAME}.s'
    open(out, 'w').write(t)
    import subprocess
    r = subprocess.run(['clang', '-x', 'assembler', '-target', 'amdgcn-amd-amdhsa', '-mcpu=gfx950', '-c', out, '-o', 'chk.o'], capture_output=True, text=True)
    print('wrote', out, len(t), 'bytes', 'hazards', len(errs), 'asm rc', r.returncode, r.stderr[:1500])
```

```python
import sys, math, struct
sys.path.insert(0, 'gen')
from asmlib import *

NAME = 'standalone__kv_cache_quant_int4_int2_kv_with_per_channel_or_per_token_scales__sampling'
HEADER = open(f'cdna_kernels/{NAME}.s.ref').read().split('; Override launch geometry')[0]

SLOT = 16384
RING = 6*SLOT
KS_T = RING
VS_T = RING + 16384
QST = RING + 32768
STATS = QST + 16384
WCTL = STATS + 3072
LDS_BYTES = STATS + 4096
STG = 5*SLOT
WS_STATS = 0x800000
WS_FLAGS = 0x900000
WS_CTR = 0xa00000

CSCALE = (128.0 ** -0.5) * math.log2(math.e)
def f2u(x): return struct.unpack('<I', struct.pack('<f', x))[0]

KBASE, KSA, VA, VSA, M0_, M1_, L0_, L1_ = 0, 1, 2, 3, 4, 5, 6, 7
P = 8; KADDR = 8; KFRAG = 16; VFRAG = 24
VSC = 32; KST = (32, 56); VRAW = 64; S = 96; O = 128
def Oreg(qb, j): return O + (qb*4 + j)*16

def srd(A, d, base_lo, off_lo, nbytes):
    A(f's_add_u32 s{d}, s{base_lo}, {off_lo}')
    A(f's_addc_u32 s{d+1}, s{base_lo+1}, 0')
    A(f's_and_b32 s{d+1}, s{d+1}, 0xffff')
    A(f's_mov_b32 s{d+2}, {nbytes}')
    A(f's_mov_b32 s{d+3}, 0x20000')

def gen(W=17, flags='nt', stamps=0, wgmap=0, qflags='', sflags='nt', oflags='', diag='', ctl=1, Wmin=10, Wmax=24,
        kp=12, ki=2, fsep=1, pflags='sc1', greedy=0, Wst=16, exp='', G=4, pred=1, rot=None, phi=None):
    if not ctl: Wmin = Wmax = W
    A = Asm()
    A.lines += HEADER.rstrip('\n').split('\n')
    main = NAME + '_kernel'
    A(f'; @launch grid=(256,1,1) block=(256,1,1) lds={LDS_BYTES}')
    A('.amdgcn_target "amdgcn-amd-amdhsa--gfx950"')
    A('.text')
    A(f'.globl {main}')
    A('.p2align 8')
    A(f'.type {main},@function')
    A(f'{main}:')
    def stamp(i, cond=True):
        if stamps and cond: A(f's_memrealtime s[{60+2*i}:{61+2*i}]')
    A('s_cmp_ge_u32 s2, 256')
    A('s_cbranch_scc1 L_end')
    stamp(0)
    if diag: A('s_memrealtime s[76:77]')
    A('s_load_dwordx16 s[4:19], s[0:1], 0')
    A('s_load_dwordx4 s[20:23], s[0:1], 64')
    A('v_lshrrev_b32 v1, 6, v0')
    A('v_and_b32 v0, 63, v0')
    A('v_readfirstlane_b32 s3, v1')
    if wgmap == 0:
        A('s_mov_b32 s40, s2')
    elif wgmap == 1:
        A('s_and_b32 s40, s2, 7'); A('s_lshl_b32 s40, s40, 2')
        A('s_lshr_b32 s41, s2, 3'); A('s_and_b32 s41, s41, 3'); A('s_or_b32 s40, s40, s41')
        A('s_and_b32 s41, s2, 0xe0'); A('s_or_b32 s40, s40, s41')
    elif wgmap == 2:
        A('s_and_b32 s40, s2, 7'); A('s_lshl_b32 s40, s40, 5')
        A('s_lshr_b32 s41, s2, 3'); A('s_or_b32 s40, s40, s41')
    A('s_lshr_b32 s41, s40, 2')
    if rot:
        A(f's_mul_i32 s38, s2, {rot[0]}'); A(f's_lshr_b32 s38, s38, {rot[1]}'); A(f's_and_b32 s38, s38, {rot[2]}')
    else: A('s_mov_b32 s38, 0')
    A('s_cmp_lg_u32 s3, 3')
    A('s_cbranch_scc1 L_consumer')

    A('v_lshlrev_b32 v16, 4, v0')
    A('s_lshl_b32 s42, s40, 12')
    A('v_add_u32 v17, s42, v16')
    A('v_lshrrev_b32 v1, 4, v0')
    A('v_and_b32 v2, 15, v0')
    A('v_xor_b32 v2, v2, v1')
    A('v_lshlrev_b32 v2, 4, v2')
    A('v_lshl_or_b32 v2, v1, 8, v2')
    A('s_lshl_b32 s43, s41, 14')
    A('v_add_u32 v20, s43, v2')
    for jj in range(1, 4):
        A(f'v_xor_b32 v{20+jj}, {4*jj*16}, v20')
    A('v_lshrrev_b32 v1, 5, v0')
    A('v_and_b32 v2, 31, v0')
    A('v_xor_b32 v2, v2, v1')
    A('v_lshlrev_b32 v2, 4, v2')
    A('v_lshl_or_b32 v8, v1, 9, v2')
    if phi:
        A(f's_mul_i32 s37, s2, {phi[0]}'); A(f's_lshr_b32 s37, s37, {phi[1]}'); A(f's_and_b32 s37, s37, 3')
        A('s_and_b32 s36, s37, 1'); A('s_lshl_b32 s36, s36, 7'); A('v_xor_b32 v8, s36, v8')
        A('s_lshl_b32 s32, s37, 12')
        for g in range(1, 4): A(f's_xor_b32 s{32+g}, s32, {g*4096}')
    for j in range(1, 8):
        A(f'v_xor_b32 v{8+j}, {2*j*16}, v8')
    A('s_lshl_b32 s42, s40, 20')
    A(f's_mov_b32 m0, {STG}')
    A('s_waitcnt lgkmcnt(0)')
    def pre(g, idx, w, st=None, last=False):
        bg = max(0, (w - 16 + 3) // 4)
        if last:
            if g == 0: A('s_waitcnt vmcnt(16)'); A('s_barrier')
            elif not greedy: A(f's_waitcnt vmcnt({w})')
            return
        if idx*16 + g*4 > w: A(f's_waitcnt vmcnt({w})')
        if g == bg and idx >= 2:
            if st is not None: stamp(st, stamps == 2)
            A('s_barrier')
    for g in range(4):
        if g: A(f's_mov_b32 m0, {STG + g*4096}')
        pre(g, 0, Wst)
        if g: A('s_nop 0')
        for i in range(4):
            A(f'global_load_lds_dwordx4 v17, s[{10+2*g}:{11+2*g}] offset:{i*1024} {sflags}')
    for g in range(4):
        A(f's_mov_b32 m0, {QST + g*4096}')
        pre(g, 1, Wst)
        A('s_nop 0')
        for i in range(4):
            A(f'global_load_lds_dwordx4 v{20+i}, s[4:5] offset:{i*1024} {qflags}')
        if g < 3:
            A('s_add_u32 s4, s4, 4096'); A('s_addc_u32 s5, s5, 0')
        if g == 0:
            srd(A, 24, 6, 's42', 1 << 20)
            srd(A, 28, 8, 's42', 1 << 20)
    def slot(kind, w, st=None, last=False, rd=False, GG=4):
        so, lb, sd = (44, 46, 's[24:27]') if kind == 'K' else (45, 47, 's[28:31]')
        bi = max(0, (w - 16 + GG - 1) // GG * GG)
        assert bi < 16
        for jj in range(16):
            g, i = jj >> 2, jj & 3
            if i == 0:
                go = f's{32+g}' if phi else g*4096
                A(f's_add_u32 m0, s{lb}, {go}')
                A(f's_add_u32 s48, s{so}, {go}')
                if rd and g == 3: A('ds_read_b32 v30, v31')
            if last:
                if jj == 0: A('s_waitcnt vmcnt(16)'); A('s_barrier')
                elif not greedy and jj % GG == 0: A(f's_waitcnt vmcnt({w})')
            else:
                if jj % GG == 0: A(f's_waitcnt vmcnt({w})')
                if jj == bi:
                    if st is not None: stamp(st, stamps == 2)
                    A('s_barrier')
            vo = 8 + (jj & 7) if kind == 'K' else 16
            A(f'buffer_load_dwordx4 v{vo}, {sd}, s48 offen offset:{i*1024} {flags} lds')
    def adv(kind):
        so, lb = (44, 46) if kind == 'K' else (45, 47)
        A(f's_add_u32 s{so}, s{so}, {SLOT}')
        if rot: A(f's_and_b32 s{so}, s{so}, 0xfffff')
        A(f's_add_u32 s{lb}, s{lb}, {2*SLOT}')
        A(f's_cmp_ge_u32 s{lb}, {RING}')
        A(f's_cselect_b32 s49, {RING}, 0')
        A(f's_sub_u32 s{lb}, s{lb}, s49')
    A('s_lshl_b32 s44, s38, 14'); A('s_mov_b32 s45, s44'); A('s_mov_b32 s46, 0'); A(f's_mov_b32 s47, {SLOT}')
    A(f'v_mov_b32 v31, {WCTL}')
    slot('K', Wst, 3); adv('K')
    A(f's_mov_b32 s50, 63')
    if stamps == 3: A('s_memrealtime s[88:89]'); A(f's_mov_b32 s93, {W}')
    order = sorted(range(Wmin, Wmax+1), key=lambda w: (abs(w - W), w))
    for n, w in enumerate(order):
        A.label(f'L_it{w}')
        slot('K', w, GG=G)
        slot('V', w, rd=bool(ctl), GG=G)
        if n == 0:
            A.label('L_next')
            adv('K'); adv('V')
            if stamps == 3:
                A('s_waitcnt lgkmcnt(0)')
                A('s_mov_b32 m0, s50')
                A('s_nop 0')
                A('v_writelane_b32 v240, s88, m0')
                A('v_writelane_b32 v241, s93, m0')
            A('s_sub_u32 s50, s50, 1')
            A('s_cmp_eq_u32 s50, 0')
            A('s_cbranch_scc1 L_lastslot')
            if ctl:
                A('s_waitcnt lgkmcnt(0)')
                A('v_readfirstlane_b32 s93, v30')
                if stamps == 3: A('s_memrealtime s[88:89]')
                else: A('s_nop 0')
                for w2 in order[:-1]:
                    A(f's_cmp_eq_u32 s93, {w2}')
                    A(f's_cbranch_scc1 L_it{w2}')
            elif stamps == 3: A('s_memrealtime s[88:89]')
            A(f's_branch L_it{order[-1]}')
        else:
            A('s_branch L_next')
    A.label('L_lastslot')
    slot('V', W, last=True, GG=G)
    A('s_waitcnt vmcnt(16)'); A('s_barrier')
    A('s_waitcnt vmcnt(0) lgkmcnt(0)')
    if stamps: stamp(1); A('s_waitcnt lgkmcnt(0)')
    if diag: A('s_memrealtime s[82:83]'); A('s_waitcnt lgkmcnt(0)')
    A('s_barrier')
    A('s_branch L_epilogue')

    A.label('L_consumer')
    if ctl: A('s_memrealtime s[78:79]')
    A('v_and_b32 v8, 31, v0')
    A('v_lshrrev_b32 v9, 5, v0')
    A('v_lshlrev_b32 v10, 4, v0')
    A('v_lshlrev_b32 v14, 6, v0')
    A('s_lshl_b32 s46, s3, 15')
    A('v_and_b32 v12, 15, v8')
    A('v_xor_b32 v11, v12, v9')
    A('v_lshlrev_b32 v11, 4, v11')
    A('v_lshl_or_b32 v11, v8, 8, v11')
    A(f'v_add_u32 v11, {QST}, v11')
    A('v_mul_u32_u24 v13, 0x22100, v12')
    A('v_accvgpr_write_b32 a65, v13')
    A('v_lshlrev_b32 v13, 1, v9')
    A('v_xor_b32 v12, v12, v13')
    A('v_lshlrev_b32 v12, 4, v12')
    A('v_lshl_or_b32 v12, v8, 9, v12')
    A(f'v_lshlrev_b32 v{KSA}, 6, v9')
    A(f'v_add_u32 v{KSA}, {KS_T}, v{KSA}')
    A(f'v_lshlrev_b32 v{VA}, 4, v8')
    A(f'v_lshl_or_b32 v{VA}, v9, 11, v{VA}')
    A(f's_add_u32 s47, s46, {SLOT}')
    A(f'v_add_u32 v{VA}, s47, v{VA}')
    A(f'v_lshlrev_b32 v{VSA}, 5, v9')
    A(f'v_add_u32 v{VSA}, {VS_T}, v{VSA}')
    A(f'v_lshlrev_b32 v15, {11 if fsep else 8}, v0')
    A(f'v_add_u32 v15, {WS_FLAGS}, v15')
    for i in range(4): A(f'v_mov_b32 v{16+i}, 0')
    A(f'v_mov_b32 v20, {WCTL}')
    A(f'v_mov_b32 v21, {W}')
    A('s_waitcnt lgkmcnt(0)')
    A('ds_write_b32 v20, v21')
    A('s_lshl_b32 s47, s2, 2')
    A('s_or_b32 s39, s47, s3')
    A('s_cmp_lg_u32 s39, 1')
    A('s_cbranch_scc1 L_noReset')
    if fsep:
        for i in range(16):
            if (i >> 2) != (i & 3): A(f'global_store_dword v15, v16, s[22:23] offset:{128*i} sc1')
    else:
        for i in range(4): A(f'global_store_dwordx4 v15, v[16:19], s[22:23] offset:{16*i} sc1')
    A.label('L_noReset')
    if diag:
        A('s_cmp_lg_u32 s3, 0')
        A('s_cbranch_scc1 L_noDiag')
        A('s_not_b32 s80, s76')
        A('v_mov_b32 v22, s80')
        A('v_mov_b32 v23, 128')
        A('s_mov_b64 exec, 1')
        A('global_atomic_umax v23, v22, s[20:21]')
        A('s_mov_b64 exec, -1')
        A.label('L_noDiag')
    A(f'v_add_u32 v{KBASE}, s46, v12')
    A(f'v_mov_b32 v{M0_}, 0xff800000'); A(f'v_mov_b32 v{M1_}, 0xff800000')
    A(f'v_mov_b32 v{L0_}, 0'); A(f'v_mov_b32 v{L1_}, 0')
    for i in range(128): A(f'v_mov_b32 v{O+i}, 0')
    A(f's_mov_b32 s52, {hex(f2u(CSCALE))}')
    A('s_mov_b32 s53, 0x4b800000')
    A('s_mov_b32 s54, 0xffff0000')
    if ctl:
        A('s_mov_b32 s84, 0')
        A(f's_mov_b32 s85, {WS_CTR}')
        A('s_mov_b32 s80, 0')
        A('s_mov_b32 s88, 0')
        A('s_mov_b32 s89, -1')
        A('s_lshr_b32 s87, s2, 7'); A('s_lshl_b32 s87, s87, 3'); A('s_and_b32 s47, s2, 7'); A('s_or_b32 s87, s87, s47')
        A('s_lshl_b64 s[90:91], 1, s87')
        A('s_lshr_b32 s47, s2, 3'); A('s_and_b32 s87, s47, 15')
    A('s_mov_b32 s50, s3')
    A('s_waitcnt lgkmcnt(0)')
    A('s_barrier')
    A.label('L_tab')
    A('s_lshr_b32 s47, s50, 2'); A('s_lshl_b32 s47, s47, 12')
    A('s_lshl_b32 s48, s50, 10')
    A('s_add_u32 s47, s47, s48')
    A(f's_add_u32 s47, s47, {STG}')
    A('v_add_u32 v15, s47, v10')
    A('s_lshl_b32 s48, s50, 12')
    A(f's_add_u32 s48, s48, {KS_T}')
    A('ds_read_b128 v[64:67], v15')
    A('ds_read_b128 v[68:71], v15 offset:4096')
    A('v_add_u32 v13, s48, v14')
    A('s_waitcnt lgkmcnt(0)')
    sc, zr, t = 64, 68, 16
    for e in range(8):
        q, i = e >> 2, e & 3
        ds, dc = t + q*8 + i, t + q*8 + 4 + i
        if e & 1:
            A(f'v_and_b32 v{ds}, s54, v{sc + (e>>1)}'); A(f'v_and_b32 v{dc}, s54, v{zr + (e>>1)}')
        else:
            A(f'v_lshlrev_b32 v{ds}, 16, v{sc + (e>>1)}'); A(f'v_lshlrev_b32 v{dc}, 16, v{zr + (e>>1)}')
        A(f'v_mul_f32_e64 v{dc}, -v{dc}, v{ds}')
        A(f'v_mul_f32 v{ds}, s53, v{ds}')
    for k in range(4):
        A(f'ds_write_b128 v13, v[{t+4*k}:{t+4*k+3}] offset:{k*16}')
    A('s_add_u32 s50, s50, 3')
    A('s_cmp_lt_u32 s50, 8')
    A('s_cbranch_scc1 L_tab')
    for s in range(1, 8):
        A(f'v_xor_b32 v{32+s}, {2*s*16}, v11')
    A('s_waitcnt lgkmcnt(0)')
    A('s_barrier')
    for qb in range(2):
        for s in range(8):
            a = (qb*8 + s)*4
            if qb == 1 and s == 7: A('s_waitcnt lgkmcnt(8)')
            A(f'ds_read_b128 a[{a}:{a+3}], v{32+s if s else 11} offset:{qb*8192}')
    A('s_mov_b32 s50, s3')
    A('s_waitcnt lgkmcnt(0)')
    A('s_cmp_eq_u32 s3, 0')
    A('s_cbranch_scc1 L_tile')
    A('s_barrier')
    A('s_cmp_eq_u32 s3, 1')
    A('s_cbranch_scc1 L_tile')
    A('s_barrier'); A('s_barrier')

    A.label('L_tile')
    A('s_add_u32 s49, s50, s38')
    A('s_and_b32 s49, s49, 63')
    A('s_lshr_b32 s51, s49, 2')
    A('s_lshl_b32 s51, s51, 10')
    A('s_lshl_b32 s49, s49, 8')
    A(f'v_add_u32 v25, s49, v{VSA}')
    KSCUR = 24
    A(f'v_add_u32 v{KSCUR}, s51, v{KSA}')
    A(f'v_mov_b32 v{KADDR}, v{KBASE}')
    for x in range(1, 8):
        s3_, e = x >> 1, x & 1
        A(f'v_xor_b32 v{KADDR+x}, {(4*s3_+e)*16}, v{KBASE}')
    def kscale_reads(s):
        b = KST[s & 1]
        for k in range(4):
            A(f'ds_read_b128 v[{b+8+4*k}:{b+8+4*k+3}], v{KSCUR} offset:{s*128 + k*16}')
    def kraw_reads(s):
        b = KST[s & 1]
        for e in range(2):
            A(f'ds_read_b128 v[{b+4*e}:{b+4*e+3}], v{KADDR + (s&3)*2 + e} offset:{(s>>2)*256}')
    kscale_reads(0)
    A('s_barrier')
    kraw_reads(0)
    for s in range(8):
        if s + 1 < 8:
            kraw_reads(s+1); kscale_reads(s+1)
            A('s_waitcnt lgkmcnt(6)')
        else:
            A('s_waitcnt lgkmcnt(0)')
        b = KST[s & 1]; f = KFRAG + (s & 1)*4
        for e in range(2):
            for i in range(4):
                A(f'v_fma_mix_f32 v{b+4*e+i}, v{b+4*e+i}, v{b+8+8*e+i}, v{b+8+8*e+4+i} op_sel_hi:[1,0,0]')
        for k in range(4):
            A(f'v_cvt_pk_bf16_f32 v{f+k}, v{b+2*k}, v{b+2*k+1}')
        A('s_nop 1')
        for qb in range(2):
            a = (qb*8 + s)*4
            c = '0' if s == 0 else vr(S + qb*16, 16)
            A(f'v_mfma_f32_32x32x16_bf16 {vr(S+qb*16,16)}, {vr(f,4)}, {ar(a,4)}, {c}')
    A('s_barrier')
    for a in range(4):
        for k in range(2):
            A(f'ds_read_b128 v[{VSC+a*8+4*k}:{VSC+a*8+4*k+3}], v25 offset:{a*64 + k*16}')
    A('s_nop 4')
    T = [24, 25]; T2 = [26, 27]; AL = [28, 30]; Mx = [M0_, M1_]; Lx = [L0_, L1_]
    for qb in range(2):
        A(f'v_max3_f32 v{T[qb]}, v{S+qb*16}, v{S+qb*16+1}, v{S+qb*16+2}')
    for i in range(3, 15, 2):
        for qb in range(2):
            A(f'v_max3_f32 v{T[qb]}, v{T[qb]}, v{S+qb*16+i}, v{S+qb*16+i+1}')
    for qb in range(2): A(f'v_max_f32 v{T[qb]}, v{T[qb]}, v{S+qb*16+15}')
    for qb in range(2): A(f'v_mov_b32 v{T2[qb]}, v{T[qb]}')
    A('s_nop 1')
    for qb in range(2): A(f'v_permlane32_swap_b32 v{T[qb]}, v{T2[qb]}')
    for qb in range(2): A(f'v_max_f32 v{T[qb]}, v{T[qb]}, v{T2[qb]}')
    for qb in range(2): A(f'v_mul_f32 v{T[qb]}, s52, v{T[qb]}')
    for qb in range(2): A(f'v_max_f32 v{T[qb]}, v{T[qb]}, v{Mx[qb]}')
    for qb in range(2): A(f'v_sub_f32 v{AL[qb]}, v{Mx[qb]}, v{T[qb]}')
    for qb in range(2): A(f'v_exp_f32 v{AL[qb]}, v{AL[qb]}')
    for qb in range(2): A(f'v_mov_b32 v{Mx[qb]}, v{T[qb]}')
    for qb in range(2): A(f'v_mul_f32 v{Lx[qb]}, v{Lx[qb]}, v{AL[qb]}')
    for qb in range(2):
        for i in range(16): A(f'v_fma_f32 v{S+qb*16+i}, v{S+qb*16+i}, s52, -v{Mx[qb]}')
        for i in range(16): A(f'v_exp_f32 v{S+qb*16+i}, v{S+qb*16+i}')
    A('s_cmp_eq_u32 s50, 63')
    A('s_cbranch_scc1 L_skipBc')
    A('s_barrier')
    A.label('L_skipBc')
    for qb in range(2):
        for k in range(8):
            A(f'v_cvt_pk_bf16_f32 v{P+qb*8+k}, v{S+qb*16+2*k}, v{S+qb*16+2*k+1}')
        for i in range(0, 8, 2):
            A(f'v_pk_add_f32 {vr(S+qb*16+i,2)}, {vr(S+qb*16+i,2)}, {vr(S+qb*16+8+i,2)}')
        for i in range(0, 4, 2):
            A(f'v_pk_add_f32 {vr(S+qb*16+i,2)}, {vr(S+qb*16+i,2)}, {vr(S+qb*16+4+i,2)}')
        A(f'v_pk_add_f32 {vr(S+qb*16,2)}, {vr(S+qb*16,2)}, {vr(S+qb*16+2,2)}')
        A(f'v_add_f32 v{Lx[qb]}, v{Lx[qb]}, v{S+qb*16}')
        A(f'v_add_f32 v{Lx[qb]}, v{Lx[qb]}, v{S+qb*16+1}')
    for qb in range(2):
        for i in range(0, 64, 2):
            r = O + qb*64 + i
            A(f'v_pk_mul_f32 {vr(r,2)}, {vr(r,2)}, {vr(AL[qb],2)} op_sel_hi:[1,0]')
    A('s_waitcnt lgkmcnt(0)')
    stamp(3, stamps == 5)
    if stamps == 5: A('s_waitcnt lgkmcnt(0)')
    A('s_barrier')
    stamp(1, stamps == 5)
    if stamps == 5: A('s_waitcnt lgkmcnt(0)')
    def vread(t):
        a, b = t >> 2, t & 3
        A(f'ds_read_b128 {vr(VRAW+4*t,4)}, v{VA} offset:{(8*a+b)*512}')
    def vdeq(t):
        a, b = t >> 2, t & 3
        for j in range(4):
            r = VRAW + 4*t + j
            A(f'v_fma_mix_f32 v{r}, v{r}, v{VSC+a*8+b}, v{VSC+a*8+4+b} op_sel_hi:[1,0,0]')
    def vpack(u, j):
        f = VFRAG + (j & 1)*4
        for i in range(4):
            t = 8*u + 2*i
            A(f'v_cvt_pk_bf16_f32 v{f+i}, v{VRAW+4*t+j}, v{VRAW+4*(t+1)+j}')
    def vmfma(u, j, qb):
        f = VFRAG + (j & 1)*4
        A(f'v_mfma_f32_32x32x16_bf16 {vr(Oreg(qb,j),16)}, {vr(f,4)}, {vr(P+qb*8+u*4,4)}, {vr(Oreg(qb,j),16)}')
    for t in range(15): vread(t)
    A('s_waitcnt lgkmcnt(14)')
    vread(15)
    vdeq(0)
    for t in range(1, 8):
        A(f's_waitcnt lgkmcnt({15-t})')
        vdeq(t)
    for j in range(4):
        vpack(0, j)
        A(f's_waitcnt lgkmcnt({15-(8+2*j)})')
        vdeq(8 + 2*j)
        vmfma(0, j, 0)
        A(f's_waitcnt lgkmcnt({15-(9+2*j)})')
        vdeq(9 + 2*j)
        vmfma(0, j, 1)
    vpack(1, 0)
    for j in range(4):
        if j == 0: A('s_nop 1')
        vmfma(1, j, 0)
        if j < 3: vpack(1, j+1)
        vmfma(1, j, 1)
        if j < 3: A('s_nop 0')
    A('s_add_u32 s50, s50, 3')
    A('s_cmp_ge_u32 s50, 64')
    A('s_cbranch_scc1 L_cdone')
    A('s_barrier')
    if ctl:
        A('s_cmp_lg_u32 s3, 2')
        A('s_cbranch_scc1 L_noMark')
        A('s_mov_b32 s82, s80')
        A('s_memrealtime s[80:81]')
        A('v_accvgpr_read_b32 v80, a65')
        A('s_mov_b64 exec, 0xffff')
        A('v_add_u32 v80, s85, v80')
        A('s_add_u32 s85, s85, 4352')
        A('global_load_dword v81, v80, s[22:23] sc1')
        A('s_mov_b64 exec, -1')
        A.label('L_noMark')
    A('s_cmp_eq_u32 s50, 3')
    A('s_cbranch_scc1 L_tile')
    A('s_barrier')
    if ctl:
        A('s_cmp_lg_u32 s3, 2')
        A('s_cbranch_scc1 L_noCtl')
        A('s_waitcnt lgkmcnt(0)')
        A('s_sub_u32 s83, s80, s78')
        A('s_sub_u32 s47, s82, s78')
        A('v_add_u32 v80, 4352, v80')
        A('v_mov_b32 v82, s80')
        A('s_waitcnt vmcnt(0)')
        A('s_cmp_lg_u32 s87, 5')
        A('s_cbranch_scc1 L_noPub')
        A('s_mov_b64 exec, s[90:91]')
        A('global_store_dword v80, v82, s[22:23] sc1')
        A('s_mov_b64 exec, -1')
        A.label('L_noPub')
        A('s_cmp_eq_u32 s50, 5')
        A('s_cbranch_scc1 L_tile')
        A('v_subrev_u32 v81, s78, v81')
        A('v_min_u32 v81, s83, v81')
        A(f'v_mov_b32 v83, {WCTL}')
        A('s_nop 0')
        for sh in (1, 2, 4, 8):
            A(f'v_add_u32_dpp v81, v81, v81 row_ror:{sh} row_mask:0xf bank_mask:0xf')
            A('s_nop 1')
        A('v_readfirstlane_b32 s48, v81')
        A('s_lshl_b32 s47, s47, 4')
        A('s_lshl_b32 s83, s83, 4')
        A('s_sub_i32 s47, s47, s48')
        A('s_add_i32 s84, s84, s47')
        if pred:
            A('s_sub_u32 s49, s48, s88')
            A('s_mov_b32 s88, s48')
            A('s_min_u32 s51, s49, s89')
            A('s_mov_b32 s89, s49')
            A('s_add_u32 s48, s48, s51')
            A('s_sub_i32 s48, s83, s48')
            A('s_cmp_le_u32 s50, 8')
            A('s_cselect_b32 s47, s47, s48')
        A(f's_max_i32 s84, s84, {-(6*8192)//max(ki,1)}'); A(f's_min_i32 s84, s84, {(6*8192)//max(ki,1)}')
        A(f's_mul_i32 s47, s47, {kp}')
        A(f's_mul_i32 s48, s84, {ki}')
        A('s_add_i32 s47, s47, s48')
        A(f's_add_i32 s47, s47, {W*8192 + 4096}')
        A('s_ashr_i32 s47, s47, 13')
        A(f's_max_i32 s47, s47, {Wmin}'); A(f's_min_i32 s47, s47, {Wmax}')
        if ctl == 2: A(f's_mov_b32 s47, {W}')
        A('v_mov_b32 v81, s47')
        A('ds_write_b32 v83, v81')
        A('s_waitcnt lgkmcnt(0)')
        A('s_branch L_tile')
        A.label('L_noCtl')
    A('s_cmp_lg_u32 s50, 4')
    A('s_cbranch_scc1 L_noAnn')
    A('s_cmp_lg_u32 s2, 0')
    A('s_cbranch_scc1 L_tile')
    A('v_mov_b32 v80, 0')
    A('v_mov_b32 v81, 1')
    A('s_waitcnt vmcnt(0)')
    A('s_mov_b64 exec, 1')
    A('global_store_dword v80, v81, s[20:21] sc1')
    A('s_mov_b64 exec, -1')
    A.label('L_noAnn')
    A('s_cmp_lg_u32 s50, 40')
    A('s_cbranch_scc1 L_tile')
    A('v_mov_b32 v80, 0')
    A('global_load_dword a64, v80, s[20:21] sc1')
    A('s_branch L_tile')

    A.label('L_cdone')
    A('s_cmp_eq_u32 s3, 0')
    A('s_cbranch_scc1 L_dump')
    A('s_barrier')
    A('s_cmp_lg_u32 s3, 1')
    A('s_cbranch_scc1 L_dump')
    A('v_mov_b32 v80, 0')
    A('s_mov_b32 s48, 0x100000')
    A.label('L_annWait')
    A('s_waitcnt vmcnt(0)')
    A('v_accvgpr_read_b32 v81, a64')
    A('s_sub_u32 s48, s48, 1')
    A('s_cbranch_scc1 L_dump')
    A('v_readfirstlane_b32 s47, v81')
    A('s_nop 1')
    A('s_cmp_lg_u32 s47, 0')
    A('s_cbranch_scc1 L_dump')
    A('global_load_dword a64, v80, s[20:21] sc1')
    A('s_branch L_annWait')
    A.label('L_dump')
    stamp(4, stamps == 5)
    A('v_mbcnt_lo_u32_b32 v8, -1, 0')
    A('v_mbcnt_hi_u32_b32 v8, -1, v8')
    A('v_lshlrev_b32 v9, 3, v8')
    A('s_lshl_b32 s47, s3, 10')
    A(f's_add_u32 s47, s47, {STATS}')
    A('v_add_u32 v9, s47, v9')
    A('v_lshlrev_b32 v10, 4, v8')
    A('v_add_u32 v10, s46, v10')
    for qb in range(2): A(f'v_mov_b32 v{12+qb}, v{Lx[qb]}')
    A('s_nop 1')
    for qb in range(2): A(f'v_permlane32_swap_b32 v{Lx[qb]}, v{12+qb}')
    for qb in range(2):
        A(f'v_mov_b32 v{16+2*qb}, v{Mx[qb]}')
        A(f'v_add_f32 v{17+2*qb}, v{Lx[qb]}, v{12+qb}')
    for qb in range(2):
        A(f'ds_write_b64 v9, v[{16+2*qb}:{17+2*qb}] offset:{qb*512}')
    for qb in range(2):
        for a in range(4):
            for j in range(4):
                blk = (qb*2 + (a >> 1))*8 + (a & 1)*4 + j
                A(f'ds_write_b128 v10, {vr(Oreg(qb,j)+4*a,4)} offset:{blk*1024}')
    A('s_waitcnt lgkmcnt(0)')
    A('s_cmp_lg_u32 s3, 1')
    A('s_cbranch_scc1 L_epilogue')
    A('s_barrier'); A('s_barrier')

    A.label('L_epilogue')
    A('v_mbcnt_lo_u32_b32 v0, -1, 0')
    A('v_mbcnt_hi_u32_b32 v0, -1, v0')
    A('s_and_b32 s43, s40, 3')
    A('s_add_u32 s55, s43, s3'); A('s_add_u32 s55, s55, 1'); A('s_and_b32 s55, s55, 3')
    A('s_lshr_b32 s47, s55, 1')
    A('s_lshl_b32 s47, s47, 9')
    A(f's_add_u32 s47, s47, {STATS}')
    A('v_lshlrev_b32 v5, 3, v0')
    A('v_add_u32 v1, s47, v5')
    A('s_lshl_b32 s47, s55, 13')
    A('v_lshlrev_b32 v2, 4, v0')
    A('v_add_u32 v3, s47, v2')
    A('v_add_u32 v4, 0x10000, v3')
    A('s_lshl_b32 s56, s41, 2'); A('s_or_b32 s56, s56, s55')
    A('s_lshl_b32 s42, s56, 15')
    srd(A, 24, 22, 's42', 32768)
    A('s_lshl_b32 s42, s56, 11')
    A(f's_add_u32 s42, s42, {WS_STATS}')
    srd(A, 28, 22, 's42', 2048)
    if fsep: A('s_lshl_b32 s42, s56, 9')
    else: A('s_lshl_b32 s42, s41, 8'); A('s_lshl_b32 s48, s55, 4'); A('s_add_u32 s42, s42, s48')
    A(f's_add_u32 s42, s42, {WS_FLAGS}')
    A(f'v_lshlrev_b32 v7, {7 if fsep else 2}, v0')
    A('v_add_u32 v7, s42, v7')
    stamp(5, stamps == 5)
    if stamps == 5: A('s_waitcnt lgkmcnt(0)')
    A('s_barrier')
    stamp(3, stamps == 4)
    for c in range(3):
        A(f'ds_read_b64 v[{8+2*c}:{9+2*c}], v1 offset:{c*1024}')
    if stamps == 4: A('s_waitcnt lgkmcnt(0)')
    R = 32
    def dread(c, i):
        if c < 2: A(f'ds_read_b128 {vr(R+c*32+4*i,4)}, v3 offset:{c*32768 + i*1024}')
        else: A(f'ds_read_b128 {vr(R+c*32+4*i,4)}, v4 offset:{i*1024}')
    for i in range(4):
        for c in range(3): dread(c, i)
    A('s_waitcnt lgkmcnt(12)')
    A('v_max3_f32 v14, v8, v10, v12')
    for c in range(3): A(f'v_sub_f32 v{16+2*c}, v{8+2*c}, v14')
    for c in range(3): A(f'v_exp_f32 v{16+2*c}, v{16+2*c}')
    A('s_nop 0')
    A('v_mul_f32 v15, v9, v16')
    A('v_fmac_f32 v15, v11, v18')
    A('v_fmac_f32 v15, v13, v20')
    A('s_lshl_b32 s57, s43, 13')
    A('s_lshl_b32 s58, s43, 9')
    def merge(i):
        if i < 4:
            A(f's_waitcnt lgkmcnt(9)')
            for c in range(3): dread(c, i+4)
        else:
            A(f's_waitcnt lgkmcnt({3*(7-i)})')
        for k in range(0, 4, 2):
            r = R + 4*i + k
            A(f'v_pk_mul_f32 {vr(r,2)}, {vr(r,2)}, v[16:17] op_sel_hi:[1,0]')
            A(f'v_pk_fma_f32 {vr(r,2)}, {vr(r+32,2)}, v[18:19], {vr(r,2)} op_sel_hi:[1,0,1]')
            A(f'v_pk_fma_f32 {vr(r,2)}, {vr(r+64,2)}, v[20:21], {vr(r,2)} op_sel_hi:[1,0,1]')
    A('s_cmp_eq_u32 s3, 3')
    A('s_cbranch_scc1 L_recv')
    A('buffer_store_dwordx2 v[14:15], v5, s[28:31], s58 offen sc1')
    for i in range(8):
        merge(i)
        if i == 4: A('s_add_u32 s57, s57, 4096')
        A(f'buffer_store_dwordx4 {vr(R+4*i,4)}, v2, s[24:27], s57 offen offset:{(i&3)*1024} sc1')
    A('v_mov_b32 v6, 1')
    A('s_lshl_b64 s[58:59], 1, s43')
    stamp(6, stamps == 5)
    A('s_waitcnt vmcnt(0)')
    stamp(2, stamps == 5)
    A('s_mov_b64 exec, s[58:59]')
    A('global_store_dword v7, v6, s[22:23] sc1')
    A('s_mov_b64 exec, -1')
    A('s_branch L_fin')
    A.label('L_recv')
    for i in range(8): merge(i)
    stamp(4, stamps == 4)
    A('s_lshl_b32 s42, s41, 14')
    A('s_lshr_b32 s56, s55, 1'); A('s_lshl_b32 s56, s56, 13')
    A('s_add_u32 s42, s42, s56')
    srd(A, 32, 18, 's42', 8192)
    A('s_and_b32 s56, s55, 1'); A('s_lshl_b32 s56, s56, 7')
    A('v_and_b32 v4, 31, v0'); A('v_lshlrev_b32 v4, 8, v4')
    A('v_lshrrev_b32 v3, 5, v0'); A('v_lshl_or_b32 v4, v3, 5, v4')
    D = 128
    A('s_lshl_b32 s48, 1, s43')
    A('s_mov_b32 s49, 0x100000')
    A.label('L_poll')
    A('s_mov_b64 exec, 15')
    A(f'global_load_dword v6, v7, s[22:23] {pflags}')
    A('s_waitcnt vmcnt(0)')
    A('v_cmp_ne_u32 vcc, 0, v6')
    A('s_mov_b64 exec, -1')
    A('s_sub_u32 s49, s49, 1')
    A('s_cbranch_scc1 L_final')
    A('s_andn2_b32 s47, vcc_lo, s48')
    A('s_cbranch_scc0 L_poll')
    A('s_or_b32 s48, s48, s47')
    for k in range(3):
        A(f's_add_u32 s51, s43, {k+1}'); A('s_and_b32 s51, s51, 3')
        A('s_bitcmp1_b32 s47, s51')
        A(f's_cbranch_scc0 L_skip{k}')
        A('s_lshl_b32 s57, s51, 9')
        A(f'buffer_load_dwordx2 v[{224+2*k}:{225+2*k}], v5, s[28:31], s57 offen sc1')
        A('s_lshl_b32 s57, s51, 13')
        for i in range(8):
            if i == 4: A('s_add_u32 s57, s57, 4096')
            A(f'buffer_load_dwordx4 {vr(D+32*k+4*i,4)}, v2, s[24:27], s57 offen offset:{(i&3)*1024} sc1')
        A.label(f'L_skip{k}')
    A('s_cmp_lg_u32 s48, 15')
    A('s_cbranch_scc1 L_poll')
    A.label('L_final')
    stamp(5, stamps == 4)
    A('s_waitcnt vmcnt(8)')
    A('v_max3_f32 v8, v224, v226, v228'); A('v_max_f32 v8, v8, v14')
    A('v_sub_f32 v16, v14, v8')
    for k in range(3): A(f'v_sub_f32 v{18+2*k}, v{224+2*k}, v8')
    for k in range(4): A(f'v_exp_f32 v{16+2*k}, v{16+2*k}')
    A('s_nop 0')
    A('v_mul_f32 v9, v15, v16')
    for k in range(3): A(f'v_fmac_f32 v9, v{225+2*k}, v{18+2*k}')
    A('v_rcp_f32 v9, v9')
    A('s_nop 0')
    for k in range(4): A(f'v_mul_f32 v{16+2*k}, v{16+2*k}, v9')
    for aa in range(2):
        if aa == 0: A('s_waitcnt vmcnt(4)')
        else: A('s_waitcnt vmcnt(2)')
        for x in range(aa*16, aa*16+16, 2):
            A(f'v_pk_mul_f32 {vr(R+x,2)}, {vr(R+x,2)}, v[16:17] op_sel_hi:[1,0]')
            for k in range(3):
                A(f'v_pk_fma_f32 {vr(R+x,2)}, {vr(D+32*k+x,2)}, {vr(18+2*k,2)}, {vr(R+x,2)} op_sel_hi:[1,0,1]')
        for k in range(8):
            b, j = k >> 1, 2*(k & 1)
            A(f'v_cvt_pk_bf16_f32 v{64+aa*8+k}, v{R+aa*16+4*j+b}, v{R+aa*16+4*(j+1)+b}')
        A(f'buffer_store_dwordx4 {vr(64+aa*8,4)}, v4, s[32:35], s56 offen offset:{aa*64} {oflags}')
        A(f'buffer_store_dwordx4 {vr(64+aa*8+4,4)}, v4, s[32:35], s56 offen offset:{aa*64+16} {oflags}')
    stamp(6, stamps == 4)
    A.label('L_fin')
    if diag:
        A('s_waitcnt vmcnt(0)')
        A('s_memrealtime s[84:85]')
        A('v_mov_b32 v18, 128')
        A('global_load_dword v17, v18, s[20:21] sc1')
        A('s_waitcnt vmcnt(0) lgkmcnt(0)')
        A('v_readfirstlane_b32 s81, v17')
        A('s_nop 1')
        A('s_not_b32 s81, s81')
        A('s_mov_b32 s86, 0')
        A('s_cmp_lg_u32 s3, 3')
        A('s_cbranch_scc1 L_dg')
        if diag == 'tail': A('s_sub_u32 s86, s84, s82'); A('s_mul_i32 s86, s86, 10')
        if diag == 'send': A('s_sub_u32 s86, s82, s81'); A('s_sub_u32 s86, s86, 6500'); A('s_mul_i32 s86, s86, 10')
        if diag == 'fin': A('s_sub_u32 s86, s84, s81'); A('s_sub_u32 s86, s86, 6500'); A('s_mul_i32 s86, s86, 10')
        if diag == 'sendmin': A('s_sub_u32 s86, s82, s81'); A('s_sub_u32 s86, 9000, s86'); A('s_mul_i32 s86, s86, 10')
        A('s_min_u32 s86, s86, 100000')
        A.label('L_dg')
        A('s_add_u32 s86, s86, 10000')
        A.label('L_spin')
        A('s_memrealtime s[78:79]')
        A('s_waitcnt lgkmcnt(0)')
        A('s_sub_u32 s80, s78, s81')
        A(f's_cmp_lt_u32 s80, s86')
        A('s_cbranch_scc1 L_spin')
    if stamps:
        A('s_waitcnt vmcnt(0)')
        stamp(2, stamps != 5)
        A('s_waitcnt lgkmcnt(0)')
        A(f's_cmp_lg_u32 s3, {0 if stamps == 5 else 3}')
        A('s_cbranch_scc1 L_end')
        A('s_getreg_b32 s74, hwreg(HW_REG_XCC_ID)')
        A(f's_mov_b32 s75, {7 if stamps >= 4 else 4 if stamps == 2 else 3}')
        for i in range(16): A(f'v_mov_b32 v{8+i}, s{60+i}')
        A('s_lshl_b32 s42, s2, 6')
        A('s_add_u32 s42, s42, 0x10000000')
        A('v_mov_b32 v1, s42')
        A('s_mov_b64 exec, 1')
        for i in range(4): A(f'global_store_dwordx4 v1, v[{8+4*i}:{11+4*i}], s[22:23] offset:{16*i}')
        if stamps == 3:
            A('s_mov_b64 exec, -1')
            A('s_lshl_b32 s42, s2, 8')
            A('s_add_u32 s42, s42, 0x11000000')
            A('v_lshlrev_b32 v1, 2, v0')
            A('v_add_u32 v1, s42, v1')
            A('global_store_dword v1, v240, s[22:23]')
            A('v_add_u32 v1, 0x10000, v1')
            A('global_store_dword v1, v241, s[22:23]')
    A.label('L_end')
    A('s_endpgm')

    A('.section .rodata,"a"')
    A('.p2align 6')
    A(f'.amdhsa_kernel {main}')
    for l in ['.amdhsa_next_free_vgpr 328', '.amdhsa_next_free_sgpr 96', '.amdhsa_accum_offset 256',
              '.amdhsa_group_segment_fixed_size 0', '.amdhsa_kernarg_size 80', '.amdhsa_user_sgpr_count 2',
              '.amdhsa_user_sgpr_kernarg_segment_ptr 1', '.amdhsa_system_sgpr_workgroup_id_x 1',
              '.amdhsa_float_denorm_mode_32 3', '.amdhsa_float_denorm_mode_16_64 3']:
        A.lines.append('  ' + l)
    A('.end_amdhsa_kernel')
    return A.text()

if __name__ == '__main__':
    kw = eval('dict(' + (sys.argv[2] if len(sys.argv) > 2 else '') + ')')
    t = gen(**kw)
    errs = check_hazards(t)
    for e in errs: print('HAZARD', e)
    out = sys.argv[1] if len(sys.argv) > 1 and sys.argv[1] != '-' else f'cdna_kernels/{NAME}.s'
    open(out, 'w').write(t)
    import subprocess
    r = subprocess.run(['clang', '-x', 'assembler', '-target', 'amdgcn-amd-amdhsa', '-mcpu=gfx950', '-c', out, '-o', 'chk.o'], capture_output=True, text=True)
    print('wrote', out, len(t), 'bytes', 'hazards', len(errs), 'asm rc', r.returncode, r.stderr[:1500])
```

```python
import sys, math, struct
sys.path.insert(0, 'gen')
from asmlib import *

NAME = 'standalone__kv_cache_quant_int4_int2_kv_with_per_channel_or_per_token_scales__sampling'
HEADER = open(f'cdna_kernels/{NAME}.s.ref').read().split('; Override launch geometry')[0]

SLOT = 16384
RING = 6*SLOT
KS_T = RING
VS_T = RING + 16384
QST = RING + 32768
STATS = QST + 16384
WCTL = STATS + 3072
LDS_BYTES = STATS + 4096
STG = 5*SLOT
WS_STATS = 0x800000
WS_FLAGS = 0x900000
WS_CTR = 0xa00000

CSCALE = (128.0 ** -0.5) * math.log2(math.e)
def f2u(x): return struct.unpack('<I', struct.pack('<f', x))[0]

KBASE, KSA, VA, VSA, M0_, M1_, L0_, L1_ = 0, 1, 2, 3, 4, 5, 6, 7
P = 8; KADDR = 8; KFRAG = 16; VFRAG = 24
VSC = 32; KST = (32, 56); VRAW = 64; S = 96; O = 128
def Oreg(qb, j): return O + (qb*4 + j)*16

def srd(A, d, base_lo, off_lo, nbytes):
    A(f's_add_u32 s{d}, s{base_lo}, {off_lo}')
    A(f's_addc_u32 s{d+1}, s{base_lo+1}, 0')
    A(f's_and_b32 s{d+1}, s{d+1}, 0xffff')
    A(f's_mov_b32 s{d+2}, {nbytes}')
    A(f's_mov_b32 s{d+3}, 0x20000')

def gen(W=17, flags='nt', stamps=0, wgmap=0, qflags='', sflags='nt', oflags='', diag='', ctl=1, Wmin=10, Wmax=24,
        kp=12, ki=2, fsep=1, pflags='sc1', greedy=0, Wst=16, exp='', G=4, pred=1, rot=None, phi=None, warm='', warmat=52):
    if not ctl: Wmin = Wmax = W
    A = Asm()
    A.lines += HEADER.rstrip('\n').split('\n')
    main = NAME + '_kernel'
    A(f'; @launch grid=(256,1,1) block=(256,1,1) lds={LDS_BYTES}')
    A('.amdgcn_target "amdgcn-amd-amdhsa--gfx950"')
    A('.text')
    A(f'.globl {main}')
    A('.p2align 8')
    A(f'.type {main},@function')
    A(f'{main}:')
    def stamp(i, cond=True):
        if stamps and cond: A(f's_memrealtime s[{60+2*i}:{61+2*i}]')
    A('s_cmp_ge_u32 s2, 256')
    A('s_cbranch_scc1 L_end')
    stamp(0)
    if diag: A('s_memrealtime s[76:77]')
    A('s_load_dwordx16 s[4:19], s[0:1], 0')
    A('s_load_dwordx4 s[20:23], s[0:1], 64')
    A('v_lshrrev_b32 v1, 6, v0')
    A('v_and_b32 v0, 63, v0')
    A('v_readfirstlane_b32 s3, v1')
    if wgmap == 0:
        A('s_mov_b32 s40, s2')
    elif wgmap == 1:
        A('s_and_b32 s40, s2, 7'); A('s_lshl_b32 s40, s40, 2')
        A('s_lshr_b32 s41, s2, 3'); A('s_and_b32 s41, s41, 3'); A('s_or_b32 s40, s40, s41')
        A('s_and_b32 s41, s2, 0xe0'); A('s_or_b32 s40, s40, s41')
    elif wgmap == 2:
        A('s_and_b32 s40, s2, 7'); A('s_lshl_b32 s40, s40, 5')
        A('s_lshr_b32 s41, s2, 3'); A('s_or_b32 s40, s40, s41')
    A('s_lshr_b32 s41, s40, 2')
    if rot:
        A(f's_mul_i32 s38, s2, {rot[0]}'); A(f's_lshr_b32 s38, s38, {rot[1]}'); A(f's_and_b32 s38, s38, {rot[2]}')
    else: A('s_mov_b32 s38, 0')
    A('s_cmp_lg_u32 s3, 3')
    A('s_cbranch_scc1 L_consumer')

    A('v_lshlrev_b32 v16, 4, v0')
    A('s_lshl_b32 s42, s40, 12')
    A('v_add_u32 v17, s42, v16')
    A('v_lshrrev_b32 v1, 4, v0')
    A('v_and_b32 v2, 15, v0')
    A('v_xor_b32 v2, v2, v1')
    A('v_lshlrev_b32 v2, 4, v2')
    A('v_lshl_or_b32 v2, v1, 8, v2')
    A('s_lshl_b32 s43, s41, 14')
    A('v_add_u32 v20, s43, v2')
    for jj in range(1, 4):
        A(f'v_xor_b32 v{20+jj}, {4*jj*16}, v20')
    A('v_lshrrev_b32 v1, 5, v0')
    A('v_and_b32 v2, 31, v0')
    A('v_xor_b32 v2, v2, v1')
    A('v_lshlrev_b32 v2, 4, v2')
    A('v_lshl_or_b32 v8, v1, 9, v2')
    if phi:
        A(f's_mul_i32 s37, s2, {phi[0]}'); A(f's_lshr_b32 s37, s37, {phi[1]}'); A(f's_and_b32 s37, s37, 3')
        A('s_and_b32 s36, s37, 1'); A('s_lshl_b32 s36, s36, 7'); A('v_xor_b32 v8, s36, v8')
        A('s_lshl_b32 s32, s37, 12')
        for g in range(1, 4): A(f's_xor_b32 s{32+g}, s32, {g*4096}')
    for j in range(1, 8):
        A(f'v_xor_b32 v{8+j}, {2*j*16}, v8')
    A('s_lshl_b32 s42, s40, 20')
    A(f's_mov_b32 m0, {STG}')
    A('s_waitcnt lgkmcnt(0)')
    def pre(g, idx, w, st=None, last=False):
        bg = max(0, (w - 16 + 3) // 4)
        if last:
            if g == 0: A('s_waitcnt vmcnt(16)'); A('s_barrier')
            elif not greedy: A(f's_waitcnt vmcnt({w})')
            return
        if idx*16 + g*4 > w: A(f's_waitcnt vmcnt({w})')
        if g == bg and idx >= 2:
            if st is not None: stamp(st, stamps == 2)
            A('s_barrier')
    for g in range(4):
        if g: A(f's_mov_b32 m0, {STG + g*4096}')
        pre(g, 0, Wst)
        if g: A('s_nop 0')
        for i in range(4):
            A(f'global_load_lds_dwordx4 v17, s[{10+2*g}:{11+2*g}] offset:{i*1024} {sflags}')
    for g in range(4):
        A(f's_mov_b32 m0, {QST + g*4096}')
        pre(g, 1, Wst)
        A('s_nop 0')
        for i in range(4):
            A(f'global_load_lds_dwordx4 v{20+i}, s[4:5] offset:{i*1024} {qflags}')
        if g < 3:
            A('s_add_u32 s4, s4, 4096'); A('s_addc_u32 s5, s5, 0')
        if g == 0:
            srd(A, 24, 6, 's42', 1 << 20)
            srd(A, 28, 8, 's42', 1 << 20)
    def slot(kind, w, st=None, last=False, rd=False, GG=4):
        so, lb, sd = (44, 46, 's[24:27]') if kind == 'K' else (45, 47, 's[28:31]')
        bi = max(0, (w - 16 + GG - 1) // GG * GG)
        assert bi < 16
        for jj in range(16):
            g, i = jj >> 2, jj & 3
            if i == 0:
                go = f's{32+g}' if phi else g*4096
                A(f's_add_u32 m0, s{lb}, {go}')
                A(f's_add_u32 s48, s{so}, {go}')
                if rd and g == 3: A('ds_read_b32 v30, v31')
            if last:
                if jj == 0: A('s_waitcnt vmcnt(16)'); A('s_barrier')
                elif not greedy and jj % GG == 0: A(f's_waitcnt vmcnt({w})')
            else:
                if jj % GG == 0: A(f's_waitcnt vmcnt({w})')
                if jj == bi:
                    if st is not None: stamp(st, stamps == 2)
                    A('s_barrier')
            vo = 8 + (jj & 7) if kind == 'K' else 16
            A(f'buffer_load_dwordx4 v{vo}, {sd}, s48 offen offset:{i*1024} {flags} lds')
    def adv(kind):
        so, lb = (44, 46) if kind == 'K' else (45, 47)
        A(f's_add_u32 s{so}, s{so}, {SLOT}')
        if rot: A(f's_and_b32 s{so}, s{so}, 0xfffff')
        A(f's_add_u32 s{lb}, s{lb}, {2*SLOT}')
        A(f's_cmp_ge_u32 s{lb}, {RING}')
        A(f's_cselect_b32 s49, {RING}, 0')
        A(f's_sub_u32 s{lb}, s{lb}, s49')
    A('s_lshl_b32 s44, s38, 14'); A('s_mov_b32 s45, s44'); A('s_mov_b32 s46, 0'); A(f's_mov_b32 s47, {SLOT}')
    A(f'v_mov_b32 v31, {WCTL}')
    slot('K', Wst, 3); adv('K')
    A(f's_mov_b32 s50, 63')
    if stamps == 3: A('s_memrealtime s[88:89]'); A(f's_mov_b32 s93, {W}')
    order = sorted(range(Wmin, Wmax+1), key=lambda w: (abs(w - W), w))
    for n, w in enumerate(order):
        A.label(f'L_it{w}')
        slot('K', w, GG=G)
        slot('V', w, rd=bool(ctl), GG=G)
        if n == 0:
            A.label('L_next')
            adv('K'); adv('V')
            if stamps == 3:
                A('s_waitcnt lgkmcnt(0)')
                A('s_mov_b32 m0, s50')
                A('s_nop 0')
                A('v_writelane_b32 v240, s88, m0')
                A('v_writelane_b32 v241, s93, m0')
            A('s_sub_u32 s50, s50, 1')
            A('s_cmp_eq_u32 s50, 0')
            A('s_cbranch_scc1 L_lastslot')
            if ctl:
                A('s_waitcnt lgkmcnt(0)')
                A('v_readfirstlane_b32 s93, v30')
                if stamps == 3: A('s_memrealtime s[88:89]')
                else: A('s_nop 0')
                for w2 in order[:-1]:
                    A(f's_cmp_eq_u32 s93, {w2}')
                    A(f's_cbranch_scc1 L_it{w2}')
            elif stamps == 3: A('s_memrealtime s[88:89]')
            A(f's_branch L_it{order[-1]}')
        else:
            A('s_branch L_next')
    A.label('L_lastslot')
    slot('V', W, last=True, GG=G)
    A('s_waitcnt vmcnt(16)'); A('s_barrier')
    A('s_waitcnt vmcnt(0) lgkmcnt(0)')
    if stamps: stamp(1); A('s_waitcnt lgkmcnt(0)')
    if diag: A('s_memrealtime s[82:83]'); A('s_waitcnt lgkmcnt(0)')
    A('s_barrier')
    A('s_branch L_epilogue')

    A.label('L_consumer')
    if ctl: A('s_memrealtime s[78:79]')
    A('v_and_b32 v8, 31, v0')
    A('v_lshrrev_b32 v9, 5, v0')
    A('v_lshlrev_b32 v10, 4, v0')
    A('v_lshlrev_b32 v14, 6, v0')
    A('s_lshl_b32 s46, s3, 15')
    A('v_and_b32 v12, 15, v8')
    A('v_xor_b32 v11, v12, v9')
    A('v_lshlrev_b32 v11, 4, v11')
    A('v_lshl_or_b32 v11, v8, 8, v11')
    A(f'v_add_u32 v11, {QST}, v11')
    A('v_mul_u32_u24 v13, 0x22100, v12')
    A('v_accvgpr_write_b32 a65, v13')
    A('v_lshlrev_b32 v13, 1, v9')
    A('v_xor_b32 v12, v12, v13')
    A('v_lshlrev_b32 v12, 4, v12')
    A('v_lshl_or_b32 v12, v8, 9, v12')
    A(f'v_lshlrev_b32 v{KSA}, 6, v9')
    A(f'v_add_u32 v{KSA}, {KS_T}, v{KSA}')
    A(f'v_lshlrev_b32 v{VA}, 4, v8')
    A(f'v_lshl_or_b32 v{VA}, v9, 11, v{VA}')
    A(f's_add_u32 s47, s46, {SLOT}')
    A(f'v_add_u32 v{VA}, s47, v{VA}')
    A(f'v_lshlrev_b32 v{VSA}, 5, v9')
    A(f'v_add_u32 v{VSA}, {VS_T}, v{VSA}')
    A(f'v_lshlrev_b32 v15, {11 if fsep else 8}, v0')
    A(f'v_add_u32 v15, {WS_FLAGS}, v15')
    for i in range(4): A(f'v_mov_b32 v{16+i}, 0')
    A(f'v_mov_b32 v20, {WCTL}')
    A(f'v_mov_b32 v21, {W}')
    A('s_waitcnt lgkmcnt(0)')
    A('ds_write_b32 v20, v21')
    A('s_lshl_b32 s47, s2, 2')
    A('s_or_b32 s39, s47, s3')
    A('s_cmp_lg_u32 s39, 1')
    A('s_cbranch_scc1 L_noReset')
    if fsep:
        for i in range(16):
            if (i >> 2) != (i & 3): A(f'global_store_dword v15, v16, s[22:23] offset:{128*i} sc1')
    else:
        for i in range(4): A(f'global_store_dwordx4 v15, v[16:19], s[22:23] offset:{16*i} sc1')
    A.label('L_noReset')
    if diag:
        A('s_cmp_lg_u32 s39, 0')
        A('s_cbranch_scc1 L_noDiag')
        A('s_not_b32 s80, s76')
        A('v_mov_b32 v22, s80')
        A('v_mov_b32 v23, 128')
        A('s_mov_b64 exec, 1')
        A('global_atomic_umax v23, v22, s[20:21]')
        A('s_mov_b64 exec, -1')
        A.label('L_noDiag')
    A(f'v_add_u32 v{KBASE}, s46, v12')
    A(f'v_mov_b32 v{M0_}, 0xff800000'); A(f'v_mov_b32 v{M1_}, 0xff800000')
    A(f'v_mov_b32 v{L0_}, 0'); A(f'v_mov_b32 v{L1_}, 0')
    for i in range(128): A(f'v_mov_b32 v{O+i}, 0')
    A(f's_mov_b32 s52, {hex(f2u(CSCALE))}')
    A('s_mov_b32 s53, 0x4b800000')
    A('s_mov_b32 s54, 0xffff0000')
    if ctl:
        A('s_mov_b32 s84, 0')
        A(f's_mov_b32 s85, {WS_CTR}')
        A('s_mov_b32 s80, 0')
        A('s_mov_b32 s88, 0')
        A('s_mov_b32 s89, -1')
        A('s_lshr_b32 s87, s2, 7'); A('s_lshl_b32 s87, s87, 3'); A('s_and_b32 s47, s2, 7'); A('s_or_b32 s87, s87, s47')
        A('s_lshl_b64 s[90:91], 1, s87')
        A('s_lshr_b32 s47, s2, 3'); A('s_and_b32 s87, s47, 15')
    A('s_mov_b32 s50, s3')
    A('s_waitcnt lgkmcnt(0)')
    A('s_barrier')
    A.label('L_tab')
    A('s_lshr_b32 s47, s50, 2'); A('s_lshl_b32 s47, s47, 12')
    A('s_lshl_b32 s48, s50, 10')
    A('s_add_u32 s47, s47, s48')
    A(f's_add_u32 s47, s47, {STG}')
    A('v_add_u32 v15, s47, v10')
    A('s_lshl_b32 s48, s50, 12')
    A(f's_add_u32 s48, s48, {KS_T}')
    A('ds_read_b128 v[64:67], v15')
    A('ds_read_b128 v[68:71], v15 offset:4096')
    A('v_add_u32 v13, s48, v14')
    A('s_waitcnt lgkmcnt(0)')
    sc, zr, t = 64, 68, 16
    for e in range(8):
        q, i = e >> 2, e & 3
        ds, dc = t + q*8 + i, t + q*8 + 4 + i
        if e & 1:
            A(f'v_and_b32 v{ds}, s54, v{sc + (e>>1)}'); A(f'v_and_b32 v{dc}, s54, v{zr + (e>>1)}')
        else:
            A(f'v_lshlrev_b32 v{ds}, 16, v{sc + (e>>1)}'); A(f'v_lshlrev_b32 v{dc}, 16, v{zr + (e>>1)}')
        A(f'v_mul_f32_e64 v{dc}, -v{dc}, v{ds}')
        A(f'v_mul_f32 v{ds}, s53, v{ds}')
    for k in range(4):
        A(f'ds_write_b128 v13, v[{t+4*k}:{t+4*k+3}] offset:{k*16}')
    A('s_add_u32 s50, s50, 3')
    A('s_cmp_lt_u32 s50, 8')
    A('s_cbranch_scc1 L_tab')
    for s in range(1, 8):
        A(f'v_xor_b32 v{32+s}, {2*s*16}, v11')
    A('s_waitcnt lgkmcnt(0)')
    A('s_barrier')
    for qb in range(2):
        for s in range(8):
            a = (qb*8 + s)*4
            if qb == 1 and s == 7: A('s_waitcnt lgkmcnt(8)')
            A(f'ds_read_b128 a[{a}:{a+3}], v{32+s if s else 11} offset:{qb*8192}')
    A('s_mov_b32 s50, s3')
    A('s_waitcnt lgkmcnt(0)')
    A('s_cmp_eq_u32 s3, 0')
    A('s_cbranch_scc1 L_tile')
    A('s_barrier')
    A('s_cmp_eq_u32 s3, 1')
    A('s_cbranch_scc1 L_tile')
    A('s_barrier'); A('s_barrier')

    A.label('L_tile')
    A('s_add_u32 s49, s50, s38')
    A('s_and_b32 s49, s49, 63')
    A('s_lshr_b32 s51, s49, 2')
    A('s_lshl_b32 s51, s51, 10')
    A('s_lshl_b32 s49, s49, 8')
    A(f'v_add_u32 v25, s49, v{VSA}')
    KSCUR = 24
    A(f'v_add_u32 v{KSCUR}, s51, v{KSA}')
    A(f'v_mov_b32 v{KADDR}, v{KBASE}')
    for x in range(1, 8):
        s3_, e = x >> 1, x & 1
        A(f'v_xor_b32 v{KADDR+x}, {(4*s3_+e)*16}, v{KBASE}')
    def kscale_reads(s):
        b = KST[s & 1]
        for k in range(4):
            A(f'ds_read_b128 v[{b+8+4*k}:{b+8+4*k+3}], v{KSCUR} offset:{s*128 + k*16}')
    def kraw_reads(s):
        b = KST[s & 1]
        for e in range(2):
            A(f'ds_read_b128 v[{b+4*e}:{b+4*e+3}], v{KADDR + (s&3)*2 + e} offset:{(s>>2)*256}')
    kscale_reads(0)
    A('s_barrier')
    kraw_reads(0)
    for s in range(8):
        if s + 1 < 8:
            kraw_reads(s+1); kscale_reads(s+1)
            A('s_waitcnt lgkmcnt(6)')
        else:
            A('s_waitcnt lgkmcnt(0)')
        b = KST[s & 1]; f = KFRAG + (s & 1)*4
        for e in range(2):
            for i in range(4):
                A(f'v_fma_mix_f32 v{b+4*e+i}, v{b+4*e+i}, v{b+8+8*e+i}, v{b+8+8*e+4+i} op_sel_hi:[1,0,0]')
        for k in range(4):
            A(f'v_cvt_pk_bf16_f32 v{f+k}, v{b+2*k}, v{b+2*k+1}')
        A('s_nop 1')
        for qb in range(2):
            a = (qb*8 + s)*4
            c = '0' if s == 0 else vr(S + qb*16, 16)
            A(f'v_mfma_f32_32x32x16_bf16 {vr(S+qb*16,16)}, {vr(f,4)}, {ar(a,4)}, {c}')
    A('s_barrier')
    for a in range(4):
        for k in range(2):
            A(f'ds_read_b128 v[{VSC+a*8+4*k}:{VSC+a*8+4*k+3}], v25 offset:{a*64 + k*16}')
    A('s_nop 4')
    T = [24, 25]; T2 = [26, 27]; AL = [28, 30]; Mx = [M0_, M1_]; Lx = [L0_, L1_]
    for qb in range(2):
        A(f'v_max3_f32 v{T[qb]}, v{S+qb*16}, v{S+qb*16+1}, v{S+qb*16+2}')
    for i in range(3, 15, 2):
        for qb in range(2):
            A(f'v_max3_f32 v{T[qb]}, v{T[qb]}, v{S+qb*16+i}, v{S+qb*16+i+1}')
    for qb in range(2): A(f'v_max_f32 v{T[qb]}, v{T[qb]}, v{S+qb*16+15}')
    for qb in range(2): A(f'v_mov_b32 v{T2[qb]}, v{T[qb]}')
    A('s_nop 1')
    for qb in range(2): A(f'v_permlane32_swap_b32 v{T[qb]}, v{T2[qb]}')
    for qb in range(2): A(f'v_max_f32 v{T[qb]}, v{T[qb]}, v{T2[qb]}')
    for qb in range(2): A(f'v_mul_f32 v{T[qb]}, s52, v{T[qb]}')
    for qb in range(2): A(f'v_max_f32 v{T[qb]}, v{T[qb]}, v{Mx[qb]}')
    for qb in range(2): A(f'v_sub_f32 v{AL[qb]}, v{Mx[qb]}, v{T[qb]}')
    for qb in range(2): A(f'v_exp_f32 v{AL[qb]}, v{AL[qb]}')
    for qb in range(2): A(f'v_mov_b32 v{Mx[qb]}, v{T[qb]}')
    for qb in range(2): A(f'v_mul_f32 v{Lx[qb]}, v{Lx[qb]}, v{AL[qb]}')
    for qb in range(2):
        for i in range(16): A(f'v_fma_f32 v{S+qb*16+i}, v{S+qb*16+i}, s52, -v{Mx[qb]}')
        for i in range(16): A(f'v_exp_f32 v{S+qb*16+i}, v{S+qb*16+i}')
    A('s_cmp_eq_u32 s50, 63')
    A('s_cbranch_scc1 L_skipBc')
    A('s_barrier')
    A.label('L_skipBc')
    for qb in range(2):
        for k in range(8):
            A(f'v_cvt_pk_bf16_f32 v{P+qb*8+k}, v{S+qb*16+2*k}, v{S+qb*16+2*k+1}')
        for i in range(0, 8, 2):
            A(f'v_pk_add_f32 {vr(S+qb*16+i,2)}, {vr(S+qb*16+i,2)}, {vr(S+qb*16+8+i,2)}')
        for i in range(0, 4, 2):
            A(f'v_pk_add_f32 {vr(S+qb*16+i,2)}, {vr(S+qb*16+i,2)}, {vr(S+qb*16+4+i,2)}')
        A(f'v_pk_add_f32 {vr(S+qb*16,2)}, {vr(S+qb*16,2)}, {vr(S+qb*16+2,2)}')
        A(f'v_add_f32 v{Lx[qb]}, v{Lx[qb]}, v{S+qb*16}')
        A(f'v_add_f32 v{Lx[qb]}, v{Lx[qb]}, v{S+qb*16+1}')
    for qb in range(2):
        for i in range(0, 64, 2):
            r = O + qb*64 + i
            A(f'v_pk_mul_f32 {vr(r,2)}, {vr(r,2)}, {vr(AL[qb],2)} op_sel_hi:[1,0]')
    A('s_waitcnt lgkmcnt(0)')
    stamp(3, stamps == 5)
    if stamps == 5: A('s_waitcnt lgkmcnt(0)')
    A('s_barrier')
    stamp(1, stamps == 5)
    if stamps == 5: A('s_waitcnt lgkmcnt(0)')
    def vread(t):
        a, b = t >> 2, t & 3
        A(f'ds_read_b128 {vr(VRAW+4*t,4)}, v{VA} offset:{(8*a+b)*512}')
    def vdeq(t):
        a, b = t >> 2, t & 3
        for j in range(4):
            r = VRAW + 4*t + j
            A(f'v_fma_mix_f32 v{r}, v{r}, v{VSC+a*8+b}, v{VSC+a*8+4+b} op_sel_hi:[1,0,0]')
    def vpack(u, j):
        f = VFRAG + (j & 1)*4
        for i in range(4):
            t = 8*u + 2*i
            A(f'v_cvt_pk_bf16_f32 v{f+i}, v{VRAW+4*t+j}, v{VRAW+4*(t+1)+j}')
    def vmfma(u, j, qb):
        f = VFRAG + (j & 1)*4
        A(f'v_mfma_f32_32x32x16_bf16 {vr(Oreg(qb,j),16)}, {vr(f,4)}, {vr(P+qb*8+u*4,4)}, {vr(Oreg(qb,j),16)}')
    for t in range(15): vread(t)
    A('s_waitcnt lgkmcnt(14)')
    vread(15)
    vdeq(0)
    for t in range(1, 8):
        A(f's_waitcnt lgkmcnt({15-t})')
        vdeq(t)
    for j in range(4):
        vpack(0, j)
        A(f's_waitcnt lgkmcnt({15-(8+2*j)})')
        vdeq(8 + 2*j)
        vmfma(0, j, 0)
        A(f's_waitcnt lgkmcnt({15-(9+2*j)})')
        vdeq(9 + 2*j)
        vmfma(0, j, 1)
    vpack(1, 0)
    for j in range(4):
        if j == 0: A('s_nop 1')
        vmfma(1, j, 0)
        if j < 3: vpack(1, j+1)
        vmfma(1, j, 1)
        if j < 3: A('s_nop 0')
    A('s_add_u32 s50, s50, 3')
    A('s_cmp_ge_u32 s50, 64')
    A('s_cbranch_scc1 L_cdone')
    A('s_barrier')
    if ctl:
        A('s_cmp_lg_u32 s3, 2')
        A('s_cbranch_scc1 L_noMark')
        A('s_mov_b32 s82, s80')
        A('s_memrealtime s[80:81]')
        A('v_accvgpr_read_b32 v80, a65')
        A('s_mov_b64 exec, 0xffff')
        A('v_add_u32 v80, s85, v80')
        A('s_add_u32 s85, s85, 4352')
        A('global_load_dword v81, v80, s[22:23] sc1')
        A('s_mov_b64 exec, -1')
        A.label('L_noMark')
    A('s_cmp_eq_u32 s50, 3')
    A('s_cbranch_scc1 L_tile')
    A('s_barrier')
    if ctl:
        A('s_cmp_lg_u32 s3, 2')
        A('s_cbranch_scc1 L_noCtl')
        A('s_waitcnt lgkmcnt(0)')
        A('s_sub_u32 s83, s80, s78')
        A('s_sub_u32 s47, s82, s78')
        A('v_add_u32 v80, 4352, v80')
        A('v_mov_b32 v82, s80')
        A('s_waitcnt vmcnt(0)')
        A('s_cmp_lg_u32 s87, 5')
        A('s_cbranch_scc1 L_noPub')
        A('s_mov_b64 exec, s[90:91]')
        A('global_store_dword v80, v82, s[22:23] sc1')
        A('s_mov_b64 exec, -1')
        A.label('L_noPub')
        A('s_cmp_eq_u32 s50, 5')
        A('s_cbranch_scc1 L_tile')
        A('v_subrev_u32 v81, s78, v81')
        A('v_min_u32 v81, s83, v81')
        A(f'v_mov_b32 v83, {WCTL}')
        A('s_nop 0')
        for sh in (1, 2, 4, 8):
            A(f'v_add_u32_dpp v81, v81, v81 row_ror:{sh} row_mask:0xf bank_mask:0xf')
            A('s_nop 1')
        A('v_readfirstlane_b32 s48, v81')
        A('s_lshl_b32 s47, s47, 4')
        A('s_lshl_b32 s83, s83, 4')
        A('s_sub_i32 s47, s47, s48')
        A('s_add_i32 s84, s84, s47')
        if pred:
            A('s_sub_u32 s49, s48, s88')
            A('s_mov_b32 s88, s48')
            A('s_min_u32 s51, s49, s89')
            A('s_mov_b32 s89, s49')
            A('s_add_u32 s48, s48, s51')
            A('s_sub_i32 s48, s83, s48')
            A('s_cmp_le_u32 s50, 8')
            A('s_cselect_b32 s47, s47, s48')
        A(f's_max_i32 s84, s84, {-(6*8192)//max(ki,1)}'); A(f's_min_i32 s84, s84, {(6*8192)//max(ki,1)}')
        A(f's_mul_i32 s47, s47, {kp}')
        A(f's_mul_i32 s48, s84, {ki}')
        A('s_add_i32 s47, s47, s48')
        A(f's_add_i32 s47, s47, {W*8192 + 4096}')
        A('s_ashr_i32 s47, s47, 13')
        A(f's_max_i32 s47, s47, {Wmin}'); A(f's_min_i32 s47, s47, {Wmax}')
        if ctl == 2: A(f's_mov_b32 s47, {W}')
        A('v_mov_b32 v81, s47')
        A('ds_write_b32 v83, v81')
        A('s_waitcnt lgkmcnt(0)')
        A('s_branch L_tile')
        A.label('L_noCtl')
    A('s_cmp_lg_u32 s50, 4')
    A('s_cbranch_scc1 L_noAnn')
    A('s_cmp_lg_u32 s2, 0')
    A('s_cbranch_scc1 L_tile')
    A('v_mov_b32 v80, 0')
    A('v_mov_b32 v81, 1')
    A('s_waitcnt vmcnt(0)')
    A('s_mov_b64 exec, 1')
    A('global_store_dword v80, v81, s[20:21] sc1')
    A('s_mov_b64 exec, -1')
    A.label('L_noAnn')
    A(f's_cmp_lg_u32 s50, {warmat}')
    A('s_cbranch_scc1 L_tile')
    A('v_mov_b32 v80, 0')
    A('global_load_dword a64, v80, s[20:21] sc1')
    if 'c' in warm:
        A('s_getpc_b64 s[56:57]')
        A.label('L_pcref')
        A('s_add_u32 s56, s56, L_cdone-L_pcref'); A('s_addc_u32 s57, s57, 0')
        A('v_mbcnt_lo_u32_b32 v80, -1, 0'); A('v_mbcnt_hi_u32_b32 v80, -1, v80')
        A('v_lshlrev_b32 v80, 7, v80')
        A('v_min_u32 v80, L_end-L_cdone, v80')
        A('global_load_dword a66, v80, s[56:57]')
    if 't' in warm:
        A('s_and_b32 s47, s40, 3')
        A('s_lshl_b32 s48, s40, 15'); A('s_lshl_b32 s49, s47, 13'); A('s_add_u32 s48, s48, s49')
        A('v_mov_b32 v80, s48')
        A('global_load_dword a67, v80, s[22:23]')
        A('s_lshl_b32 s48, s40, 11'); A('s_lshl_b32 s49, s47, 9'); A('s_add_u32 s48, s48, s49'); A(f's_add_u32 s48, s48, {WS_STATS}')
        A('v_mov_b32 v81, s48')
        A('global_load_dword a68, v81, s[22:23]')
        A('s_lshl_b32 s48, s41, 14'); A('s_lshr_b32 s49, s47, 1'); A('s_lshl_b32 s49, s49, 13'); A('s_add_u32 s48, s48, s49')
        A('s_and_b32 s49, s47, 1'); A('s_lshl_b32 s49, s49, 7'); A('s_add_u32 s48, s48, s49')
        A('v_mov_b32 v82, s48')
        A('global_load_dword a69, v82, s[18:19]')
    A('s_branch L_tile')

    A.label('L_cdone')
    A('s_cmp_eq_u32 s3, 0')
    A('s_cbranch_scc1 L_dump')
    A('s_barrier')
    A('s_cmp_lg_u32 s3, 1')
    A('s_cbranch_scc1 L_dump')
    A('v_mov_b32 v80, 0')
    A('s_mov_b32 s48, 0x100000')
    A.label('L_annWait')
    A('s_waitcnt vmcnt(0)')
    A('v_accvgpr_read_b32 v81, a64')
    A('s_sub_u32 s48, s48, 1')
    A('s_cbranch_scc1 L_dump')
    A('v_readfirstlane_b32 s47, v81')
    A('s_nop 1')
    A('s_cmp_lg_u32 s47, 0')
    A('s_cbranch_scc1 L_dump')
    A('global_load_dword a64, v80, s[20:21] sc1')
    A('s_branch L_annWait')
    A.label('L_dump')
    stamp(4, stamps == 5)
    A('v_mbcnt_lo_u32_b32 v8, -1, 0')
    A('v_mbcnt_hi_u32_b32 v8, -1, v8')
    A('v_lshlrev_b32 v9, 3, v8')
    A('s_lshl_b32 s47, s3, 10')
    A(f's_add_u32 s47, s47, {STATS}')
    A('v_add_u32 v9, s47, v9')
    A('v_lshlrev_b32 v10, 4, v8')
    A('v_add_u32 v10, s46, v10')
    for qb in range(2): A(f'v_mov_b32 v{12+qb}, v{Lx[qb]}')
    A('s_nop 1')
    for qb in range(2): A(f'v_permlane32_swap_b32 v{Lx[qb]}, v{12+qb}')
    for qb in range(2):
        A(f'v_mov_b32 v{16+2*qb}, v{Mx[qb]}')
        A(f'v_add_f32 v{17+2*qb}, v{Lx[qb]}, v{12+qb}')
    for qb in range(2):
        A(f'ds_write_b64 v9, v[{16+2*qb}:{17+2*qb}] offset:{qb*512}')
    for qb in range(2):
        for a in range(4):
            for j in range(4):
                blk = (qb*2 + (a >> 1))*8 + (a & 1)*4 + j
                A(f'ds_write_b128 v10, {vr(Oreg(qb,j)+4*a,4)} offset:{blk*1024}')
    A('s_waitcnt lgkmcnt(0)')
    A('s_cmp_lg_u32 s3, 1')
    A('s_cbranch_scc1 L_epilogue')
    A('s_barrier'); A('s_barrier')

    A.label('L_epilogue')
    A('v_mbcnt_lo_u32_b32 v0, -1, 0')
    A('v_mbcnt_hi_u32_b32 v0, -1, v0')
    A('s_and_b32 s43, s40, 3')
    A('s_add_u32 s55, s43, s3'); A('s_add_u32 s55, s55, 1'); A('s_and_b32 s55, s55, 3')
    A('s_lshr_b32 s47, s55, 1')
    A('s_lshl_b32 s47, s47, 9')
    A(f's_add_u32 s47, s47, {STATS}')
    A('v_lshlrev_b32 v5, 3, v0')
    A('v_add_u32 v1, s47, v5')
    A('s_lshl_b32 s47, s55, 13')
    A('v_lshlrev_b32 v2, 4, v0')
    A('v_add_u32 v3, s47, v2')
    A('v_add_u32 v4, 0x10000, v3')
    A('s_lshl_b32 s56, s41, 2'); A('s_or_b32 s56, s56, s55')
    A('s_lshl_b32 s42, s56, 15')
    srd(A, 24, 22, 's42', 32768)
    A('s_lshl_b32 s42, s56, 11')
    A(f's_add_u32 s42, s42, {WS_STATS}')
    srd(A, 28, 22, 's42', 2048)
    if fsep: A('s_lshl_b32 s42, s56, 9')
    else: A('s_lshl_b32 s42, s41, 8'); A('s_lshl_b32 s48, s55, 4'); A('s_add_u32 s42, s42, s48')
    A(f's_add_u32 s42, s42, {WS_FLAGS}')
    A(f'v_lshlrev_b32 v7, {7 if fsep else 2}, v0')
    A('v_add_u32 v7, s42, v7')
    stamp(5, stamps == 5)
    if stamps == 5: A('s_waitcnt lgkmcnt(0)')
    A('s_barrier')
    stamp(3, stamps == 4)
    for c in range(3):
        A(f'ds_read_b64 v[{8+2*c}:{9+2*c}], v1 offset:{c*1024}')
    if stamps == 4: A('s_waitcnt lgkmcnt(0)')
    R = 32
    def dread(c, i):
        if c < 2: A(f'ds_read_b128 {vr(R+c*32+4*i,4)}, v3 offset:{c*32768 + i*1024}')
        else: A(f'ds_read_b128 {vr(R+c*32+4*i,4)}, v4 offset:{i*1024}')
    for i in range(4):
        for c in range(3): dread(c, i)
    A('s_waitcnt lgkmcnt(12)')
    A('v_max3_f32 v14, v8, v10, v12')
    for c in range(3): A(f'v_sub_f32 v{16+2*c}, v{8+2*c}, v14')
    for c in range(3): A(f'v_exp_f32 v{16+2*c}, v{16+2*c}')
    A('s_nop 0')
    A('v_mul_f32 v15, v9, v16')
    A('v_fmac_f32 v15, v11, v18')
    A('v_fmac_f32 v15, v13, v20')
    A('s_lshl_b32 s57, s43, 13')
    A('s_lshl_b32 s58, s43, 9')
    def merge(i):
        if i < 4:
            A(f's_waitcnt lgkmcnt(9)')
            for c in range(3): dread(c, i+4)
        else:
            A(f's_waitcnt lgkmcnt({3*(7-i)})')
        for k in range(0, 4, 2):
            r = R + 4*i + k
            A(f'v_pk_mul_f32 {vr(r,2)}, {vr(r,2)}, v[16:17] op_sel_hi:[1,0]')
            A(f'v_pk_fma_f32 {vr(r,2)}, {vr(r+32,2)}, v[18:19], {vr(r,2)} op_sel_hi:[1,0,1]')
            A(f'v_pk_fma_f32 {vr(r,2)}, {vr(r+64,2)}, v[20:21], {vr(r,2)} op_sel_hi:[1,0,1]')
    A('s_cmp_eq_u32 s3, 3')
    A('s_cbranch_scc1 L_recv')
    A('buffer_store_dwordx2 v[14:15], v5, s[28:31], s58 offen sc1')
    for i in range(8):
        merge(i)
        if i == 4: A('s_add_u32 s57, s57, 4096')
        A(f'buffer_store_dwordx4 {vr(R+4*i,4)}, v2, s[24:27], s57 offen offset:{(i&3)*1024} sc1')
    A('v_mov_b32 v6, 1')
    A('s_lshl_b64 s[58:59], 1, s43')
    stamp(6, stamps == 5)
    A('s_waitcnt vmcnt(0)')
    stamp(2, stamps == 5)
    A('s_mov_b64 exec, s[58:59]')
    A('global_store_dword v7, v6, s[22:23] sc1')
    A('s_mov_b64 exec, -1')
    A('s_branch L_fin')
    A.label('L_recv')
    for i in range(8): merge(i)
    stamp(4, stamps == 4)
    A('s_lshl_b32 s42, s41, 14')
    A('s_lshr_b32 s56, s55, 1'); A('s_lshl_b32 s56, s56, 13')
    A('s_add_u32 s42, s42, s56')
    srd(A, 32, 18, 's42', 8192)
    A('s_and_b32 s56, s55, 1'); A('s_lshl_b32 s56, s56, 7')
    A('v_and_b32 v4, 31, v0'); A('v_lshlrev_b32 v4, 8, v4')
    A('v_lshrrev_b32 v3, 5, v0'); A('v_lshl_or_b32 v4, v3, 5, v4')
    D = 128
    A('s_lshl_b32 s48, 1, s43')
    A('s_mov_b32 s49, 0x100000')
    A.label('L_poll')
    A('s_mov_b64 exec, 15')
    A(f'global_load_dword v6, v7, s[22:23] {pflags}')
    A('s_waitcnt vmcnt(0)')
    A('v_cmp_ne_u32 vcc, 0, v6')
    A('s_mov_b64 exec, -1')
    A('s_sub_u32 s49, s49, 1')
    A('s_cbranch_scc1 L_final')
    A('s_andn2_b32 s47, vcc_lo, s48')
    A('s_cbranch_scc0 L_poll')
    A('s_or_b32 s48, s48, s47')
    for k in range(3):
        A(f's_add_u32 s51, s43, {k+1}'); A('s_and_b32 s51, s51, 3')
        A('s_bitcmp1_b32 s47, s51')
        A(f's_cbranch_scc0 L_skip{k}')
        A('s_lshl_b32 s57, s51, 9')
        A(f'buffer_load_dwordx2 v[{224+2*k}:{225+2*k}], v5, s[28:31], s57 offen sc1')
        A('s_lshl_b32 s57, s51, 13')
        for i in range(8):
            if i == 4: A('s_add_u32 s57, s57, 4096')
            A(f'buffer_load_dwordx4 {vr(D+32*k+4*i,4)}, v2, s[24:27], s57 offen offset:{(i&3)*1024} sc1')
        A.label(f'L_skip{k}')
    A('s_cmp_lg_u32 s48, 15')
    A('s_cbranch_scc1 L_poll')
    A.label('L_final')
    stamp(5, stamps == 4)
    A('s_waitcnt vmcnt(8)')
    A('v_max3_f32 v8, v224, v226, v228'); A('v_max_f32 v8, v8, v14')
    A('v_sub_f32 v16, v14, v8')
    for k in range(3): A(f'v_sub_f32 v{18+2*k}, v{224+2*k}, v8')
    for k in range(4): A(f'v_exp_f32 v{16+2*k}, v{16+2*k}')
    A('s_nop 0')
    A('v_mul_f32 v9, v15, v16')
    for k in range(3): A(f'v_fmac_f32 v9, v{225+2*k}, v{18+2*k}')
    A('v_rcp_f32 v9, v9')
    A('s_nop 0')
    for k in range(4): A(f'v_mul_f32 v{16+2*k}, v{16+2*k}, v9')
    for aa in range(2):
        if aa == 0: A('s_waitcnt vmcnt(4)')
        else: A('s_waitcnt vmcnt(2)')
        for x in range(aa*16, aa*16+16, 2):
            A(f'v_pk_mul_f32 {vr(R+x,2)}, {vr(R+x,2)}, v[16:17] op_sel_hi:[1,0]')
            for k in range(3):
                A(f'v_pk_fma_f32 {vr(R+x,2)}, {vr(D+32*k+x,2)}, {vr(18+2*k,2)}, {vr(R+x,2)} op_sel_hi:[1,0,1]')
        for k in range(8):
            b, j = k >> 1, 2*(k & 1)
            A(f'v_cvt_pk_bf16_f32 v{64+aa*8+k}, v{R+aa*16+4*j+b}, v{R+aa*16+4*(j+1)+b}')
        A(f'buffer_store_dwordx4 {vr(64+aa*8,4)}, v4, s[32:35], s56 offen offset:{aa*64} {oflags}')
        A(f'buffer_store_dwordx4 {vr(64+aa*8+4,4)}, v4, s[32:35], s56 offen offset:{aa*64+16} {oflags}')
    stamp(6, stamps == 4)
    A.label('L_fin')
    if diag:
        A('s_waitcnt vmcnt(0)')
        A('s_memrealtime s[84:85]')
        A('v_mov_b32 v18, 128')
        A('global_load_dword v17, v18, s[20:21] sc1')
        A('s_waitcnt vmcnt(0) lgkmcnt(0)')
        A('v_readfirstlane_b32 s81, v17')
        A('s_nop 1')
        A('s_not_b32 s81, s81')
        A('s_mov_b32 s86, 0')
        A('s_cmp_lg_u32 s3, 3')
        A('s_cbranch_scc1 L_dg')
        if diag == 'tail': A('s_sub_u32 s86, s84, s82'); A('s_mul_i32 s86, s86, 10')
        if diag == 'send': A('s_sub_u32 s86, s82, s81'); A('s_sub_u32 s86, s86, 6500'); A('s_mul_i32 s86, s86, 10')
        if diag == 'fin': A('s_sub_u32 s86, s84, s81'); A('s_sub_u32 s86, s86, 6500'); A('s_mul_i32 s86, s86, 10')
        if diag == 'sendmin': A('s_sub_u32 s86, s82, s81'); A('s_sub_u32 s86, 9000, s86'); A('s_mul_i32 s86, s86, 10')
        A('s_min_u32 s86, s86, 100000')
        A.label('L_dg')
        A('s_add_u32 s86, s86, 10000')
        A.label('L_spin')
        A('s_memrealtime s[78:79]')
        A('s_waitcnt lgkmcnt(0)')
        A('s_sub_u32 s80, s78, s81')
        A(f's_cmp_lt_u32 s80, s86')
        A('s_cbranch_scc1 L_spin')
    if stamps:
        A('s_waitcnt vmcnt(0)')
        stamp(2, stamps != 5)
        A('s_waitcnt lgkmcnt(0)')
        A(f's_cmp_lg_u32 s3, {0 if stamps == 5 else 3}')
        A('s_cbranch_scc1 L_end')
        A('s_getreg_b32 s74, hwreg(HW_REG_XCC_ID)')
        A(f's_mov_b32 s75, {7 if stamps >= 4 else 4 if stamps == 2 else 3}')
        for i in range(16): A(f'v_mov_b32 v{8+i}, s{60+i}')
        A('s_lshl_b32 s42, s2, 6')
        A('s_add_u32 s42, s42, 0x10000000')
        A('v_mov_b32 v1, s42')
        A('s_mov_b64 exec, 1')
        for i in range(4): A(f'global_store_dwordx4 v1, v[{8+4*i}:{11+4*i}], s[22:23] offset:{16*i}')
        if stamps == 3:
            A('s_mov_b64 exec, -1')
            A('s_lshl_b32 s42, s2, 8')
            A('s_add_u32 s42, s42, 0x11000000')
            A('v_lshlrev_b32 v1, 2, v0')
            A('v_add_u32 v1, s42, v1')
            A('global_store_dword v1, v240, s[22:23]')
            A('v_add_u32 v1, 0x10000, v1')
            A('global_store_dword v1, v241, s[22:23]')
    A.label('L_end')
    A('s_endpgm')

    A('.section .rodata,"a"')
    A('.p2align 6')
    A(f'.amdhsa_kernel {main}')
    for l in ['.amdhsa_next_free_vgpr 328', '.amdhsa_next_free_sgpr 96', '.amdhsa_accum_offset 256',
              '.amdhsa_group_segment_fixed_size 0', '.amdhsa_kernarg_size 80', '.amdhsa_user_sgpr_count 2',
              '.amdhsa_user_sgpr_kernarg_segment_ptr 1', '.amdhsa_system_sgpr_workgroup_id_x 1',
              '.amdhsa_float_denorm_mode_32 3', '.amdhsa_float_denorm_mode_16_64 3']:
        A.lines.append('  ' + l)
    A('.end_amdhsa_kernel')
    return A.text()

if __name__ == '__main__':
    kw = eval('dict(' + (sys.argv[2] if len(sys.argv) > 2 else '') + ')')
    t = gen(**kw)
    errs = check_hazards(t)
    for e in errs: print('HAZARD', e)
    out = sys.argv[1] if len(sys.argv) > 1 and sys.argv[1] != '-' else f'cdna_kernels/{NAME}.s'
    open(out, 'w').write(t)
    import subprocess
    r = subprocess.run(['clang', '-x', 'assembler', '-target', 'amdgcn-amd-amdhsa', '-mcpu=gfx950', '-c', out, '-o', 'chk.o'], capture_output=True, text=True)
    print('wrote', out, len(t), 'bytes', 'hazards', len(errs), 'asm rc', r.returncode, r.stderr[:1500])
```

```python
import sys, math, struct
sys.path.insert(0, 'gen')
from asmlib import *

NAME = 'standalone__kv_cache_quant_int4_int2_kv_with_per_channel_or_per_token_scales__sampling'
HEADER = open(f'cdna_kernels/{NAME}.s.ref').read().split('; Override launch geometry')[0]

SLOT = 16384
RING = 6*SLOT
KS_T = RING
VS_T = RING + 16384
QST = RING + 32768
STATS = QST + 16384
WCTL = STATS + 3072
LDS_BYTES = STATS + 4096
STG = 5*SLOT
WS_STATS = 0x800000
WS_FLAGS = 0x900000
WS_CTR = 0xa00000

CSCALE = (128.0 ** -0.5) * math.log2(math.e)
def f2u(x): return struct.unpack('<I', struct.pack('<f', x))[0]

KBASE, KSA, VA, VSA, M0_, M1_, L0_, L1_ = 0, 1, 2, 3, 4, 5, 6, 7
P = 8; KADDR = 8; KFRAG = 16; VFRAG = 24
VSC = 32; KST = (32, 56); VRAW = 64; S = 96; O = 128
def Oreg(qb, j): return O + (qb*4 + j)*16

def srd(A, d, base_lo, off_lo, nbytes):
    A(f's_add_u32 s{d}, s{base_lo}, {off_lo}')
    A(f's_addc_u32 s{d+1}, s{base_lo+1}, 0')
    A(f's_and_b32 s{d+1}, s{d+1}, 0xffff')
    A(f's_mov_b32 s{d+2}, {nbytes}')
    A(f's_mov_b32 s{d+3}, 0x20000')

def gen(W=17, flags='nt', stamps=0, wgmap=0, qflags='', sflags='nt', oflags='', diag='', ctl=1, Wmin=10, Wmax=24,
        kp=12, ki=2, fsep=1, pflags='sc1', greedy=0, Wst=16, exp='', G=4, pred=1, rot=None, phi=None, warm='', warmat=52):
    if not ctl: Wmin = Wmax = W
    A = Asm()
    A.lines += HEADER.rstrip('\n').split('\n')
    main = NAME + '_kernel'
    A(f'; @launch grid=(256,1,1) block=(256,1,1) lds={LDS_BYTES}')
    A('.amdgcn_target "amdgcn-amd-amdhsa--gfx950"')
    A('.text')
    A(f'.globl {main}')
    A('.p2align 8')
    A(f'.type {main},@function')
    A(f'{main}:')
    def stamp(i, cond=True):
        if stamps and cond: A(f's_memrealtime s[{60+2*i}:{61+2*i}]')
    A('s_cmp_ge_u32 s2, 256')
    A('s_cbranch_scc1 L_end')
    stamp(0)
    if diag: A('s_memrealtime s[76:77]')
    A('s_load_dwordx16 s[4:19], s[0:1], 0')
    A('s_load_dwordx4 s[20:23], s[0:1], 64')
    A('v_lshrrev_b32 v1, 6, v0')
    A('v_and_b32 v0, 63, v0')
    A('v_readfirstlane_b32 s3, v1')
    if wgmap == 0:
        A('s_mov_b32 s40, s2')
    elif wgmap == 1:
        A('s_and_b32 s40, s2, 7'); A('s_lshl_b32 s40, s40, 2')
        A('s_lshr_b32 s41, s2, 3'); A('s_and_b32 s41, s41, 3'); A('s_or_b32 s40, s40, s41')
        A('s_and_b32 s41, s2, 0xe0'); A('s_or_b32 s40, s40, s41')
    elif wgmap == 2:
        A('s_and_b32 s40, s2, 7'); A('s_lshl_b32 s40, s40, 5')
        A('s_lshr_b32 s41, s2, 3'); A('s_or_b32 s40, s40, s41')
    A('s_lshr_b32 s41, s40, 2')
    if rot:
        A(f's_mul_i32 s38, s2, {rot[0]}'); A(f's_lshr_b32 s38, s38, {rot[1]}'); A(f's_and_b32 s38, s38, {rot[2]}')
    else: A('s_mov_b32 s38, 0')
    A('s_cmp_lg_u32 s3, 3')
    A('s_cbranch_scc1 L_consumer')

    A('v_lshlrev_b32 v16, 4, v0')
    A('s_lshl_b32 s42, s40, 12')
    A('v_add_u32 v17, s42, v16')
    A('v_lshrrev_b32 v1, 4, v0')
    A('v_and_b32 v2, 15, v0')
    A('v_xor_b32 v2, v2, v1')
    A('v_lshlrev_b32 v2, 4, v2')
    A('v_lshl_or_b32 v2, v1, 8, v2')
    A('s_lshl_b32 s43, s41, 14')
    A('v_add_u32 v20, s43, v2')
    for jj in range(1, 4):
        A(f'v_xor_b32 v{20+jj}, {4*jj*16}, v20')
    A('v_lshrrev_b32 v1, 5, v0')
    A('v_and_b32 v2, 31, v0')
    A('v_xor_b32 v2, v2, v1')
    A('v_lshlrev_b32 v2, 4, v2')
    A('v_lshl_or_b32 v8, v1, 9, v2')
    if phi:
        A(f's_mul_i32 s37, s2, {phi[0]}'); A(f's_lshr_b32 s37, s37, {phi[1]}'); A(f's_and_b32 s37, s37, 3')
        A('s_and_b32 s36, s37, 1'); A('s_lshl_b32 s36, s36, 7'); A('v_xor_b32 v8, s36, v8')
        A('s_lshl_b32 s32, s37, 12')
        for g in range(1, 4): A(f's_xor_b32 s{32+g}, s32, {g*4096}')
    for j in range(1, 8):
        A(f'v_xor_b32 v{8+j}, {2*j*16}, v8')
    A('s_lshl_b32 s42, s40, 20')
    A(f's_mov_b32 m0, {STG}')
    A('s_waitcnt lgkmcnt(0)')
    def pre(g, idx, w, st=None, last=False):
        bg = max(0, (w - 16 + 3) // 4)
        if last:
            if g == 0: A('s_waitcnt vmcnt(16)'); A('s_barrier')
            elif not greedy: A(f's_waitcnt vmcnt({w})')
            return
        if idx*16 + g*4 > w: A(f's_waitcnt vmcnt({w})')
        if g == bg and idx >= 2:
            if st is not None: stamp(st, stamps == 2)
            A('s_barrier')
    for g in range(4):
        if g: A(f's_mov_b32 m0, {STG + g*4096}')
        pre(g, 0, Wst)
        if g: A('s_nop 0')
        for i in range(4):
            A(f'global_load_lds_dwordx4 v17, s[{10+2*g}:{11+2*g}] offset:{i*1024} {sflags}')
    for g in range(4):
        A(f's_mov_b32 m0, {QST + g*4096}')
        pre(g, 1, Wst)
        A('s_nop 0')
        for i in range(4):
            A(f'global_load_lds_dwordx4 v{20+i}, s[4:5] offset:{i*1024} {qflags}')
        if g < 3:
            A('s_add_u32 s4, s4, 4096'); A('s_addc_u32 s5, s5, 0')
        if g == 0:
            srd(A, 24, 6, 's42', 1 << 20)
            srd(A, 28, 8, 's42', 1 << 20)
    def slot(kind, w, st=None, last=False, rd=False, GG=4):
        so, lb, sd = (44, 46, 's[24:27]') if kind == 'K' else (45, 47, 's[28:31]')
        bi = max(0, (w - 16 + GG - 1) // GG * GG)
        assert bi < 16
        for jj in range(16):
            g, i = jj >> 2, jj & 3
            if i == 0:
                go = f's{32+g}' if phi else g*4096
                A(f's_add_u32 m0, s{lb}, {go}')
                A(f's_add_u32 s48, s{so}, {go}')
                if rd and g == 3: A('ds_read_b32 v30, v31')
            if last:
                if jj == 0: A('s_waitcnt vmcnt(16)'); A('s_barrier')
                elif not greedy and jj % GG == 0: A(f's_waitcnt vmcnt({w})')
            else:
                if jj % GG == 0: A(f's_waitcnt vmcnt({w})')
                if jj == bi:
                    if st is not None: stamp(st, stamps == 2)
                    A('s_barrier')
            vo = 8 + (jj & 7) if kind == 'K' else 16
            A(f'buffer_load_dwordx4 v{vo}, {sd}, s48 offen offset:{i*1024} {flags} lds')
    def adv(kind):
        so, lb = (44, 46) if kind == 'K' else (45, 47)
        A(f's_add_u32 s{so}, s{so}, {SLOT}')
        if rot: A(f's_and_b32 s{so}, s{so}, 0xfffff')
        A(f's_add_u32 s{lb}, s{lb}, {2*SLOT}')
        A(f's_cmp_ge_u32 s{lb}, {RING}')
        A(f's_cselect_b32 s49, {RING}, 0')
        A(f's_sub_u32 s{lb}, s{lb}, s49')
    A('s_lshl_b32 s44, s38, 14'); A('s_mov_b32 s45, s44'); A('s_mov_b32 s46, 0'); A(f's_mov_b32 s47, {SLOT}')
    A(f'v_mov_b32 v31, {WCTL}')
    slot('K', Wst, 3); adv('K')
    A(f's_mov_b32 s50, 63')
    if stamps == 3: A('s_memrealtime s[88:89]'); A(f's_mov_b32 s93, {W}')
    order = sorted(range(Wmin, Wmax+1), key=lambda w: (abs(w - W), w))
    for n, w in enumerate(order):
        A.label(f'L_it{w}')
        slot('K', w, GG=G)
        slot('V', w, rd=bool(ctl), GG=G)
        if n == 0:
            A.label('L_next')
            adv('K'); adv('V')
            if stamps == 3:
                A('s_waitcnt lgkmcnt(0)')
                A('s_mov_b32 m0, s50')
                A('s_nop 0')
                A('v_writelane_b32 v240, s88, m0')
                A('v_writelane_b32 v241, s93, m0')
            A('s_sub_u32 s50, s50, 1')
            A('s_cmp_eq_u32 s50, 0')
            A('s_cbranch_scc1 L_lastslot')
            if ctl:
                A('s_waitcnt lgkmcnt(0)')
                A('v_readfirstlane_b32 s93, v30')
                if stamps == 3: A('s_memrealtime s[88:89]')
                else: A('s_nop 0')
                for w2 in order[:-1]:
                    A(f's_cmp_eq_u32 s93, {w2}')
                    A(f's_cbranch_scc1 L_it{w2}')
            elif stamps == 3: A('s_memrealtime s[88:89]')
            A(f's_branch L_it{order[-1]}')
        else:
            A('s_branch L_next')
    A.label('L_lastslot')
    slot('V', W, last=True, GG=G)
    A('s_waitcnt vmcnt(16)'); A('s_barrier')
    A('s_waitcnt vmcnt(0) lgkmcnt(0)')
    if stamps: stamp(1); A('s_waitcnt lgkmcnt(0)')
    if diag: A('s_memrealtime s[82:83]'); A('s_waitcnt lgkmcnt(0)')
    A('s_barrier')
    A('s_branch L_epilogue')

    A.label('L_consumer')
    if ctl: A('s_memrealtime s[78:79]')
    A('v_and_b32 v8, 31, v0')
    A('v_lshrrev_b32 v9, 5, v0')
    A('v_lshlrev_b32 v10, 4, v0')
    A('v_lshlrev_b32 v14, 6, v0')
    A('s_lshl_b32 s46, s3, 15')
    A('v_and_b32 v12, 15, v8')
    A('v_xor_b32 v11, v12, v9')
    A('v_lshlrev_b32 v11, 4, v11')
    A('v_lshl_or_b32 v11, v8, 8, v11')
    A(f'v_add_u32 v11, {QST}, v11')
    A('v_mul_u32_u24 v13, 0x22100, v12')
    A('v_accvgpr_write_b32 a65, v13')
    A('v_lshlrev_b32 v13, 1, v9')
    A('v_xor_b32 v12, v12, v13')
    A('v_lshlrev_b32 v12, 4, v12')
    A('v_lshl_or_b32 v12, v8, 9, v12')
    A(f'v_lshlrev_b32 v{KSA}, 6, v9')
    A(f'v_add_u32 v{KSA}, {KS_T}, v{KSA}')
    A(f'v_lshlrev_b32 v{VA}, 4, v8')
    A(f'v_lshl_or_b32 v{VA}, v9, 11, v{VA}')
    A(f's_add_u32 s47, s46, {SLOT}')
    A(f'v_add_u32 v{VA}, s47, v{VA}')
    A(f'v_lshlrev_b32 v{VSA}, 5, v9')
    A(f'v_add_u32 v{VSA}, {VS_T}, v{VSA}')
    A(f'v_lshlrev_b32 v15, {11 if fsep else 8}, v0')
    A(f'v_add_u32 v15, {WS_FLAGS}, v15')
    for i in range(4): A(f'v_mov_b32 v{16+i}, 0')
    A(f'v_mov_b32 v20, {WCTL}')
    A(f'v_mov_b32 v21, {W}')
    A('s_waitcnt lgkmcnt(0)')
    A('ds_write_b32 v20, v21')
    A('s_lshl_b32 s47, s2, 2')
    A('s_or_b32 s39, s47, s3')
    A('s_cmp_lg_u32 s39, 1')
    A('s_cbranch_scc1 L_noReset')
    if fsep:
        for i in range(16):
            if (i >> 2) != (i & 3): A(f'global_store_dword v15, v16, s[22:23] offset:{128*i} sc1')
    else:
        for i in range(4): A(f'global_store_dwordx4 v15, v[16:19], s[22:23] offset:{16*i} sc1')
    A.label('L_noReset')
    if diag:
        A('s_cmp_lg_u32 s39, 0')
        A('s_cbranch_scc1 L_noDiag')
        A('s_not_b32 s80, s76')
        A('v_mov_b32 v22, s80')
        A('v_mov_b32 v23, 128')
        A('s_mov_b64 exec, 1')
        A('global_atomic_umax v23, v22, s[20:21]')
        A('s_mov_b64 exec, -1')
        A.label('L_noDiag')
    A(f'v_add_u32 v{KBASE}, s46, v12')
    A(f'v_mov_b32 v{M0_}, 0xff800000'); A(f'v_mov_b32 v{M1_}, 0xff800000')
    A(f'v_mov_b32 v{L0_}, 0'); A(f'v_mov_b32 v{L1_}, 0')
    for i in range(128): A(f'v_mov_b32 v{O+i}, 0')
    A(f's_mov_b32 s52, {hex(f2u(CSCALE))}')
    A('s_mov_b32 s53, 0x4b800000')
    A('s_mov_b32 s54, 0xffff0000')
    if ctl:
        A('s_mov_b32 s84, 0')
        A(f's_mov_b32 s85, {WS_CTR}')
        A('s_mov_b32 s80, 0')
        A('s_mov_b32 s88, 0')
        A('s_mov_b32 s89, -1')
        A('s_lshr_b32 s87, s2, 7'); A('s_lshl_b32 s87, s87, 3'); A('s_and_b32 s47, s2, 7'); A('s_or_b32 s87, s87, s47')
        A('s_lshl_b64 s[90:91], 1, s87')
        A('s_lshr_b32 s47, s2, 3'); A('s_and_b32 s87, s47, 15')
    A('s_mov_b32 s50, s3')
    A('s_waitcnt lgkmcnt(0)')
    A('s_barrier')
    A.label('L_tab')
    A('s_lshr_b32 s47, s50, 2'); A('s_lshl_b32 s47, s47, 12')
    A('s_lshl_b32 s48, s50, 10')
    A('s_add_u32 s47, s47, s48')
    A(f's_add_u32 s47, s47, {STG}')
    A('v_add_u32 v15, s47, v10')
    A('s_lshl_b32 s48, s50, 12')
    A(f's_add_u32 s48, s48, {KS_T}')
    A('ds_read_b128 v[64:67], v15')
    A('ds_read_b128 v[68:71], v15 offset:4096')
    A('v_add_u32 v13, s48, v14')
    A('s_waitcnt lgkmcnt(0)')
    sc, zr, t = 64, 68, 16
    for e in range(8):
        q, i = e >> 2, e & 3
        ds, dc = t + q*8 + i, t + q*8 + 4 + i
        if e & 1:
            A(f'v_and_b32 v{ds}, s54, v{sc + (e>>1)}'); A(f'v_and_b32 v{dc}, s54, v{zr + (e>>1)}')
        else:
            A(f'v_lshlrev_b32 v{ds}, 16, v{sc + (e>>1)}'); A(f'v_lshlrev_b32 v{dc}, 16, v{zr + (e>>1)}')
        A(f'v_mul_f32_e64 v{dc}, -v{dc}, v{ds}')
        A(f'v_mul_f32 v{ds}, s53, v{ds}')
    for k in range(4):
        A(f'ds_write_b128 v13, v[{t+4*k}:{t+4*k+3}] offset:{k*16}')
    A('s_add_u32 s50, s50, 3')
    A('s_cmp_lt_u32 s50, 8')
    A('s_cbranch_scc1 L_tab')
    for s in range(1, 8):
        A(f'v_xor_b32 v{32+s}, {2*s*16}, v11')
    A('s_waitcnt lgkmcnt(0)')
    A('s_barrier')
    for qb in range(2):
        for s in range(8):
            a = (qb*8 + s)*4
            if qb == 1 and s == 7: A('s_waitcnt lgkmcnt(8)')
            A(f'ds_read_b128 a[{a}:{a+3}], v{32+s if s else 11} offset:{qb*8192}')
    A('s_mov_b32 s50, s3')
    A('s_waitcnt lgkmcnt(0)')
    A('s_cmp_eq_u32 s3, 0')
    A('s_cbranch_scc1 L_tile')
    A('s_barrier')
    A('s_cmp_eq_u32 s3, 1')
    A('s_cbranch_scc1 L_tile')
    A('s_barrier'); A('s_barrier')

    A.label('L_tile')
    A('s_add_u32 s49, s50, s38')
    A('s_and_b32 s49, s49, 63')
    A('s_lshr_b32 s51, s49, 2')
    A('s_lshl_b32 s51, s51, 10')
    A('s_lshl_b32 s49, s49, 8')
    A(f'v_add_u32 v25, s49, v{VSA}')
    KSCUR = 24
    A(f'v_add_u32 v{KSCUR}, s51, v{KSA}')
    A(f'v_mov_b32 v{KADDR}, v{KBASE}')
    for x in range(1, 8):
        s3_, e = x >> 1, x & 1
        A(f'v_xor_b32 v{KADDR+x}, {(4*s3_+e)*16}, v{KBASE}')
    def kscale_reads(s):
        b = KST[s & 1]
        for k in range(4):
            A(f'ds_read_b128 v[{b+8+4*k}:{b+8+4*k+3}], v{KSCUR} offset:{s*128 + k*16}')
    def kraw_reads(s):
        b = KST[s & 1]
        for e in range(2):
            A(f'ds_read_b128 v[{b+4*e}:{b+4*e+3}], v{KADDR + (s&3)*2 + e} offset:{(s>>2)*256}')
    kscale_reads(0)
    A('s_barrier')
    kraw_reads(0)
    for s in range(8):
        if s + 1 < 8:
            kraw_reads(s+1); kscale_reads(s+1)
            A('s_waitcnt lgkmcnt(6)')
        else:
            A('s_waitcnt lgkmcnt(0)')
        b = KST[s & 1]; f = KFRAG + (s & 1)*4
        for e in range(2):
            for i in range(4):
                A(f'v_fma_mix_f32 v{b+4*e+i}, v{b+4*e+i}, v{b+8+8*e+i}, v{b+8+8*e+4+i} op_sel_hi:[1,0,0]')
        for k in range(4):
            A(f'v_cvt_pk_bf16_f32 v{f+k}, v{b+2*k}, v{b+2*k+1}')
        A('s_nop 1')
        for qb in range(2):
            a = (qb*8 + s)*4
            c = '0' if s == 0 else vr(S + qb*16, 16)
            A(f'v_mfma_f32_32x32x16_bf16 {vr(S+qb*16,16)}, {vr(f,4)}, {ar(a,4)}, {c}')
    A('s_barrier')
    for a in range(4):
        for k in range(2):
            A(f'ds_read_b128 v[{VSC+a*8+4*k}:{VSC+a*8+4*k+3}], v25 offset:{a*64 + k*16}')
    A('s_nop 4')
    T = [24, 25]; T2 = [26, 27]; AL = [28, 30]; Mx = [M0_, M1_]; Lx = [L0_, L1_]
    for qb in range(2):
        A(f'v_max3_f32 v{T[qb]}, v{S+qb*16}, v{S+qb*16+1}, v{S+qb*16+2}')
    for i in range(3, 15, 2):
        for qb in range(2):
            A(f'v_max3_f32 v{T[qb]}, v{T[qb]}, v{S+qb*16+i}, v{S+qb*16+i+1}')
    for qb in range(2): A(f'v_max_f32 v{T[qb]}, v{T[qb]}, v{S+qb*16+15}')
    for qb in range(2): A(f'v_mov_b32 v{T2[qb]}, v{T[qb]}')
    A('s_nop 1')
    for qb in range(2): A(f'v_permlane32_swap_b32 v{T[qb]}, v{T2[qb]}')
    for qb in range(2): A(f'v_max_f32 v{T[qb]}, v{T[qb]}, v{T2[qb]}')
    for qb in range(2): A(f'v_mul_f32 v{T[qb]}, s52, v{T[qb]}')
    for qb in range(2): A(f'v_max_f32 v{T[qb]}, v{T[qb]}, v{Mx[qb]}')
    for qb in range(2): A(f'v_sub_f32 v{AL[qb]}, v{Mx[qb]}, v{T[qb]}')
    for qb in range(2): A(f'v_exp_f32 v{AL[qb]}, v{AL[qb]}')
    for qb in range(2): A(f'v_mov_b32 v{Mx[qb]}, v{T[qb]}')
    for qb in range(2): A(f'v_mul_f32 v{Lx[qb]}, v{Lx[qb]}, v{AL[qb]}')
    for qb in range(2):
        for i in range(16): A(f'v_fma_f32 v{S+qb*16+i}, v{S+qb*16+i}, s52, -v{Mx[qb]}')
        for i in range(16): A(f'v_exp_f32 v{S+qb*16+i}, v{S+qb*16+i}')
    A('s_cmp_eq_u32 s50, 63')
    A('s_cbranch_scc1 L_skipBc')
    A('s_barrier')
    A.label('L_skipBc')
    for qb in range(2):
        for k in range(8):
            A(f'v_cvt_pk_bf16_f32 v{P+qb*8+k}, v{S+qb*16+2*k}, v{S+qb*16+2*k+1}')
        for i in range(0, 8, 2):
            A(f'v_pk_add_f32 {vr(S+qb*16+i,2)}, {vr(S+qb*16+i,2)}, {vr(S+qb*16+8+i,2)}')
        for i in range(0, 4, 2):
            A(f'v_pk_add_f32 {vr(S+qb*16+i,2)}, {vr(S+qb*16+i,2)}, {vr(S+qb*16+4+i,2)}')
        A(f'v_pk_add_f32 {vr(S+qb*16,2)}, {vr(S+qb*16,2)}, {vr(S+qb*16+2,2)}')
        A(f'v_add_f32 v{Lx[qb]}, v{Lx[qb]}, v{S+qb*16}')
        A(f'v_add_f32 v{Lx[qb]}, v{Lx[qb]}, v{S+qb*16+1}')
    for qb in range(2):
        for i in range(0, 64, 2):
            r = O + qb*64 + i
            A(f'v_pk_mul_f32 {vr(r,2)}, {vr(r,2)}, {vr(AL[qb],2)} op_sel_hi:[1,0]')
    A('s_waitcnt lgkmcnt(0)')
    stamp(3, stamps == 5)
    if stamps == 5: A('s_waitcnt lgkmcnt(0)')
    A('s_barrier')
    stamp(1, stamps == 5)
    if stamps == 5: A('s_waitcnt lgkmcnt(0)')
    def vread(t):
        a, b = t >> 2, t & 3
        A(f'ds_read_b128 {vr(VRAW+4*t,4)}, v{VA} offset:{(8*a+b)*512}')
    def vdeq(t):
        a, b = t >> 2, t & 3
        for j in range(4):
            r = VRAW + 4*t + j
            A(f'v_fma_mix_f32 v{r}, v{r}, v{VSC+a*8+b}, v{VSC+a*8+4+b} op_sel_hi:[1,0,0]')
    def vpack(u, j):
        f = VFRAG + (j & 1)*4
        for i in range(4):
            t = 8*u + 2*i
            A(f'v_cvt_pk_bf16_f32 v{f+i}, v{VRAW+4*t+j}, v{VRAW+4*(t+1)+j}')
    def vmfma(u, j, qb):
        f = VFRAG + (j & 1)*4
        A(f'v_mfma_f32_32x32x16_bf16 {vr(Oreg(qb,j),16)}, {vr(f,4)}, {vr(P+qb*8+u*4,4)}, {vr(Oreg(qb,j),16)}')
    for t in range(15): vread(t)
    A('s_waitcnt lgkmcnt(14)')
    vread(15)
    vdeq(0)
    for t in range(1, 8):
        A(f's_waitcnt lgkmcnt({15-t})')
        vdeq(t)
    for j in range(4):
        vpack(0, j)
        A(f's_waitcnt lgkmcnt({15-(8+2*j)})')
        vdeq(8 + 2*j)
        vmfma(0, j, 0)
        A(f's_waitcnt lgkmcnt({15-(9+2*j)})')
        vdeq(9 + 2*j)
        vmfma(0, j, 1)
    vpack(1, 0)
    for j in range(4):
        if j == 0: A('s_nop 1')
        vmfma(1, j, 0)
        if j < 3: vpack(1, j+1)
        vmfma(1, j, 1)
        if j < 3: A('s_nop 0')
    A('s_add_u32 s50, s50, 3')
    A('s_cmp_ge_u32 s50, 64')
    A('s_cbranch_scc1 L_cdone')
    A('s_barrier')
    if ctl:
        A('s_cmp_lg_u32 s3, 2')
        A('s_cbranch_scc1 L_noMark')
        A('s_mov_b32 s82, s80')
        A('s_memrealtime s[80:81]')
        A('v_accvgpr_read_b32 v80, a65')
        A('s_mov_b64 exec, 0xffff')
        A('v_add_u32 v80, s85, v80')
        A('s_add_u32 s85, s85, 4352')
        A('global_load_dword v81, v80, s[22:23] sc1')
        A('s_mov_b64 exec, -1')
        A.label('L_noMark')
    A('s_cmp_eq_u32 s50, 3')
    A('s_cbranch_scc1 L_tile')
    A('s_barrier')
    if ctl:
        A('s_cmp_lg_u32 s3, 2')
        A('s_cbranch_scc1 L_noCtl')
        A('s_waitcnt lgkmcnt(0)')
        A('s_sub_u32 s83, s80, s78')
        A('s_sub_u32 s47, s82, s78')
        A('v_add_u32 v80, 4352, v80')
        A('v_mov_b32 v82, s80')
        A('s_waitcnt vmcnt(0)')
        A('s_cmp_lg_u32 s87, 5')
        A('s_cbranch_scc1 L_noPub')
        A('s_mov_b64 exec, s[90:91]')
        A('global_store_dword v80, v82, s[22:23] sc1')
        A('s_mov_b64 exec, -1')
        A.label('L_noPub')
        A('s_cmp_eq_u32 s50, 5')
        A('s_cbranch_scc1 L_tile')
        A('v_subrev_u32 v81, s78, v81')
        A('v_min_u32 v81, s83, v81')
        A(f'v_mov_b32 v83, {WCTL}')
        A('s_nop 0')
        for sh in (1, 2, 4, 8):
            A(f'v_add_u32_dpp v81, v81, v81 row_ror:{sh} row_mask:0xf bank_mask:0xf')
            A('s_nop 1')
        A('v_readfirstlane_b32 s48, v81')
        A('s_lshl_b32 s47, s47, 4')
        A('s_lshl_b32 s83, s83, 4')
        A('s_sub_i32 s47, s47, s48')
        A('s_add_i32 s84, s84, s47')
        if pred:
            A('s_sub_u32 s49, s48, s88')
            A('s_mov_b32 s88, s48')
            A('s_min_u32 s51, s49, s89')
            A('s_mov_b32 s89, s49')
            A('s_add_u32 s48, s48, s51')
            A('s_sub_i32 s48, s83, s48')
            A('s_cmp_le_u32 s50, 8')
            A('s_cselect_b32 s47, s47, s48')
        A(f's_max_i32 s84, s84, {-(6*8192)//max(ki,1)}'); A(f's_min_i32 s84, s84, {(6*8192)//max(ki,1)}')
        A(f's_mul_i32 s47, s47, {kp}')
        A(f's_mul_i32 s48, s84, {ki}')
        A('s_add_i32 s47, s47, s48')
        A(f's_add_i32 s47, s47, {W*8192 + 4096}')
        A('s_ashr_i32 s47, s47, 13')
        A(f's_max_i32 s47, s47, {Wmin}'); A(f's_min_i32 s47, s47, {Wmax}')
        if ctl == 2: A(f's_mov_b32 s47, {W}')
        A('v_mov_b32 v81, s47')
        A('ds_write_b32 v83, v81')
        A('s_waitcnt lgkmcnt(0)')
        A('s_branch L_tile')
        A.label('L_noCtl')
    A('s_cmp_lg_u32 s50, 4')
    A('s_cbranch_scc1 L_noAnn')
    A('s_cmp_lg_u32 s2, 0')
    A('s_cbranch_scc1 L_tile')
    A('v_mov_b32 v80, 0')
    A('v_mov_b32 v81, 1')
    A('s_waitcnt vmcnt(0)')
    A('s_mov_b64 exec, 1')
    A('global_store_dword v80, v81, s[20:21] sc1')
    A('s_mov_b64 exec, -1')
    A.label('L_noAnn')
    A(f's_cmp_lg_u32 s50, {warmat}')
    A('s_cbranch_scc1 L_tile')
    A('v_mov_b32 v80, 0')
    A('global_load_dword a64, v80, s[20:21] sc1')
    if 'c' in warm:
        A('s_getpc_b64 s[56:57]')
        A.label('L_pcref')
        A('s_add_u32 s56, s56, L_cdone-L_pcref'); A('s_addc_u32 s57, s57, 0')
        A('v_mbcnt_lo_u32_b32 v80, -1, 0'); A('v_mbcnt_hi_u32_b32 v80, -1, v80')
        A('v_lshlrev_b32 v80, 7, v80')
        A('v_min_u32 v80, L_end-L_cdone, v80')
        A('global_load_dword a66, v80, s[56:57]')
    if 't' in warm:
        A('s_and_b32 s47, s40, 3')
        A('s_lshl_b32 s48, s40, 15'); A('s_lshl_b32 s49, s47, 13'); A('s_add_u32 s48, s48, s49')
        A('v_mov_b32 v80, s48')
        A('global_load_dword a67, v80, s[22:23]')
        A('s_lshl_b32 s48, s40, 11'); A('s_lshl_b32 s49, s47, 9'); A('s_add_u32 s48, s48, s49'); A(f's_add_u32 s48, s48, {WS_STATS}')
        A('v_mov_b32 v81, s48')
        A('global_load_dword a68, v81, s[22:23]')
        A('s_lshl_b32 s48, s41, 14'); A('s_lshr_b32 s49, s47, 1'); A('s_lshl_b32 s49, s49, 13'); A('s_add_u32 s48, s48, s49')
        A('s_and_b32 s49, s47, 1'); A('s_lshl_b32 s49, s49, 7'); A('s_add_u32 s48, s48, s49')
        A('v_mov_b32 v82, s48')
        A('global_load_dword a69, v82, s[18:19]')
    A('s_branch L_tile')

    A.label('L_cdone')
    A('s_cmp_eq_u32 s3, 0')
    A('s_cbranch_scc1 L_dump')
    A('s_barrier')
    A('s_cmp_lg_u32 s3, 1')
    A('s_cbranch_scc1 L_dump')
    A('v_mov_b32 v80, 0')
    A('s_mov_b32 s48, 0x100000')
    A.label('L_annWait')
    A('s_waitcnt vmcnt(0)')
    A('v_accvgpr_read_b32 v81, a64')
    A('s_sub_u32 s48, s48, 1')
    A('s_cbranch_scc1 L_dump')
    A('v_readfirstlane_b32 s47, v81')
    A('s_nop 1')
    A('s_cmp_lg_u32 s47, 0')
    A('s_cbranch_scc1 L_dump')
    A('global_load_dword a64, v80, s[20:21] sc1')
    A('s_branch L_annWait')
    A.label('L_dump')
    stamp(4, stamps == 5)
    A('v_mbcnt_lo_u32_b32 v8, -1, 0')
    A('v_mbcnt_hi_u32_b32 v8, -1, v8')
    A('v_lshlrev_b32 v9, 3, v8')
    A('s_lshl_b32 s47, s3, 10')
    A(f's_add_u32 s47, s47, {STATS}')
    A('v_add_u32 v9, s47, v9')
    A('v_lshlrev_b32 v10, 4, v8')
    A('v_add_u32 v10, s46, v10')
    for qb in range(2): A(f'v_mov_b32 v{12+qb}, v{Lx[qb]}')
    A('s_nop 1')
    for qb in range(2): A(f'v_permlane32_swap_b32 v{Lx[qb]}, v{12+qb}')
    for qb in range(2):
        A(f'v_mov_b32 v{16+2*qb}, v{Mx[qb]}')
        A(f'v_add_f32 v{17+2*qb}, v{Lx[qb]}, v{12+qb}')
    for qb in range(2):
        A(f'ds_write_b64 v9, v[{16+2*qb}:{17+2*qb}] offset:{qb*512}')
    for qb in range(2):
        for a in range(4):
            for j in range(4):
                blk = (qb*2 + (a >> 1))*8 + (a & 1)*4 + j
                A(f'ds_write_b128 v10, {vr(Oreg(qb,j)+4*a,4)} offset:{blk*1024}')
    A('s_waitcnt lgkmcnt(0)')
    A('s_cmp_lg_u32 s3, 1')
    A('s_cbranch_scc1 L_epilogue')
    A('s_barrier'); A('s_barrier')

    A.label('L_epilogue')
    A('v_mbcnt_lo_u32_b32 v0, -1, 0')
    A('v_mbcnt_hi_u32_b32 v0, -1, v0')
    A('s_and_b32 s43, s40, 3')
    A('s_add_u32 s55, s43, s3'); A('s_add_u32 s55, s55, 1'); A('s_and_b32 s55, s55, 3')
    A('s_lshr_b32 s47, s55, 1')
    A('s_lshl_b32 s47, s47, 9')
    A(f's_add_u32 s47, s47, {STATS}')
    A('v_lshlrev_b32 v5, 3, v0')
    A('v_add_u32 v1, s47, v5')
    A('s_lshl_b32 s47, s55, 13')
    A('v_lshlrev_b32 v2, 4, v0')
    A('v_add_u32 v3, s47, v2')
    A('v_add_u32 v4, 0x10000, v3')
    A('s_lshl_b32 s56, s41, 2'); A('s_or_b32 s56, s56, s55')
    A('s_lshl_b32 s42, s56, 15')
    srd(A, 24, 22, 's42', 32768)
    A('s_lshl_b32 s42, s56, 11')
    A(f's_add_u32 s42, s42, {WS_STATS}')
    srd(A, 28, 22, 's42', 2048)
    if fsep: A('s_lshl_b32 s42, s56, 9')
    else: A('s_lshl_b32 s42, s41, 8'); A('s_lshl_b32 s48, s55, 4'); A('s_add_u32 s42, s42, s48')
    A(f's_add_u32 s42, s42, {WS_FLAGS}')
    A(f'v_lshlrev_b32 v7, {7 if fsep else 2}, v0')
    A('v_add_u32 v7, s42, v7')
    stamp(5, stamps == 5)
    if stamps == 5: A('s_waitcnt lgkmcnt(0)')
    A('s_barrier')
    stamp(3, stamps == 4)
    for c in range(3):
        A(f'ds_read_b64 v[{8+2*c}:{9+2*c}], v1 offset:{c*1024}')
    if stamps == 4: A('s_waitcnt lgkmcnt(0)')
    R = 32
    def dread(c, i):
        if c < 2: A(f'ds_read_b128 {vr(R+c*32+4*i,4)}, v3 offset:{c*32768 + i*1024}')
        else: A(f'ds_read_b128 {vr(R+c*32+4*i,4)}, v4 offset:{i*1024}')
    for i in range(4):
        for c in range(3): dread(c, i)
    A('s_waitcnt lgkmcnt(12)')
    A('v_max3_f32 v14, v8, v10, v12')
    for c in range(3): A(f'v_sub_f32 v{16+2*c}, v{8+2*c}, v14')
    for c in range(3): A(f'v_exp_f32 v{16+2*c}, v{16+2*c}')
    A('s_nop 0')
    A('v_mul_f32 v15, v9, v16')
    A('v_fmac_f32 v15, v11, v18')
    A('v_fmac_f32 v15, v13, v20')
    A('s_lshl_b32 s57, s43, 13')
    A('s_lshl_b32 s58, s43, 9')
    def merge(i):
        if i < 4:
            A(f's_waitcnt lgkmcnt(9)')
            for c in range(3): dread(c, i+4)
        else:
            A(f's_waitcnt lgkmcnt({3*(7-i)})')
        for k in range(0, 4, 2):
            r = R + 4*i + k
            A(f'v_pk_mul_f32 {vr(r,2)}, {vr(r,2)}, v[16:17] op_sel_hi:[1,0]')
            A(f'v_pk_fma_f32 {vr(r,2)}, {vr(r+32,2)}, v[18:19], {vr(r,2)} op_sel_hi:[1,0,1]')
            A(f'v_pk_fma_f32 {vr(r,2)}, {vr(r+64,2)}, v[20:21], {vr(r,2)} op_sel_hi:[1,0,1]')
    A('s_cmp_eq_u32 s3, 3')
    A('s_cbranch_scc1 L_recv')
    A('buffer_store_dwordx2 v[14:15], v5, s[28:31], s58 offen sc1')
    for i in range(8):
        merge(i)
        if i == 4: A('s_add_u32 s57, s57, 4096')
        A(f'buffer_store_dwordx4 {vr(R+4*i,4)}, v2, s[24:27], s57 offen offset:{(i&3)*1024} sc1')
    A('v_mov_b32 v6, 1')
    A('s_lshl_b64 s[58:59], 1, s43')
    stamp(6, stamps == 5)
    A('s_waitcnt vmcnt(0)')
    stamp(2, stamps == 5)
    A('s_mov_b64 exec, s[58:59]')
    A('global_store_dword v7, v6, s[22:23] sc1')
    A('s_mov_b64 exec, -1')
    A('s_branch L_fin')
    A.label('L_recv')
    for i in range(8): merge(i)
    stamp(4, stamps == 4)
    A('s_lshl_b32 s42, s41, 14')
    A('s_lshr_b32 s56, s55, 1'); A('s_lshl_b32 s56, s56, 13')
    A('s_add_u32 s42, s42, s56')
    srd(A, 32, 18, 's42', 8192)
    A('s_and_b32 s56, s55, 1'); A('s_lshl_b32 s56, s56, 7')
    A('v_and_b32 v4, 31, v0'); A('v_lshlrev_b32 v4, 8, v4')
    A('v_lshrrev_b32 v3, 5, v0'); A('v_lshl_or_b32 v4, v3, 5, v4')
    D = 128
    A('s_lshl_b32 s48, 1, s43')
    A('s_mov_b32 s49, 0x100000')
    A.label('L_poll')
    A('s_mov_b64 exec, 15')
    A(f'global_load_dword v6, v7, s[22:23] {pflags}')
    A('s_waitcnt vmcnt(0)')
    A('v_cmp_ne_u32 vcc, 0, v6')
    A('s_mov_b64 exec, -1')
    A('s_sub_u32 s49, s49, 1')
    A('s_cbranch_scc1 L_final')
    A('s_andn2_b32 s47, vcc_lo, s48')
    A('s_cbranch_scc0 L_poll')
    A('s_or_b32 s48, s48, s47')
    for k in range(3):
        A(f's_add_u32 s51, s43, {k+1}'); A('s_and_b32 s51, s51, 3')
        A('s_bitcmp1_b32 s47, s51')
        A(f's_cbranch_scc0 L_skip{k}')
        A('s_lshl_b32 s57, s51, 9')
        A(f'buffer_load_dwordx2 v[{224+2*k}:{225+2*k}], v5, s[28:31], s57 offen sc1')
        A('s_lshl_b32 s57, s51, 13')
        for i in range(8):
            if i == 4: A('s_add_u32 s57, s57, 4096')
            A(f'buffer_load_dwordx4 {vr(D+32*k+4*i,4)}, v2, s[24:27], s57 offen offset:{(i&3)*1024} sc1')
        A.label(f'L_skip{k}')
    A('s_cmp_lg_u32 s48, 15')
    A('s_cbranch_scc1 L_poll')
    A.label('L_final')
    stamp(5, stamps == 4)
    A('s_waitcnt vmcnt(8)')
    A('v_max3_f32 v8, v224, v226, v228'); A('v_max_f32 v8, v8, v14')
    A('v_sub_f32 v16, v14, v8')
    for k in range(3): A(f'v_sub_f32 v{18+2*k}, v{224+2*k}, v8')
    for k in range(4): A(f'v_exp_f32 v{16+2*k}, v{16+2*k}')
    A('s_nop 0')
    A('v_mul_f32 v9, v15, v16')
    for k in range(3): A(f'v_fmac_f32 v9, v{225+2*k}, v{18+2*k}')
    A('v_rcp_f32 v9, v9')
    A('s_nop 0')
    for k in range(4): A(f'v_mul_f32 v{16+2*k}, v{16+2*k}, v9')
    for aa in range(2):
        if aa == 0: A('s_waitcnt vmcnt(4)')
        else: A('s_waitcnt vmcnt(2)')
        for x in range(aa*16, aa*16+16, 2):
            A(f'v_pk_mul_f32 {vr(R+x,2)}, {vr(R+x,2)}, v[16:17] op_sel_hi:[1,0]')
            for k in range(3):
                A(f'v_pk_fma_f32 {vr(R+x,2)}, {vr(D+32*k+x,2)}, {vr(18+2*k,2)}, {vr(R+x,2)} op_sel_hi:[1,0,1]')
        for k in range(8):
            b, j = k >> 1, 2*(k & 1)
            A(f'v_cvt_pk_bf16_f32 v{64+aa*8+k}, v{R+aa*16+4*j+b}, v{R+aa*16+4*(j+1)+b}')
        A(f'buffer_store_dwordx4 {vr(64+aa*8,4)}, v4, s[32:35], s56 offen offset:{aa*64} {oflags}')
        A(f'buffer_store_dwordx4 {vr(64+aa*8+4,4)}, v4, s[32:35], s56 offen offset:{aa*64+16} {oflags}')
    stamp(6, stamps == 4)
    A.label('L_fin')
    if diag:
        A('s_waitcnt vmcnt(0)')
        A('s_memrealtime s[84:85]')
        A('v_mov_b32 v18, 128')
        A('global_load_dword v17, v18, s[20:21] sc1')
        A('s_waitcnt vmcnt(0) lgkmcnt(0)')
        A('v_readfirstlane_b32 s81, v17')
        A('s_nop 1')
        A('s_not_b32 s81, s81')
        A('s_mov_b32 s86, 0')
        A(f's_cmp_lg_u32 s3, {0 if stamps == 5 else 3}')
        A('s_cbranch_scc1 L_dg')
        if diag.startswith('iv'):
            a_, b_ = int(diag[2]), int(diag[3])
            if len(diag) > 4:
                A('s_cmp_lg_u32 s2, 77'); A('s_cbranch_scc1 L_dg')
            ra = 84 if a_ == 9 else 60 + 2*a_
            rb = 84 if b_ == 9 else 60 + 2*b_
            A(f's_sub_u32 s86, s{rb}, s{ra}'); A('s_mul_i32 s86, s86, 20')
        if diag == 'tail': A('s_sub_u32 s86, s84, s82'); A('s_mul_i32 s86, s86, 10')
        if diag == 'send': A('s_sub_u32 s86, s82, s81'); A('s_sub_u32 s86, s86, 6500'); A('s_mul_i32 s86, s86, 10')
        if diag == 'fin': A('s_sub_u32 s86, s84, s81'); A('s_sub_u32 s86, s86, 6500'); A('s_mul_i32 s86, s86, 10')
        if diag == 'sendmin': A('s_sub_u32 s86, s82, s81'); A('s_sub_u32 s86, 9000, s86'); A('s_mul_i32 s86, s86, 10')
        A('s_min_u32 s86, s86, 100000')
        A.label('L_dg')
        A('s_add_u32 s86, s86, 10000')
        A.label('L_spin')
        A('s_memrealtime s[78:79]')
        A('s_waitcnt lgkmcnt(0)')
        A('s_sub_u32 s80, s78, s81')
        A(f's_cmp_lt_u32 s80, s86')
        A('s_cbranch_scc1 L_spin')
    if stamps and not diag:
        A('s_waitcnt vmcnt(0)')
        stamp(2, stamps != 5)
        A('s_waitcnt lgkmcnt(0)')
        A(f's_cmp_lg_u32 s3, {0 if stamps == 5 else 3}')
        A('s_cbranch_scc1 L_end')
        A('s_getreg_b32 s74, hwreg(HW_REG_XCC_ID)')
        A(f's_mov_b32 s75, {7 if stamps >= 4 else 4 if stamps == 2 else 3}')
        for i in range(16): A(f'v_mov_b32 v{8+i}, s{60+i}')
        A('s_lshl_b32 s42, s2, 6')
        A('s_add_u32 s42, s42, 0x10000000')
        A('v_mov_b32 v1, s42')
        A('s_mov_b64 exec, 1')
        for i in range(4): A(f'global_store_dwordx4 v1, v[{8+4*i}:{11+4*i}], s[22:23] offset:{16*i}')
        if stamps == 3:
            A('s_mov_b64 exec, -1')
            A('s_lshl_b32 s42, s2, 8')
            A('s_add_u32 s42, s42, 0x11000000')
            A('v_lshlrev_b32 v1, 2, v0')
            A('v_add_u32 v1, s42, v1')
            A('global_store_dword v1, v240, s[22:23]')
            A('v_add_u32 v1, 0x10000, v1')
            A('global_store_dword v1, v241, s[22:23]')
    A.label('L_end')
    A('s_endpgm')

    A('.section .rodata,"a"')
    A('.p2align 6')
    A(f'.amdhsa_kernel {main}')
    for l in ['.amdhsa_next_free_vgpr 328', '.amdhsa_next_free_sgpr 96', '.amdhsa_accum_offset 256',
              '.amdhsa_group_segment_fixed_size 0', '.amdhsa_kernarg_size 80', '.amdhsa_user_sgpr_count 2',
              '.amdhsa_user_sgpr_kernarg_segment_ptr 1', '.amdhsa_system_sgpr_workgroup_id_x 1',
              '.amdhsa_float_denorm_mode_32 3', '.amdhsa_float_denorm_mode_16_64 3']:
        A.lines.append('  ' + l)
    A('.end_amdhsa_kernel')
    return A.text()

if __name__ == '__main__':
    kw = eval('dict(' + (sys.argv[2] if len(sys.argv) > 2 else '') + ')')
    t = gen(**kw)
    errs = check_hazards(t)
    for e in errs: print('HAZARD', e)
    out = sys.argv[1] if len(sys.argv) > 1 and sys.argv[1] != '-' else f'cdna_kernels/{NAME}.s'
    open(out, 'w').write(t)
    import subprocess
    r = subprocess.run(['clang', '-x', 'assembler', '-target', 'amdgcn-amd-amdhsa', '-mcpu=gfx950', '-c', out, '-o', 'chk.o'], capture_output=True, text=True)
    print('wrote', out, len(t), 'bytes', 'hazards', len(errs), 'asm rc', r.returncode, r.stderr[:1500])
```

```python
import sys, math, struct
sys.path.insert(0, 'gen')
from asmlib import *

NAME = 'standalone__kv_cache_quant_int4_int2_kv_with_per_channel_or_per_token_scales__sampling'
HEADER = open(f'cdna_kernels/{NAME}.s.ref').read().split('; Override launch geometry')[0]

SLOT = 16384
RING = 6*SLOT
KS_T = RING
VS_T = RING + 16384
QST = RING + 32768
PB = QST
MP = QST + 16384
ALB = MP + 1536
MLB = ALB + 1536
OWNS = MLB + 3072
WCTL = OWNS + 512
LDS_BYTES = WCTL + 512
STG = 5*SLOT
WS_FLAGS = 0x900000
WS_CTR = 0xa00000

CSCALE = (128.0 ** -0.5) * math.log2(math.e)
def f2u(x): return struct.unpack('<I', struct.pack('<f', x))[0]

def srd(A, d, base_lo, off_lo, nbytes):
    A(f's_add_u32 s{d}, s{base_lo}, {off_lo}')
    A(f's_addc_u32 s{d+1}, s{base_lo+1}, 0')
    A(f's_and_b32 s{d+1}, s{d+1}, 0xffff')
    A(f's_mov_b32 s{d+2}, {nbytes}')
    A(f's_mov_b32 s{d+3}, 0x20000')

def gen(W=19, flags='nt', stamps=0, wgmap=1, qflags='', sflags='nt', oflags='', diag='', ctl=1, Wmin=14, Wmax=27,
        kp=12, ki=2, pflags='sc1', greedy=0, Wst=16, G=1, rot=(1,3,1), phi=(1,4), warm='', warmat=52, xflags='sc1', prio=3, stw=0, Wend=None, Gst=4, touch=0):
    if Wend is None: Wend = W
    if not ctl: Wmin = Wmax = W
    A = Asm()
    A.lines += HEADER.rstrip('\n').split('\n')
    main = NAME + '_kernel'
    A(f'; @launch grid=(256,1,1) block=(512,1,1) lds={LDS_BYTES}')
    A('.amdgcn_target "amdgcn-amd-amdhsa--gfx950"')
    A('.text')
    A(f'.globl {main}')
    A('.p2align 8')
    A(f'.type {main},@function')
    A(f'{main}:')
    def stamp(i, cond=True, wait=False):
        if stamps and cond:
            A(f's_memrealtime s[{60+2*i}:{61+2*i}]')
            if wait: A('s_waitcnt lgkmcnt(0)')
    A('s_cmp_ge_u32 s2, 256')
    A('s_cbranch_scc1 L_end')
    stamp(0)
    if diag: A('s_memrealtime s[76:77]')
    A('s_load_dwordx16 s[4:19], s[0:1], 0')
    A('s_load_dwordx4 s[20:23], s[0:1], 64')
    A('v_lshrrev_b32 v1, 6, v0')
    A('v_and_b32 v0, 63, v0')
    A('v_readfirstlane_b32 s3, v1')
    if wgmap == 0:
        A('s_mov_b32 s40, s2')
    elif wgmap == 1:
        A('s_and_b32 s40, s2, 7'); A('s_lshl_b32 s40, s40, 2')
        A('s_lshr_b32 s41, s2, 3'); A('s_and_b32 s41, s41, 3'); A('s_or_b32 s40, s40, s41')
        A('s_and_b32 s41, s2, 0xe0'); A('s_or_b32 s40, s40, s41')
    elif wgmap == 2:
        A('s_and_b32 s40, s2, 7'); A('s_lshl_b32 s40, s40, 5')
        A('s_lshr_b32 s41, s2, 3'); A('s_or_b32 s40, s40, s41')
    A('s_lshr_b32 s41, s40, 2')
    if rot:
        if rot[0] != 1: A(f's_mul_i32 s38, s2, {rot[0]}'); A(f's_lshr_b32 s38, s38, {rot[1]}')
        else: A(f's_lshr_b32 s38, s2, {rot[1]}')
        A(f's_and_b32 s38, s38, {rot[2]}')
    else: A('s_mov_b32 s38, 0')
    A('s_cmp_lg_u32 s3, 0')
    A('s_cbranch_scc1 L_worker')

    if prio: A(f's_setprio {prio}')
    A('v_lshlrev_b32 v16, 4, v0')
    A('s_lshl_b32 s42, s40, 12')
    A('v_add_u32 v17, s42, v16')
    A(f's_mov_b32 m0, {STG}')
    A('v_lshrrev_b32 v1, 4, v0')
    A('v_and_b32 v2, 15, v0')
    A('v_xor_b32 v2, v2, v1')
    A('v_lshlrev_b32 v2, 4, v2')
    A('v_lshl_or_b32 v2, v1, 8, v2')
    A('s_lshl_b32 s43, s41, 14')
    A('v_add_u32 v20, s43, v2')
    for jj in range(1, 4):
        A(f'v_xor_b32 v{20+jj}, {4*jj*16}, v20')
    if touch:
        A('s_lshl_b32 s42, s40, 20'); A('s_lshl_b32 s44, s38, 14'); A('s_add_u32 s42, s42, s44'); A('v_mov_b32 v26, s42')
    A('s_waitcnt lgkmcnt(0)')
    if touch:
        A('s_mov_b64 exec, 1')
        A(f'global_load_dword v24, v26, s[6:7]')
        A(f'global_load_dword v25, v26, s[8:9]')
        A('s_mov_b64 exec, -1')
    for g in range(4):
        if g: A(f's_mov_b32 m0, {STG + g*4096}')
        if g*4 > Wst: A(f's_waitcnt vmcnt({Wst})')
        if g: A('s_nop 0')
        for i in range(4):
            A(f'global_load_lds_dwordx4 v17, s[{10+2*g}:{11+2*g}] offset:{i*1024} {sflags}')
    for g in range(4):
        A(f's_mov_b32 m0, {QST + g*4096}')
        if 16 + g*4 > Wst: A(f's_waitcnt vmcnt({Wst})')
        A('s_nop 0')
        for i in range(4):
            A(f'global_load_lds_dwordx4 v{20+i}, s[4:5] offset:{i*1024} {qflags}')
        if g < 3:
            A('s_add_u32 s4, s4, 4096'); A('s_addc_u32 s5, s5, 0')
        if g == 0:
            A('v_lshrrev_b32 v1, 5, v0')
            A('v_and_b32 v2, 31, v0')
            A('v_xor_b32 v2, v2, v1')
            A('v_lshlrev_b32 v2, 4, v2')
            A('v_lshl_or_b32 v8, v1, 9, v2')
            if phi:
                A(f's_mul_i32 s37, s2, {phi[0]}'); A(f's_lshr_b32 s37, s37, {phi[1]}'); A(f's_and_b32 s37, s37, 3')
                A('s_and_b32 s36, s37, 1'); A('s_lshl_b32 s36, s36, 7'); A('v_xor_b32 v8, s36, v8')
                A('s_lshl_b32 s32, s37, 12')
                for gg in range(1, 4): A(f's_xor_b32 s{32+gg}, s32, {gg*4096}')
            for j in range(1, 8):
                A(f'v_xor_b32 v{8+j}, {2*j*16}, v8')
            A('s_lshl_b32 s42, s40, 20')
            srd(A, 24, 6, 's42', 1 << 20)
            srd(A, 28, 8, 's42', 1 << 20)
            A('s_lshl_b32 s44, s38, 14'); A('s_mov_b32 s45, s44'); A('s_mov_b32 s46, 0'); A(f's_mov_b32 s47, {SLOT}')
            A(f'v_mov_b32 v31, {WCTL}')
    def slot(kind, w, st=None, last=False, rd=False, GG=4):
        so, lb, sd = (44, 46, 's[24:27]') if kind == 'K' else (45, 47, 's[28:31]')
        bi = max(0, (w - 16 + GG - 1) // GG * GG)
        assert bi < 16
        for jj in range(16):
            g, i = jj >> 2, jj & 3
            if i == 0:
                go = f's{32+g}' if phi else g*4096
                A(f's_add_u32 m0, s{lb}, {go}')
                A(f's_add_u32 s48, s{so}, {go}')
                if rd and g == 3: A('ds_read_b32 v30, v31')
            if last and greedy:
                if jj == 0: A('s_waitcnt vmcnt(16)'); A('s_barrier')
            else:
                if jj % GG == 0: A(f's_waitcnt vmcnt({w})')
                if jj == bi:
                    if st is not None: stamp(st, stamps == 2)
                    A('s_barrier')
            vo = 8 + (jj & 7) if kind == 'K' else 16
            A(f'buffer_load_dwordx4 v{vo}, {sd}, s48 offen offset:{i*1024} {flags} lds')
    def adv(kind):
        so, lb = (44, 46) if kind == 'K' else (45, 47)
        A(f's_add_u32 s{so}, s{so}, {SLOT}')
        if rot: A(f's_and_b32 s{so}, s{so}, 0xfffff')
        A(f's_add_u32 s{lb}, s{lb}, {2*SLOT}')
        A(f's_cmp_ge_u32 s{lb}, {RING}')
        A(f's_cselect_b32 s49, {RING}, 0')
        A(f's_sub_u32 s{lb}, s{lb}, s49')
    slot('K', Wst, 3, GG=Gst); adv('K')
    slot('K', Wst, 4, GG=Gst); adv('K')
    stamp(5, stamps == 2)
    A(f's_mov_b32 s50, 62')
    if stamps == 3: A('s_memrealtime s[88:89]'); A(f's_mov_b32 s93, {W}')
    order = sorted(range(Wmin, Wmax+1), key=lambda w: (abs(w - W), w))
    for n, w in enumerate(order):
        A.label(f'L_it{w}')
        slot('K', w, GG=G)
        slot('V', w, rd=bool(ctl), GG=G)
        if n == 0:
            A.label('L_next')
            adv('K'); adv('V')
            if stamps == 3:
                A('s_waitcnt lgkmcnt(0)')
                A('s_mov_b32 m0, s50')
                A('s_nop 0')
                A('v_writelane_b32 v120, s88, m0')
                A('v_writelane_b32 v121, s93, m0')
            A('s_sub_u32 s50, s50, 1')
            A('s_cmp_eq_u32 s50, 0')
            A('s_cbranch_scc1 L_lastslot')
            if ctl:
                A('s_waitcnt lgkmcnt(0)')
                A('v_readfirstlane_b32 s93, v30')
                if stamps == 3: A('s_memrealtime s[88:89]')
                else: A('s_nop 0')
                for w2 in order[:-1]:
                    A(f's_cmp_eq_u32 s93, {w2}')
                    A(f's_cbranch_scc1 L_it{w2}')
            elif stamps == 3: A('s_memrealtime s[88:89]')
            A(f's_branch L_it{order[-1]}')
        else:
            A('s_branch L_next')
    A.label('L_lastslot')
    slot('V', Wend, GG=G); adv('V')
    slot('V', Wend, last=True, GG=G)
    A('s_waitcnt vmcnt(16)'); A('s_barrier')
    A('s_waitcnt vmcnt(0) lgkmcnt(0)')
    if diag and not stamps: A('s_memrealtime s[82:83]')
    stamp(1)
    A('s_barrier')
    A('s_branch L_recv')

    A.label('L_worker')
    A('s_and_b32 s43, s40, 3')
    A('v_and_b32 v8, 31, v0')
    A('v_lshrrev_b32 v9, 5, v0')
    A('s_cmp_ge_u32 s3, 4')
    A('s_cbranch_scc1 L_pv')
    KBASE, KSA, L8, L16, M0_, M1_, L0_, L1_ = 0, 1, 2, 3, 4, 5, 6, 7
    P = 8; KADDR = 8; KFRAG = 16; KST = (32, 56); S = 96
    if ctl: A('s_memrealtime s[78:79]')
    A('s_sub_u32 s39, s3, 1')
    A(f'v_lshlrev_b32 v{L8}, 3, v0')
    A(f'v_lshlrev_b32 v{L16}, 4, v0')
    A('v_lshlrev_b32 v14, 6, v0')
    A('s_lshl_b32 s46, s39, 15')
    A('v_and_b32 v12, 15, v8')
    A('v_xor_b32 v11, v12, v9')
    A('v_lshlrev_b32 v11, 4, v11')
    A('v_lshl_or_b32 v11, v8, 8, v11')
    A(f'v_add_u32 v11, {QST}, v11')
    A('v_mul_u32_u24 v90, 0x22100, v12')
    A('v_lshlrev_b32 v13, 1, v9')
    A('v_xor_b32 v12, v12, v13')
    A('v_lshlrev_b32 v12, 4, v12')
    A('v_lshl_or_b32 v12, v8, 9, v12')
    A(f'v_lshlrev_b32 v{KSA}, 6, v9')
    A(f'v_add_u32 v{KSA}, {KS_T}, v{KSA}')
    A(f'v_lshlrev_b32 v15, 11, v0')
    A(f'v_add_u32 v15, {WS_FLAGS}, v15')
    A('v_mov_b32 v16, 0')
    A(f'v_mov_b32 v20, {WCTL}')
    A(f'v_mov_b32 v22, {W}')
    A('s_lshl_b32 s47, s39, 9'); A(f's_add_u32 s48, s47, {MP}')
    A(f'v_add_u32 v85, s48, v{L8}')
    A('s_sub_u32 s48, s48, 512'); A('s_cmp_eq_u32 s39, 0'); A(f's_cselect_b32 s48, {MP+1024}, s48')
    A(f'v_add_u32 v84, s48, v{L8}')
    A(f's_add_u32 s48, s47, {ALB}'); A('v_lshl_add_u32 v86, v0, 2, s48')
    A('s_lshl_b32 s47, s39, 12'); A(f's_add_u32 s48, s47, {PB}'); A(f'v_add_u32 v87, s48, v{L16}')
    A('s_lshl_b32 s47, s39, 10'); A(f's_add_u32 s48, s47, {MLB}'); A(f'v_add_u32 v88, s48, v{L8}')
    A(f'v_mov_b32 v{M0_}, 0xff800000'); A(f'v_mov_b32 v{M1_}, 0xff800000')
    A(f'v_mov_b32 v{L0_}, 0'); A(f'v_mov_b32 v{L1_}, 0')
    A('s_waitcnt lgkmcnt(0)')
    A('ds_write_b32 v20, v22')
    A(f'ds_write_b64 v85, v[{M0_}:{M1_}]')
    A('s_lshl_b32 s47, s2, 2')
    A('s_or_b32 s47, s47, s39')
    A('s_cmp_lg_u32 s47, 1')
    A('s_cbranch_scc1 L_noReset')
    for i in range(16):
        if (i >> 2) != (i & 3): A(f'global_store_dword v15, v16, s[22:23] offset:{128*i} sc1')
    A.label('L_noReset')
    if diag:
        A('s_cmp_lg_u32 s47, 0')
        A('s_cbranch_scc1 L_noDiag')
        A('s_not_b32 s80, s76')
        A('v_mov_b32 v26, s80')
        A('v_mov_b32 v27, 128')
        A('s_mov_b64 exec, 1')
        A('global_atomic_umax v27, v26, s[20:21]')
        A('s_mov_b64 exec, -1')
        A.label('L_noDiag')
    A(f'v_add_u32 v{KBASE}, s46, v12')
    A(f's_mov_b32 s52, {hex(f2u(CSCALE))}')
    A('s_mov_b32 s53, 0x4b800000')
    A('s_mov_b32 s54, 0xffff0000')
    if ctl:
        A('s_mov_b32 s84, 0')
        A(f'v_add_u32 v90, {WS_CTR}, v90')
        A('s_mov_b32 s80, 0')
        A('s_mov_b32 s88, 0')
        A('s_mov_b32 s89, -1')
        A('s_lshr_b32 s87, s2, 7'); A('s_lshl_b32 s87, s87, 3'); A('s_and_b32 s47, s2, 7'); A('s_or_b32 s87, s87, s47')
        A('s_lshl_b64 s[90:91], 1, s87')
        A('s_lshr_b32 s47, s2, 3'); A('s_and_b32 s87, s47, 15')
    A('s_mov_b32 s50, s39')
    A('s_waitcnt lgkmcnt(0)')
    A('s_barrier')
    A.label('L_tab')
    A('s_lshr_b32 s47, s50, 2'); A('s_lshl_b32 s47, s47, 12')
    A('s_lshl_b32 s48, s50, 10')
    A('s_add_u32 s47, s47, s48')
    A(f's_add_u32 s47, s47, {STG}')
    A(f'v_add_u32 v15, s47, v{L16}')
    A('s_lshl_b32 s48, s50, 12')
    A(f's_add_u32 s48, s48, {KS_T}')
    A('ds_read_b128 v[64:67], v15')
    A('ds_read_b128 v[68:71], v15 offset:4096')
    A('v_add_u32 v13, s48, v14')
    A('s_waitcnt lgkmcnt(0)')
    sc, zr, t = 64, 68, 16
    for e in range(8):
        q, i = e >> 2, e & 3
        ds, dc = t + q*8 + i, t + q*8 + 4 + i
        if e & 1:
            A(f'v_and_b32 v{ds}, s54, v{sc + (e>>1)}'); A(f'v_and_b32 v{dc}, s54, v{zr + (e>>1)}')
        else:
            A(f'v_lshlrev_b32 v{ds}, 16, v{sc + (e>>1)}'); A(f'v_lshlrev_b32 v{dc}, 16, v{zr + (e>>1)}')
        A(f'v_mul_f32_e64 v{dc}, -v{dc}, v{ds}')
        A(f'v_mul_f32 v{ds}, s53, v{ds}')
    for k in range(4):
        A(f'ds_write_b128 v13, v[{t+4*k}:{t+4*k+3}] offset:{k*16}')
    A('s_add_u32 s50, s50, 3')
    A('s_cmp_lt_u32 s50, 8')
    A('s_cbranch_scc1 L_tab')
    for s in range(1, 8):
        A(f'v_xor_b32 v{32+s}, {2*s*16}, v11')
    A('s_waitcnt lgkmcnt(0)')
    A('s_barrier')
    for qb in range(2):
        for s in range(8):
            a = (qb*8 + s)*4
            if qb == 1 and s == 7: A('s_waitcnt lgkmcnt(8)')
            A(f'ds_read_b128 a[{a}:{a+3}], v{32+s if s else 11} offset:{qb*8192}')
    A('s_mov_b32 s50, s39')
    A('s_waitcnt lgkmcnt(0)')
    A('s_cmp_eq_u32 s39, 0')
    A('s_cbranch_scc1 L_tile')
    A('s_barrier')
    A('s_cmp_eq_u32 s39, 1')
    A('s_cbranch_scc1 L_tile')
    A('s_barrier')

    A.label('L_tile')
    A('s_add_u32 s49, s50, s38')
    A('s_and_b32 s49, s49, 63')
    A('s_lshr_b32 s51, s49, 2')
    A('s_lshl_b32 s51, s51, 10')
    KSCUR = 24
    A(f'v_add_u32 v{KSCUR}, s51, v{KSA}')
    A(f'v_mov_b32 v{KADDR}, v{KBASE}')
    for x in range(1, 8):
        s3_, e = x >> 1, x & 1
        A(f'v_xor_b32 v{KADDR+x}, {(4*s3_+e)*16}, v{KBASE}')
    def kscale_reads(s):
        b = KST[s & 1]
        for k in range(4):
            A(f'ds_read_b128 v[{b+8+4*k}:{b+8+4*k+3}], v{KSCUR} offset:{s*128 + k*16}')
    def kraw_reads(s):
        b = KST[s & 1]
        for e in range(2):
            A(f'ds_read_b128 v[{b+4*e}:{b+4*e+3}], v{KADDR + (s&3)*2 + e} offset:{(s>>2)*256}')
    kscale_reads(0)
    A('s_barrier')
    kraw_reads(0)
    for s in range(8):
        if s + 1 < 8:
            kraw_reads(s+1); kscale_reads(s+1)
            A('s_waitcnt lgkmcnt(6)')
        else:
            A('s_waitcnt lgkmcnt(0)')
        b = KST[s & 1]; f = KFRAG + (s & 1)*4
        for e in range(2):
            for i in range(4):
                A(f'v_fma_mix_f32 v{b+4*e+i}, v{b+4*e+i}, v{b+8+8*e+i}, v{b+8+8*e+4+i} op_sel_hi:[1,0,0]')
        for k in range(4):
            A(f'v_cvt_pk_bf16_f32 v{f+k}, v{b+2*k}, v{b+2*k+1}')
        A('s_nop 1')
        for qb in range(2):
            a = (qb*8 + s)*4
            c = '0' if s == 0 else vr(S + qb*16, 16)
            A(f'v_mfma_f32_32x32x16_bf16 {vr(S+qb*16,16)}, {vr(f,4)}, {ar(a,4)}, {c}')
    A('s_barrier')
    A('ds_read_b64 v[82:83], v84')
    A('s_nop 10')
    T = [24, 25]; T2 = [26, 27]; AL = [28, 29]; Mx = [M0_, M1_]; Lx = [L0_, L1_]
    for qb in range(2):
        A(f'v_max3_f32 v{T[qb]}, v{S+qb*16}, v{S+qb*16+1}, v{S+qb*16+2}')
    for i in range(3, 15, 2):
        for qb in range(2):
            A(f'v_max3_f32 v{T[qb]}, v{T[qb]}, v{S+qb*16+i}, v{S+qb*16+i+1}')
    for qb in range(2): A(f'v_max_f32 v{T[qb]}, v{T[qb]}, v{S+qb*16+15}')
    for qb in range(2): A(f'v_mov_b32 v{T2[qb]}, v{T[qb]}')
    A('s_nop 1')
    for qb in range(2): A(f'v_permlane32_swap_b32 v{T[qb]}, v{T2[qb]}')
    for qb in range(2): A(f'v_max_f32 v{T[qb]}, v{T[qb]}, v{T2[qb]}')
    for qb in range(2): A(f'v_mul_f32 v{T[qb]}, s52, v{T[qb]}')
    A('s_waitcnt lgkmcnt(0)')
    for qb in range(2): A(f'v_max3_f32 v{T[qb]}, v{T[qb]}, v{Mx[qb]}, v{82+qb}')
    for qb in range(2): A(f'v_sub_f32 v{82+qb}, v{82+qb}, v{T[qb]}')
    for qb in range(2): A(f'v_sub_f32 v{AL[qb]}, v{Mx[qb]}, v{T[qb]}')
    for qb in range(2): A(f'v_exp_f32 v{82+qb}, v{82+qb}')
    for qb in range(2): A(f'v_exp_f32 v{AL[qb]}, v{AL[qb]}')
    for qb in range(2): A(f'v_mov_b32 v{Mx[qb]}, v{T[qb]}')
    A(f'ds_write_b64 v85, v[{M0_}:{M1_}]')
    A('ds_write2st64_b32 v86, v82, v83 offset0:0 offset1:1')
    for qb in range(2): A(f'v_mul_f32 v{Lx[qb]}, v{Lx[qb]}, v{AL[qb]}')
    for qb in range(2):
        for i in range(16): A(f'v_fma_f32 v{S+qb*16+i}, v{S+qb*16+i}, s52, -v{Mx[qb]}')
        for i in range(16): A(f'v_exp_f32 v{S+qb*16+i}, v{S+qb*16+i}')
        if qb == 0:
            A('s_waitcnt lgkmcnt(0)')
            A('s_barrier')
        else: A('s_nop 0')
        for k in range(8):
            A(f'v_cvt_pk_bf16_f32 v{P+qb*8+k}, v{S+qb*16+2*k}, v{S+qb*16+2*k+1}')
        for u in range(2):
            A(f'ds_write_b128 v87, {vr(P+qb*8+4*u,4)} offset:{(qb*2+u)*1024}')
    for qb in range(2):
        for i in range(0, 8, 2):
            A(f'v_pk_add_f32 {vr(S+qb*16+i,2)}, {vr(S+qb*16+i,2)}, {vr(S+qb*16+8+i,2)}')
        for i in range(0, 4, 2):
            A(f'v_pk_add_f32 {vr(S+qb*16+i,2)}, {vr(S+qb*16+i,2)}, {vr(S+qb*16+4+i,2)}')
        A(f'v_pk_add_f32 {vr(S+qb*16,2)}, {vr(S+qb*16,2)}, {vr(S+qb*16+2,2)}')
        A(f'v_add_f32 v{Lx[qb]}, v{Lx[qb]}, v{S+qb*16}')
        A(f'v_add_f32 v{Lx[qb]}, v{Lx[qb]}, v{S+qb*16+1}')
    for qb in range(2): A(f'v_mov_b32 v{24+qb}, v{Lx[qb]}')
    for qb in range(2): A(f'v_mov_b32 v{26+qb}, v{Lx[qb]}')
    for qb in range(2): A(f'v_mov_b32 v{28+2*qb}, v{Mx[qb]}')
    for qb in range(2): A(f'v_permlane32_swap_b32 v{24+qb}, v{26+qb}')
    for qb in range(2): A(f'v_add_f32 v{29+2*qb}, v{24+qb}, v{26+qb}')
    A('ds_write2st64_b64 v88, v[28:29], v[30:31] offset0:0 offset1:1')
    A('s_add_u32 s50, s50, 3')
    stamp(3, stamps == 5)
    A('s_waitcnt lgkmcnt(0)')
    A('s_barrier')
    A('s_cmp_ge_u32 s50, 64')
    A('s_cbranch_scc1 L_qdone')
    A('s_cmp_eq_u32 s50, 3')
    A('s_cbranch_scc1 L_tile')
    A('s_barrier')
    if ctl:
        A('s_cmp_lg_u32 s39, 2')
        A('s_cbranch_scc1 L_noMark')
        A('s_mov_b32 s82, s80')
        A('s_memrealtime s[80:81]')
        A('s_mov_b64 exec, 0xffff')
        A('global_load_dword v81, v90, s[22:23] sc1')
        A('s_mov_b64 exec, -1')
        A.label('L_noMark')
    A('s_cmp_eq_u32 s50, 4')
    A('s_cbranch_scc1 L_tile')
    A('s_barrier')
    if ctl:
        A('s_cmp_lg_u32 s39, 2')
        A('s_cbranch_scc1 L_noCtl')
        A('s_waitcnt lgkmcnt(0)')
        A('s_sub_u32 s83, s80, s78')
        A('s_sub_u32 s47, s82, s78')
        A('v_add_u32 v90, 4352, v90')
        A('v_mov_b32 v91, s80')
        A('s_waitcnt vmcnt(0)')
        A('s_cmp_lg_u32 s87, 5')
        A('s_cbranch_scc1 L_noPub')
        A('s_mov_b64 exec, s[90:91]')
        A('global_store_dword v90, v91, s[22:23] sc1')
        A('s_mov_b64 exec, -1')
        A.label('L_noPub')
        A('s_cmp_eq_u32 s50, 5')
        A('s_cbranch_scc1 L_tile')
        A('v_subrev_u32 v81, s78, v81')
        A('v_min_u32 v81, s83, v81')
        A(f'v_mov_b32 v80, {WCTL}')
        A('s_nop 0')
        for sh in (1, 2, 4, 8):
            A(f'v_add_u32_dpp v81, v81, v81 row_ror:{sh} row_mask:0xf bank_mask:0xf')
            A('s_nop 1')
        A('v_readfirstlane_b32 s48, v81')
        A('s_lshl_b32 s47, s47, 4')
        A('s_lshl_b32 s83, s83, 4')
        A('s_sub_i32 s47, s47, s48')
        A('s_add_i32 s84, s84, s47')
        A('s_sub_u32 s49, s48, s88')
        A('s_mov_b32 s88, s48')
        A('s_min_u32 s51, s49, s89')
        A('s_mov_b32 s89, s49')
        A('s_add_u32 s48, s48, s51')
        A('s_sub_i32 s48, s83, s48')
        A('s_cmp_le_u32 s50, 8')
        A('s_cselect_b32 s47, s47, s48')
        A(f's_max_i32 s84, s84, {-(6*8192)//max(ki,1)}'); A(f's_min_i32 s84, s84, {(6*8192)//max(ki,1)}')
        A(f's_mul_i32 s47, s47, {kp}')
        A(f's_mul_i32 s48, s84, {ki}')
        A('s_add_i32 s47, s47, s48')
        A(f's_add_i32 s47, s47, {W*8192 + 4096}')
        A('s_ashr_i32 s47, s47, 13')
        A(f's_max_i32 s47, s47, {Wmin}'); A(f's_min_i32 s47, s47, {Wmax}')
        A('v_mov_b32 v81, s47')
        A('ds_write_b32 v80, v81')
        A('s_waitcnt lgkmcnt(0)')
        A('s_branch L_tile')
        A.label('L_noCtl')
    A('s_cmp_lg_u32 s50, 7')
    A('s_cbranch_scc1 L_noAnn')
    A('s_cmp_lg_u32 s2, 0')
    A('s_cbranch_scc1 L_tile')
    A('v_mov_b32 v80, 0')
    A('v_mov_b32 v81, 1')
    A('s_waitcnt vmcnt(0)')
    A('s_mov_b64 exec, 1')
    A('global_store_dword v80, v81, s[20:21] sc1')
    A('s_mov_b64 exec, -1')
    A.label('L_noAnn')
    A(f's_cmp_lg_u32 s50, {warmat}')
    A('s_cbranch_scc1 L_tile')
    A('v_mov_b32 v80, 0')
    A('global_load_dword v92, v80, s[20:21] sc1')
    if 'c' in warm:
        A('s_getpc_b64 s[56:57]')
        A.label('L_pcref')
        A('s_add_u32 s56, s56, L_pvdone-L_pcref'); A('s_addc_u32 s57, s57, 0')
        A(f'v_lshlrev_b32 v80, 3, v{L16}')
        A('v_min_u32 v80, L_end-L_pvdone, v80')
        A('global_load_dword v93, v80, s[56:57]')
    A('s_branch L_tile')

    A.label('L_qdone')
    A('s_cmp_eq_u32 s39, 0')
    A('s_cbranch_scc1 L_recv')
    A('s_cmp_eq_u32 s39, 2')
    A('s_cbranch_scc1 L_q2')
    A('v_mov_b32 v80, 0')
    A('s_mov_b32 s48, 0x100000')
    A.label('L_annWait')
    A('s_waitcnt vmcnt(0)')
    A('v_readfirstlane_b32 s47, v92')
    A('s_sub_u32 s48, s48, 1')
    A('s_cbranch_scc1 L_annDone')
    A('s_cmp_lg_u32 s47, 0')
    A('s_cbranch_scc1 L_annDone')
    A('global_load_dword v92, v80, s[20:21] sc1')
    A('s_branch L_annWait')
    A.label('L_annDone')
    A('s_barrier'); A('s_barrier')
    A.label('L_q2')
    A('s_barrier'); A('s_barrier')
    A('s_branch L_recv')

    A.label('L_pv')
    VA, VSA, PA, ALA, VAC, ALF = 1, 2, 3, 4, 5, 6
    PF = 8; FR = 16; RAW = 32; VSC = 64; ACC = 96
    A('s_and_b32 s39, s3, 3')
    A('s_xor_b32 s55, s39, s43')
    A('s_lshr_b32 s56, s55, 1')
    A('s_and_b32 s57, s55, 1')
    A(f'v_lshlrev_b32 v{VA}, 3, v8')
    A(f'v_lshl_or_b32 v{VA}, v9, 11, v{VA}')
    A('s_lshl_b32 s47, s57, 8'); A(f's_add_u32 s47, s47, {SLOT}')
    A(f'v_add_u32 v{VA}, s47, v{VA}')
    A(f'v_lshlrev_b32 v{VSA}, 5, v9')
    A(f'v_add_u32 v{VSA}, {VS_T}, v{VSA}')
    A('s_lshl_b32 s47, s56, 11'); A(f's_add_u32 s47, s47, {PB}'); A(f'v_lshl_add_u32 v{PA}, v0, 4, s47')
    A('s_lshl_b32 s47, s56, 8'); A(f's_add_u32 s47, s47, {ALB}'); A(f'v_lshl_add_u32 v{ALA}, v0, 2, s47')
    for i in range(32): A(f'v_mov_b32 v{ACC+i}, 0')
    A('s_lshl_b32 s47, s56, 9'); A(f's_add_u32 s47, s47, {MLB}'); A('v_lshl_add_u32 v10, v0, 3, s47')
    A('v_accvgpr_write_b32 a0, v10')
    A('s_lshl_b32 s44, s41, 2'); A('s_or_b32 s44, s44, s55')
    A('s_lshl_b32 s42, s44, 15'); A('s_lshl_b32 s47, s43, 13'); A('s_add_u32 s42, s42, s47')
    A('s_lshl_b32 s44, s44, 9'); A('s_lshl_b32 s47, s43, 7'); A('s_add_u32 s44, s44, s47'); A(f's_add_u32 s44, s44, {WS_FLAGS}')
    A('s_waitcnt lgkmcnt(0)')
    srd(A, 24, 22, 's42', 8192)
    A('s_mov_b32 s50, 0')
    A('s_mov_b32 s46, 0')
    for _ in range(5): A('s_barrier')
    A(f'v_mov_b32 v{ALF}, 0')
    A('s_branch L_pvpre')
    A.label('L_pvtile')
    stamp(3, stamps == 6, True)
    A('s_barrier')
    stamp(1, stamps == 6, True)
    def rawrd(i):
        a, b = i >> 1, 2*(i & 1)
        A(f'ds_read2st64_b64 {vr(RAW+4*i,4)}, v{VAC} offset0:{8*a+b} offset1:{8*a+b+1}')
    for i in range(4): rawrd(i)
    A(f'ds_read_b128 {vr(PF,4)}, v7')
    for i in range(4, 8): rawrd(i)
    A(f'ds_read_b128 {vr(PF+4,4)}, v7 offset:1024')
    for i in range(8):
        a, b, u = i >> 1, 2*(i & 1), i >> 2
        A(f's_waitcnt lgkmcnt({9-i if i < 4 else 8-i})')
        for x in range(4):
            r = RAW + 4*i + x
            A(f'v_fma_mix_f32 v{r}, v{r}, v{VSC+a*8+b+(x>>1)}, v{VSC+a*8+4+b+(x>>1)} op_sel_hi:[1,0,0]')
        if i in (4, 5):
            j = i - 4
            A(f'v_mfma_f32_32x32x16_bf16 {vr(ACC+16*j,16)}, {vr(FR+4*j,4)}, {vr(PF,4)}, {vr(ACC+16*j,16)}')
        for j in range(2):
            A(f'v_cvt_pk_bf16_f32 v{FR+8*u+4*j+(i&3)}, v{RAW+4*i+j}, v{RAW+4*i+2+j}')
    A('s_waitcnt lgkmcnt(0)')
    A('s_add_u32 s50, s50, 1')
    for j in range(2):
        A(f'v_mfma_f32_32x32x16_bf16 {vr(ACC+16*j,16)}, {vr(FR+8+4*j,4)}, {vr(PF+4,4)}, {vr(ACC+16*j,16)}')
    A('s_cmp_eq_u32 s50, 64')
    A('s_cbranch_scc1 L_pvdone')
    A('s_add_u32 s46, s46, 1'); A('s_cmp_eq_u32 s46, 3'); A('s_cselect_b32 s46, 0, s46')
    A('s_cmp_ge_u32 s50, 62')
    A('s_cbranch_scc1 L_pvnox')
    A('s_barrier')
    A.label('L_pvnox')
    A('s_lshl_b32 s47, s46, 9')
    A(f'v_add_u32 v7, s47, v{ALA}')
    A(f'ds_read_b32 v{ALF}, v7')
    A.label('L_pvpre')
    A('s_add_u32 s49, s50, s38')
    A('s_and_b32 s49, s49, 63')
    A('s_lshl_b32 s49, s49, 8')
    A(f'v_add_u32 v7, s49, v{VSA}')
    for a in range(4):
        for k in range(2):
            A(f'ds_read_b128 {vr(VSC+a*8+4*k,4)}, v7 offset:{a*64 + k*16}')
    A('s_lshl_b32 s47, s46, 15')
    A(f'v_add_u32 v{VAC}, s47, v{VA}')
    A('s_lshl_b32 s47, s46, 12')
    A(f'v_add_u32 v7, s47, v{PA}')
    A('s_waitcnt lgkmcnt(8)')
    for i in range(0, 32, 2):
        A(f'v_pk_mul_f32 {vr(ACC+i,2)}, {vr(ACC+i,2)}, {vr(ALF,2)} op_sel_hi:[1,0]')
    A('s_waitcnt lgkmcnt(0)')
    A('s_branch L_pvtile')

    A.label('L_pvdone')
    stamp(4, stamps == 6)
    A('v_accvgpr_read_b32 v10, a0')
    A('v_lshlrev_b32 v2, 4, v0')
    A('v_lshlrev_b32 v3, 3, v0')
    for c in range(3): A(f'ds_read_b64 {vr(32+2*c,2)}, v10 offset:{c*1024}')
    A('v_mov_b32 v4, s44')
    A('v_mov_b32 v5, 1')
    A('s_cmp_eq_u32 s39, 0')
    A('s_cbranch_scc1 L_own')
    def stats():
        A('s_waitcnt lgkmcnt(0)')
        for c in range(1, 3): A(f'v_sub_f32 v{32+2*c}, v{32+2*c}, v32')
        for c in range(1, 3): A(f'v_exp_f32 v{32+2*c}, v{32+2*c}')
        A('s_nop 0')
        for c in range(1, 3): A(f'v_fmac_f32 v33, v{33+2*c}, v{32+2*c}')
    A('s_nop 1')
    for a in range(4):
        for b in range(4):
            A(f'v_cvt_pk_bf16_f32 v{40+4*a+b}, v{ACC+4*a+b}, v{ACC+16+4*a+b}')
        A(f'buffer_store_dwordx4 {vr(40+4*a,4)}, v2, s[24:27], 0 offen offset:{a*1024} {xflags}')
    stats()
    A('s_movk_i32 s47, 0x1000')
    A(f'buffer_store_dwordx2 v[32:33], v3, s[24:27], s47 offen {xflags}')
    stamp(5, stamps == 6)
    A('s_barrier')
    A('s_waitcnt vmcnt(0)')
    stamp(6, stamps == 6)
    A('s_mov_b64 exec, 1')
    A(f'global_store_dword v4, v5, s[22:23] {xflags}')
    A('s_mov_b64 exec, -1')
    A('s_branch L_fin')
    A.label('L_own')
    A(f'v_add_u32 v3, {OWNS}, v3')
    stats()
    A('ds_write_b64 v3, v[32:33]')
    for i in range(8): A(f'ds_write_b128 v2, {vr(ACC+4*i,4)} offset:{i*1024}')
    A('s_waitcnt lgkmcnt(0)')
    A('s_barrier')
    A('s_branch L_fin')

    A.label('L_recv')
    A('v_mbcnt_lo_u32_b32 v0, -1, 0')
    A('v_mbcnt_hi_u32_b32 v0, -1, v0')
    A('s_and_b32 s43, s40, 3')
    A('s_lshl_b32 s42, s40, 15')
    srd(A, 24, 22, 's42', 32768)
    A('s_lshl_b32 s42, s41, 14')
    A('s_lshr_b32 s56, s43, 1'); A('s_lshl_b32 s56, s56, 13')
    A('s_add_u32 s42, s42, s56')
    srd(A, 32, 18, 's42', 8192)
    A('s_and_b32 s56, s43, 1'); A('s_lshl_b32 s56, s56, 7'); A('s_lshl_b32 s47, s3, 5'); A('s_add_u32 s56, s56, s47')
    A('v_and_b32 v4, 31, v0'); A('v_lshlrev_b32 v4, 8, v4')
    A('v_lshrrev_b32 v3, 5, v0'); A('v_lshl_or_b32 v4, v3, 4, v4')
    A('s_lshl_b32 s42, s40, 9'); A(f's_add_u32 s42, s42, {WS_FLAGS}')
    A('v_lshl_add_u32 v7, v0, 7, s42')
    A('v_lshlrev_b32 v5, 3, v0')
    A(f'v_add_u32 v1, {OWNS}, v5')
    A('v_add_u32 v5, 4096, v5')
    A('s_lshl_b32 s47, s3, 10'); A('v_lshl_add_u32 v2, v0, 4, s47')
    for k in range(3):
        A(f's_xor_b32 s{51+k}, s43, {k+1}'); A(f's_lshl_b32 s{51+k}, s{51+k}, 13')
    A('s_mov_b32 s54, 0xffff0000')
    A('s_lshl_b32 s48, 1, s43')
    A('s_mov_b32 s49, 0x100000')
    A('s_waitcnt lgkmcnt(0)')
    A('s_barrier')
    stamp(3, stamps == 4)
    R = 32; D = 40
    A('ds_read_b64 v[14:15], v1')
    for j in range(2): A(f'ds_read_b128 {vr(R+4*j,4)}, v2 offset:{j*4096}')
    A('s_mov_b64 exec, 15')
    A.label('L_poll')
    A(f'global_load_dword v6, v7, s[22:23] {pflags}')
    A('s_waitcnt vmcnt(0)')
    A('v_cmp_ne_u32 vcc, 0, v6')
    A('s_sub_u32 s49, s49, 1')
    A('s_cbranch_scc1 L_final')
    A('s_or_b32 s47, vcc_lo, s48')
    A('s_cmp_lg_u32 s47, 15')
    A('s_cbranch_scc1 L_poll')
    A.label('L_final')
    A('s_mov_b64 exec, -1')
    for k in range(3): A(f'buffer_load_dwordx2 {vr(8+2*k,2)}, v5, s[24:27], s{51+k} offen sc1')
    for k in range(3): A(f'buffer_load_dwordx4 {vr(D+4*k,4)}, v2, s[24:27], s{51+k} offen sc1')
    stamp(4, stamps == 4)
    A('s_waitcnt vmcnt(3) lgkmcnt(0)')
    stamp(5, stamps == 4)
    A('v_max3_f32 v24, v8, v10, v12'); A('v_max_f32 v24, v24, v14')
    A('v_sub_f32 v16, v14, v24')
    for k in range(3): A(f'v_sub_f32 v{18+2*k}, v{8+2*k}, v24')
    for k in range(4): A(f'v_exp_f32 v{16+2*k}, v{16+2*k}')
    A('s_nop 0')
    A('v_mul_f32 v25, v15, v16')
    for k in range(3): A(f'v_fmac_f32 v25, v{9+2*k}, v{18+2*k}')
    A('v_rcp_f32 v26, v25')
    for x in range(4): A(f'v_pk_mul_f32 {vr(R+2*x,2)}, {vr(R+2*x,2)}, v[16:17] op_sel_hi:[1,0]')
    for k in range(3):
        A(f's_waitcnt vmcnt({2-k})')
        for b in range(4):
            A(f'v_lshlrev_b32 v{56+b}, 16, v{D+4*k+b}')
            A(f'v_and_b32 v{60+b}, s54, v{D+4*k+b}')
        for x in range(4):
            A(f'v_pk_fma_f32 {vr(R+2*x,2)}, {vr(56+2*x,2)}, {vr(18+2*k,2)}, {vr(R+2*x,2)} op_sel_hi:[1,0,1]')
    for x in range(4): A(f'v_pk_mul_f32 {vr(R+2*x,2)}, {vr(R+2*x,2)}, v[26:27] op_sel_hi:[1,0]')
    for b in range(4): A(f'v_cvt_pk_bf16_f32 v{52+b}, v{R+b}, v{R+4+b}')
    A(f'buffer_store_dwordx4 v[52:55], v4, s[32:35], s56 offen {oflags}')
    stamp(6, stamps == 4)
    A.label('L_fin')
    if diag:
        A('s_waitcnt vmcnt(0)')
        A('s_memrealtime s[84:85]')
        A('v_mov_b32 v18, 128')
        A('global_load_dword v17, v18, s[20:21] sc1')
        A('s_waitcnt vmcnt(0) lgkmcnt(0)')
        A('v_readfirstlane_b32 s81, v17')
        A('s_nop 1')
        A('s_not_b32 s81, s81')
        A('s_mov_b32 s86, 0')
        A(f's_cmp_lg_u32 s3, {stw}')
        A('s_cbranch_scc1 L_dg')
        if diag.startswith('iv'):
            a_, b_ = int(diag[2]), int(diag[3])
            if len(diag) > 4:
                A('s_cmp_lg_u32 s2, 77'); A('s_cbranch_scc1 L_dg')
            ra = 84 if a_ == 9 else 60 + 2*a_
            rb = 84 if b_ == 9 else 60 + 2*b_
            A(f's_sub_u32 s86, s{rb}, s{ra}'); A('s_mul_i32 s86, s86, 20')
        if diag == 'tail': A('s_sub_u32 s86, s84, s82'); A('s_mul_i32 s86, s86, 10')
        if diag == 'send': A('s_sub_u32 s86, s82, s81'); A('s_sub_u32 s86, s86, 6500'); A('s_mul_i32 s86, s86, 10')
        if diag == 'fin': A('s_sub_u32 s86, s84, s81'); A('s_sub_u32 s86, s86, 6500'); A('s_mul_i32 s86, s86, 10')
        if diag == 'sendmin': A('s_sub_u32 s86, s82, s81'); A('s_sub_u32 s86, 9000, s86'); A('s_mul_i32 s86, s86, 10')
        A('s_min_u32 s86, s86, 100000')
        A.label('L_dg')
        A('s_add_u32 s86, s86, 10000')
        A.label('L_spin')
        A('s_memrealtime s[78:79]')
        A('s_waitcnt lgkmcnt(0)')
        A('s_sub_u32 s80, s78, s81')
        A(f's_cmp_lt_u32 s80, s86')
        A('s_cbranch_scc1 L_spin')
    if stamps and not diag:
        A('s_waitcnt vmcnt(0)')
        stamp(2)
        A('s_waitcnt lgkmcnt(0)')
        A(f's_cmp_lg_u32 s3, {stw}')
        A('s_cbranch_scc1 L_end')
        A('s_getreg_b32 s74, hwreg(HW_REG_XCC_ID)')
        A(f's_mov_b32 s75, {7 if stamps in (4, 6) else 6 if stamps == 2 else 4 if stamps == 5 else 3}')
        for i in range(16): A(f'v_mov_b32 v{8+i}, s{60+i}')
        A('v_mbcnt_lo_u32_b32 v0, -1, 0'); A('v_mbcnt_hi_u32_b32 v0, -1, v0')
        A('s_lshl_b32 s42, s2, 6')
        A('s_add_u32 s42, s42, 0x10000000')
        A('v_mov_b32 v1, s42')
        A('s_mov_b64 exec, 1')
        for i in range(4): A(f'global_store_dwordx4 v1, v[{8+4*i}:{11+4*i}], s[22:23] offset:{16*i}')
        if stamps == 3:
            A('s_mov_b64 exec, -1')
            A('s_lshl_b32 s42, s2, 8')
            A('s_add_u32 s42, s42, 0x11000000')
            A('v_lshlrev_b32 v1, 2, v0')
            A('v_add_u32 v1, s42, v1')
            A('global_store_dword v1, v120, s[22:23]')
            A('v_add_u32 v1, 0x10000, v1')
            A('global_store_dword v1, v121, s[22:23]')
    A.label('L_end')
    A('s_endpgm')

    A('.section .rodata,"a"')
    A('.p2align 6')
    A(f'.amdhsa_kernel {main}')
    for l in ['.amdhsa_next_free_vgpr 192', '.amdhsa_next_free_sgpr 96', '.amdhsa_accum_offset 128',
              '.amdhsa_group_segment_fixed_size 0', '.amdhsa_kernarg_size 80', '.amdhsa_user_sgpr_count 2',
              '.amdhsa_user_sgpr_kernarg_segment_ptr 1', '.amdhsa_system_sgpr_workgroup_id_x 1',
              '.amdhsa_float_denorm_mode_32 3', '.amdhsa_float_denorm_mode_16_64 3']:
        A.lines.append('  ' + l)
    A('.end_amdhsa_kernel')
    return A.text()

if __name__ == '__main__':
    kw = eval('dict(' + (sys.argv[2] if len(sys.argv) > 2 else '') + ')')
    t = gen(**kw)
    errs = check_hazards(t)
    for e in errs: print('HAZARD', e)
    out = sys.argv[1] if len(sys.argv) > 1 and sys.argv[1] != '-' else f'cdna_kernels/{NAME}.s'
    open(out, 'w').write(t)
    import subprocess
    r = subprocess.run(['clang', '-x', 'assembler', '-target', 'amdgcn-amd-amdhsa', '-mcpu=gfx950', '-c', out, '-o', 'chk.o'], capture_output=True, text=True)
    print('wrote', out, len(t), 'bytes', 'hazards', len(errs), 'asm rc', r.returncode, r.stderr[:1500])
```

```python
import sys, math, struct
sys.path.insert(0, 'gen')
from asmlib import *

NAME = 'standalone__kv_cache_quant_int4_int2_kv_with_per_channel_or_per_token_scales__sampling'
HEADER = open(f'cdna_kernels/{NAME}.s.ref').read().split('; Override launch geometry')[0]

SLOT = 16384
RING = 4*SLOT
KS_T = RING
VS_T = RING + 16384
MP = RING + 32768
MLB = MP + 1536
OWNS = MLB + 3072
NONCE = OWNS + 512
PB = NONCE + 16
PSTR = 4608
STG = 2*SLOT
QST = 3*SLOT
WS_FLAGS = 0x900000
WS_CTR = 0xa00000

CSCALE = (128.0 ** -0.5) * math.log2(math.e)
def f2u(x): return struct.unpack('<I', struct.pack('<f', x))[0]

def srd(A, d, base_lo, off_lo, nbytes):
    A(f's_add_u32 s{d}, s{base_lo}, {off_lo}')
    A(f's_addc_u32 s{d+1}, s{base_lo+1}, 0')
    A(f's_and_b32 s{d+1}, s{d+1}, 0xffff')
    A(f's_mov_b32 s{d+2}, {nbytes}')
    A(f's_mov_b32 s{d+3}, 0x20000')

def gen(W=20, flags='nt', stamps=0, wgmap=2, qflags='', sflags='nt', oflags='', diag='', ctl=1, Wmin=14, Wmax=31,
        kp=16, ki=3, pflags='sc1', greedy=0, Wst=28, G=1, rot=(1,3,1), phi=(1,4), warm='', warmat=52, xflags='sc1', prio=3, stw=0, Wend=None, Gst=4, touch=0, R=13, CP=6, exp='', MSG=4608, rst=None, dual=0, iclamp=6, onepoll=0):
    FS = 10 if dual else 9
    LDS_BYTES = PB + R*PSTR
    assert LDS_BYTES <= 163840
    NRUN = (64 + R - 1)//R; LAST = 64 - R*(NRUN-1)
    MG = next(m for m in range(1, 4096) if all((n*m) >> 10 == n//R for n in range(67)))
    if Wend is None: Wend = W
    if not ctl: Wmin = Wmax = W
    A = Asm()
    A.lines += HEADER.rstrip('\n').split('\n')
    main = NAME + '_kernel'
    A(f'; @launch grid=(256,1,1) block=(512,1,1) lds={LDS_BYTES}')
    A('.amdgcn_target "amdgcn-amd-amdhsa--gfx950"')
    A('.text')
    A(f'.globl {main}')
    A('.p2align 8')
    A(f'.type {main},@function')
    A(f'{main}:')
    def stamp(i, cond=True, wait=False):
        if stamps and cond:
            A(f's_memrealtime s[{60+2*i}:{61+2*i}]')
            if wait: A('s_waitcnt lgkmcnt(0)')
    A('s_cmp_ge_u32 s2, 256')
    A('s_cbranch_scc1 L_end')
    stamp(0)
    if diag: A('s_memrealtime s[76:77]')
    A('s_load_dwordx16 s[4:19], s[0:1], 0')
    A('s_load_dwordx4 s[20:23], s[0:1], 64')
    A('v_lshrrev_b32 v1, 6, v0')
    A('v_and_b32 v0, 63, v0')
    A('v_readfirstlane_b32 s3, v1')
    if wgmap == 0:
        A('s_mov_b32 s40, s2')
    elif wgmap == 1:
        A('s_and_b32 s40, s2, 7'); A('s_lshl_b32 s40, s40, 2')
        A('s_lshr_b32 s41, s2, 3'); A('s_and_b32 s41, s41, 3'); A('s_or_b32 s40, s40, s41')
        A('s_and_b32 s41, s2, 0xe0'); A('s_or_b32 s40, s40, s41')
    elif wgmap == 2:
        A('s_and_b32 s40, s2, 7'); A('s_lshl_b32 s40, s40, 5')
        A('s_lshr_b32 s41, s2, 3'); A('s_or_b32 s40, s40, s41')
    A('s_lshr_b32 s41, s40, 2')
    if rot:
        if rot[0] != 1: A(f's_mul_i32 s38, s2, {rot[0]}'); A(f's_lshr_b32 s38, s38, {rot[1]}')
        else: A(f's_lshr_b32 s38, s2, {rot[1]}')
        A(f's_and_b32 s38, s38, {rot[2]}')
    else: A('s_mov_b32 s38, 0')
    A('s_cmp_lg_u32 s3, 0')
    A('s_cbranch_scc1 L_worker')

    if prio: A(f's_setprio {prio}')
    if ctl: A('s_memrealtime s[78:79]')
    A('v_lshlrev_b32 v16, 4, v0')
    A('s_lshl_b32 s42, s40, 12')
    A('v_add_u32 v17, s42, v16')
    A(f's_mov_b32 m0, {STG}')
    A('v_lshrrev_b32 v1, 4, v0')
    A('v_and_b32 v2, 15, v0')
    A('v_xor_b32 v2, v2, v1')
    A('v_lshlrev_b32 v2, 4, v2')
    A('v_lshl_or_b32 v2, v1, 8, v2')
    A('s_lshl_b32 s43, s41, 14')
    A('v_add_u32 v20, s43, v2')
    for jj in range(1, 4):
        A(f'v_xor_b32 v{20+jj}, {4*jj*16}, v20')
    if touch:
        A('s_lshl_b32 s42, s40, 20'); A('s_lshl_b32 s44, s38, 14'); A('s_add_u32 s42, s42, s44'); A('v_mov_b32 v26, s42')
    A('s_waitcnt lgkmcnt(0)')
    if touch:
        A('s_mov_b64 exec, 1')
        A(f'global_load_dword v24, v26, s[6:7]')
        A(f'global_load_dword v25, v26, s[8:9]')
        A('s_mov_b64 exec, -1')
    for g in range(4):
        if g: A(f's_mov_b32 m0, {STG + g*4096}')
        if g*4 > Wst: A(f's_waitcnt vmcnt({Wst})')
        if g: A('s_nop 0')
        for i in range(4):
            A(f'global_load_lds_dwordx4 v17, s[{10+2*g}:{11+2*g}] offset:{i*1024} {sflags}')
    for g in range(4):
        A(f's_mov_b32 m0, {QST + g*4096}')
        if 16 + g*4 > Wst: A(f's_waitcnt vmcnt({Wst})')
        A('s_nop 0')
        for i in range(4):
            A(f'global_load_lds_dwordx4 v{20+i}, s[4:5] offset:{i*1024} {qflags}')
        if g < 3:
            A('s_add_u32 s4, s4, 4096'); A('s_addc_u32 s5, s5, 0')
        if g == 0:
            A('v_lshrrev_b32 v1, 5, v0')
            A('v_and_b32 v2, 31, v0')
            A('v_xor_b32 v2, v2, v1')
            A('v_lshlrev_b32 v2, 4, v2')
            A('v_lshl_or_b32 v8, v1, 9, v2')
            if phi:
                A(f's_mul_i32 s37, s2, {phi[0]}'); A(f's_lshr_b32 s37, s37, {phi[1]}'); A(f's_and_b32 s37, s37, 3')
                A('s_and_b32 s36, s37, 1'); A('s_lshl_b32 s36, s36, 7'); A('v_xor_b32 v8, s36, v8')
                A('s_lshl_b32 s32, s37, 12')
                for gg in range(1, 4): A(f's_xor_b32 s{32+gg}, s32, {gg*4096}')
            for j in range(1, 8):
                A(f'v_xor_b32 v{8+j}, {2*j*16}, v8')
            A('s_lshl_b32 s42, s40, 20')
            srd(A, 24, 6, 's42', 1 << 20)
            A('s_add_u32 s28, s8, s42'); A('s_addc_u32 s29, s9, 0'); A('s_and_b32 s29, s29, 0xffff')
            A('s_lshl_b32 s44, s38, 14'); A('s_mov_b32 s45, s44'); A('s_mov_b32 s46, 0')
            for j in range(8): A(f'v_xor_b32 v{32+j}, v{8+j}, v16')
            A(f's_mov_b32 s50, 0')
            A(f's_mov_b32 s51, {R}')
            if ctl:
                A('v_and_b32 v28, 15, v0'); A('v_mul_u32_u24 v28, 0x22100, v28'); A(f'v_add_u32 v28, {WS_CTR}, v28')
                A('s_mov_b32 s84, 0'); A('s_mov_b32 s80, 0'); A('s_mov_b32 s88, 0'); A('s_mov_b32 s89, -1')
                A('s_lshr_b32 s87, s2, 7'); A('s_lshl_b32 s87, s87, 3'); A('s_and_b32 s47, s2, 7'); A('s_or_b32 s87, s87, s47')
                A('s_mul_i32 s47, s87, 0x22100'); A(f's_add_u32 s47, s47, {WS_CTR}'); A('v_lshl_add_u32 v27, v0, 2, s47')
                A('s_lshr_b32 s47, s2, 3'); A('s_and_b32 s87, s47, 15')
                A(f's_mov_b32 s85, {CP-2}')
            A(f's_mov_b32 s93, {W}')
    def slot(w, GG, st=None):
        bi = max(0, (w - 16 + GG - 1) // GG * GG)
        assert bi < 16
        for jj in range(16):
            g, i = jj >> 2, jj & 3
            if i == 0:
                go = f's{32+g}' if phi else g*4096
                A(f's_add_u32 m0, s46, {go}')
                A(f's_add_u32 s48, s44, {go}')
            if jj == 13:
                A(f's_add_u32 s44, s44, {SLOT}'); A('s_and_b32 s44, s44, 0xfffff')
            if jj == 14:
                A(f's_add_u32 s46, s46, {SLOT}'); A(f's_and_b32 s46, s46, {RING-1}')
            if jj == 15:
                A('s_add_u32 s50, s50, 1')
            if jj % GG == 0: A(f's_waitcnt vmcnt({w})')
            if jj == bi:
                if st is not None: stamp(st, stamps == 2)
                A('s_barrier')
            A(f'buffer_load_dwordx4 v{8 + (jj & 7)}, s[24:27], s48 offen offset:{i*1024} {flags} lds')
    slot(Wst, Gst, 3)
    slot(Wst, Gst, 4)
    stamp(5, stamps == 2)
    order = sorted(range(Wmin, Wmax+1), key=lambda w: (abs(w - W), w))
    for n, w in enumerate(order):
        A.label(f'L_it{w}')
        slot(w, G)
        if n == 0:
            A.label('L_next')
            if stamps == 7:
                A('s_lshr_b32 m0, s50, 1')
                A('s_nop 0')
                A('v_writelane_b32 v120, s94, m0')
                A('v_writelane_b32 v121, s93, m0')
                A('s_memrealtime s[94:95]')
            if stamps == 3:
                A('s_lshr_b32 m0, s50, 1')
                A('s_bitcmp1_b32 s50, 0')
                A('s_cbranch_scc1 L_stodd')
                A('v_writelane_b32 v120, s94, m0')
                A.label('L_stodd')
                A('v_writelane_b32 v121, s94, m0')
                A('s_memrealtime s[94:95]')
            A('s_cmp_eq_u32 s50, s51')
            A('s_cbranch_scc1 L_switch')
            A.label('L_switched')
            if ctl:
                A('s_sub_u32 s85, s85, 1')
                A('s_cmp_lt_u32 s85, 3')
                A('s_cbranch_scc1 L_ctl')
                A.label('L_disp')
                for w2 in order[:-1]:
                    A(f's_cmp_eq_u32 s93, {w2}')
                    A(f's_cbranch_scc1 L_it{w2}')
            A(f's_branch L_it{order[-1]}')
            A.label('L_switch')
            A('s_cmp_eq_u32 s50, 128')
            A('s_cbranch_scc1 L_drain')
            for j in range(8): A(f'v_xor_b32 v{8+j}, v{8+j}, v{32+j}')
            A('s_mov_b64 s[30:31], s[24:25]'); A('s_mov_b64 s[24:25], s[28:29]'); A('s_mov_b64 s[28:29], s[30:31]')
            A('s_mov_b32 s47, s44'); A('s_mov_b32 s44, s45'); A('s_mov_b32 s45, s47')
            A(f's_cmp_ge_u32 s50, {2*R*(NRUN-1)}')
            A(f's_cselect_b32 s47, {LAST}, {R}')
            A('s_add_u32 s51, s51, s47')
            A('s_branch L_switched')
            if ctl:
                A.label('L_ctl')
                A('s_cmp_eq_u32 s85, 1')
                A('s_cbranch_scc1 L_pub')
                A('s_cmp_eq_u32 s85, 0')
                A('s_cbranch_scc1 L_cmp')
                A('s_mov_b32 s82, s80')
                A('s_memrealtime s[80:81]')
                A('s_mov_b64 exec, 0xffff')
                if 'noload' not in exp: A('global_load_dword v29, v28, s[22:23] sc1')
                A('s_mov_b64 exec, -1')
                A('s_branch L_disp')
                A.label('L_pub')
                A('v_add_u32 v28, 4352, v28')
                A('v_add_u32 v27, 4352, v27')
                A('s_waitcnt lgkmcnt(0)')
                A('s_cmp_lg_u32 s87, 5')
                A('s_cbranch_scc1 L_disp')
                A('v_mov_b32 v30, s80')
                A('s_mov_b32 exec_hi, 0')
                A('global_store_dword v27, v30, s[22:23] sc1')
                A('s_mov_b32 exec_hi, -1')
                A('s_branch L_disp')
                A.label('L_cmp')
                A(f's_mov_b32 s85, {CP}')
                A('s_cmp_eq_u32 s82, 0')
                A('s_cbranch_scc1 L_disp')
                A('s_sub_u32 s83, s80, s78')
                A('v_subrev_u32 v29, s78, v29')
                A('v_min_u32 v29, s83, v29')
                A('s_sub_u32 s47, s82, s78')
                A('s_lshl_b32 s47, s47, 4')
                for sh in (1, 2, 4, 8):
                    A(f'v_add_u32_dpp v29, v29, v29 row_ror:{sh} row_mask:0xf bank_mask:0xf')
                    A('s_nop 1' if sh < 8 else 's_lshl_b32 s83, s83, 4')
                A('v_readfirstlane_b32 s92, v29')
                A('s_mov_b32 s86, s88')
                A('s_sub_i32 s47, s47, s92')
                A('s_add_i32 s84, s84, s47')
                A('s_sub_u32 s49, s92, s88')
                A('s_mov_b32 s88, s92')
                A('s_min_u32 s31, s49, s89')
                A('s_mov_b32 s89, s49')
                A('s_add_u32 s92, s92, s31')
                A('s_sub_i32 s92, s83, s92')
                A('s_cmp_eq_u32 s86, 0')
                A('s_cselect_b32 s47, s47, s92')
                A('s_cselect_b32 s89, -1, s89')
                A(f's_max_i32 s84, s84, {-(iclamp*8192)//max(ki,1)}'); A(f's_min_i32 s84, s84, {(iclamp*8192)//max(ki,1)}')
                A(f's_mul_i32 s47, s47, {kp}')
                A(f's_mul_i32 s49, s84, {ki}')
                A('s_add_i32 s47, s47, s49')
                A(f's_add_i32 s47, s47, {W*8192 + 4096}')
                A('s_ashr_i32 s47, s47, 13')
                A(f's_max_i32 s47, s47, {Wmin}'); A(f's_min_i32 s93, s47, {Wmax}')
                if 'fix' in exp: A(f's_mov_b32 s93, {W}')
                A('s_branch L_disp')
        else:
            A('s_branch L_next')
    A.label('L_drain')
    A('s_waitcnt vmcnt(16)'); A('s_barrier')
    A('s_waitcnt vmcnt(0) lgkmcnt(0)')
    if diag and not stamps: A('s_memrealtime s[82:83]')
    stamp(1)
    A('s_barrier')
    A('s_branch L_recv')

    A.label('L_worker')
    A('s_and_b32 s43, s40, 3')
    A('v_and_b32 v8, 31, v0')
    A('v_lshrrev_b32 v9, 5, v0')
    A('s_cmp_ge_u32 s3, 4')
    A('s_cbranch_scc1 L_pv')
    KBASE, KSA, L8, L16, M0_, M1_, L0_, L1_ = 0, 1, 2, 3, 4, 5, 6, 7
    P = 8; KADDR = 8; KFRAG = 16; KST = (32, 56); S = 96
    A('s_sub_u32 s39, s3, 1')
    A(f'v_lshlrev_b32 v{L8}, 3, v0')
    A(f'v_lshlrev_b32 v{L16}, 4, v0')
    A('v_lshlrev_b32 v14, 6, v0')
    A('v_and_b32 v12, 15, v8')
    A('v_xor_b32 v11, v12, v9')
    A('v_lshlrev_b32 v11, 4, v11')
    A('v_lshl_or_b32 v11, v8, 8, v11')
    A(f'v_add_u32 v11, {QST}, v11')
    A('v_lshlrev_b32 v13, 1, v9')
    A('v_xor_b32 v12, v12, v13')
    A('v_lshlrev_b32 v12, 4, v12')
    A(f'v_lshlrev_b32 v{KSA}, 6, v9')
    A(f'v_add_u32 v{KSA}, {KS_T}, v{KSA}')
    A('s_lshl_b32 s47, s39, 9'); A(f's_add_u32 s48, s47, {MP}')
    A(f'v_add_u32 v85, s48, v{L8}')
    A('s_sub_u32 s48, s48, 512'); A('s_cmp_eq_u32 s39, 0'); A(f's_cselect_b32 s48, {MP+1024}, s48')
    A(f'v_add_u32 v84, s48, v{L8}')
    A('s_lshl_b32 s47, s39, 10'); A(f's_add_u32 s48, s47, {MLB}'); A(f'v_add_u32 v88, s48, v{L8}')
    A('v_lshlrev_b32 v89, 2, v0')
    A(f'v_mov_b32 v{M0_}, 0xff800000'); A(f'v_mov_b32 v{M1_}, 0xff800000')
    A(f'v_mov_b32 v{L0_}, 0'); A(f'v_mov_b32 v{L1_}, 0')
    A('s_waitcnt lgkmcnt(0)')
    A(f'ds_write_b64 v85, v[{M0_}:{M1_}]')
    A(f'v_lshl_or_b32 v{KBASE}, v8, 9, v12')
    A(f's_mov_b32 s52, {hex(f2u(CSCALE))}')
    A('s_mov_b32 s53, 0x4b800000')
    A('s_mov_b32 s54, 0xffff0000')
    A('s_mov_b32 s50, s39')
    A('s_waitcnt lgkmcnt(0)')
    A('s_barrier')
    A.label('L_tab')
    A('s_lshr_b32 s47, s50, 2'); A('s_lshl_b32 s47, s47, 12')
    A('s_lshl_b32 s48, s50, 10')
    A('s_add_u32 s47, s47, s48')
    A(f's_add_u32 s47, s47, {STG}')
    A(f'v_add_u32 v15, s47, v{L16}')
    A('s_lshl_b32 s48, s50, 12')
    A(f's_add_u32 s48, s48, {KS_T}')
    A('ds_read_b128 v[64:67], v15')
    A('ds_read_b128 v[68:71], v15 offset:4096')
    A('v_add_u32 v13, s48, v14')
    A('s_waitcnt lgkmcnt(0)')
    sc, zr, t = 64, 68, 16
    for e in range(8):
        q, i = e >> 2, e & 3
        ds, dc = t + q*8 + i, t + q*8 + 4 + i
        if e & 1:
            A(f'v_and_b32 v{ds}, s54, v{sc + (e>>1)}'); A(f'v_and_b32 v{dc}, s54, v{zr + (e>>1)}')
        else:
            A(f'v_lshlrev_b32 v{ds}, 16, v{sc + (e>>1)}'); A(f'v_lshlrev_b32 v{dc}, 16, v{zr + (e>>1)}')
        A(f'v_mul_f32_e64 v{dc}, -v{dc}, v{ds}')
        A(f'v_mul_f32 v{ds}, s53, v{ds}')
    for k in range(4):
        A(f'ds_write_b128 v13, v[{t+4*k}:{t+4*k+3}] offset:{k*16}')
    A('s_add_u32 s50, s50, 3')
    A('s_cmp_lt_u32 s50, 8')
    A('s_cbranch_scc1 L_tab')
    for s in range(1, 8):
        A(f'v_xor_b32 v{32+s}, {2*s*16}, v11')
    A('s_waitcnt lgkmcnt(0)')
    A('s_barrier')
    for qb in range(2):
        for s in range(8):
            a = (qb*8 + s)*4
            if qb == 1 and s == 7: A('s_waitcnt lgkmcnt(8)')
            A(f'ds_read_b128 a[{a}:{a+3}], v{32+s if s else 11} offset:{qb*8192}')
    A('s_mov_b32 s50, s39')
    A('s_mov_b32 s45, 0')
    def advance(tgt, lab):
        A.label(lab)
        A(f's_cmp_ge_u32 s45, {tgt}')
        A(f's_cbranch_scc1 {lab}_d')
        A('s_barrier')
        A('s_add_u32 s45, s45, 1')
        A(f's_branch {lab}')
        A.label(lab + '_d')

    A.label('L_tile')
    A(f's_mul_i32 s47, s50, {MG}'); A('s_lshr_b32 s47, s47, 10'); A(f's_mul_i32 s47, s47, {R}')
    A('s_add_u32 s44, s50, s47')
    A('s_sub_u32 s47, s50, s47'); A(f's_mul_i32 s47, s47, {PSTR}'); A(f's_add_u32 s46, s47, {PB}')
    A('s_add_u32 s49, s50, s38')
    A('s_and_b32 s49, s49, 63')
    A('s_lshr_b32 s51, s49, 2')
    A('s_lshl_b32 s51, s51, 10')
    A('s_and_b32 s47, s44, 3'); A('s_lshl_b32 s47, s47, 14')
    KSCUR = 24
    A('s_waitcnt lgkmcnt(0)')
    A(f'v_add_u32 v{KSCUR}, s51, v{KSA}')
    A(f'v_add_u32 v{KADDR}, s47, v{KBASE}')
    for x in range(1, 8):
        s3_, e = x >> 1, x & 1
        A(f'v_xor_b32 v{KADDR+x}, {(4*s3_+e)*16}, v{KADDR}')
    A(f'v_add_u32 v87, s46, v{L16}')
    A('v_add_u32 v86, s46, v89')
    def kscale_reads(s):
        b = KST[s & 1]
        for k in range(4):
            A(f'ds_read_b128 v[{b+8+4*k}:{b+8+4*k+3}], v{KSCUR} offset:{s*128 + k*16}')
    def kraw_reads(s):
        b = KST[s & 1]
        for e in range(2):
            A(f'ds_read_b128 v[{b+4*e}:{b+4*e+3}], v{KADDR + (s&3)*2 + e} offset:{(s>>2)*256}')
    kscale_reads(0)
    advance('s44', 'L_qadv')
    A('s_add_u32 s45, s45, 3')
    A('s_barrier')
    kraw_reads(0)
    for s in range(8):
        if s + 1 < 8:
            kraw_reads(s+1); kscale_reads(s+1)
            A('s_waitcnt lgkmcnt(6)')
        else:
            A('s_waitcnt lgkmcnt(0)')
        b = KST[s & 1]; f = KFRAG + (s & 1)*4
        for e in range(2):
            for i in range(4):
                A(f'v_fma_mix_f32 v{b+4*e+i}, v{b+4*e+i}, v{b+8+8*e+i}, v{b+8+8*e+4+i} op_sel_hi:[1,0,0]')
        for k in range(4):
            A(f'v_cvt_pk_bf16_f32 v{f+k}, v{b+2*k}, v{b+2*k+1}')
        A('s_nop 1')
        for qb in range(2):
            a = (qb*8 + s)*4
            c = '0' if s == 0 else vr(S + qb*16, 16)
            A(f'v_mfma_f32_32x32x16_bf16 {vr(S+qb*16,16)}, {vr(f,4)}, {ar(a,4)}, {c}')
    A('s_barrier')
    A('ds_read_b64 v[82:83], v84')
    A('s_nop 10')
    T = [24, 25]; T2 = [26, 27]; AL = [28, 29]; Mx = [M0_, M1_]; Lx = [L0_, L1_]
    for qb in range(2):
        A(f'v_max3_f32 v{T[qb]}, v{S+qb*16}, v{S+qb*16+1}, v{S+qb*16+2}')
    for i in range(3, 15, 2):
        for qb in range(2):
            A(f'v_max3_f32 v{T[qb]}, v{T[qb]}, v{S+qb*16+i}, v{S+qb*16+i+1}')
    for qb in range(2): A(f'v_max_f32 v{T[qb]}, v{T[qb]}, v{S+qb*16+15}')
    for qb in range(2): A(f'v_mov_b32 v{T2[qb]}, v{T[qb]}')
    A('s_nop 1')
    for qb in range(2): A(f'v_permlane32_swap_b32 v{T[qb]}, v{T2[qb]}')
    for qb in range(2): A(f'v_max_f32 v{T[qb]}, v{T[qb]}, v{T2[qb]}')
    for qb in range(2): A(f'v_mul_f32 v{T[qb]}, s52, v{T[qb]}')
    A('s_waitcnt lgkmcnt(0)')
    for qb in range(2): A(f'v_max3_f32 v{T[qb]}, v{T[qb]}, v{Mx[qb]}, v{82+qb}')
    for qb in range(2): A(f'v_sub_f32 v{82+qb}, v{82+qb}, v{T[qb]}')
    for qb in range(2): A(f'v_sub_f32 v{AL[qb]}, v{Mx[qb]}, v{T[qb]}')
    for qb in range(2): A(f'v_exp_f32 v{82+qb}, v{82+qb}')
    for qb in range(2): A(f'v_exp_f32 v{AL[qb]}, v{AL[qb]}')
    for qb in range(2): A(f'v_mov_b32 v{Mx[qb]}, v{T[qb]}')
    A(f'ds_write_b64 v85, v[{M0_}:{M1_}]')
    A('ds_write2st64_b32 v86, v82, v83 offset0:16 offset1:17')
    for qb in range(2): A(f'v_mul_f32 v{Lx[qb]}, v{Lx[qb]}, v{AL[qb]}')
    for qb in range(2):
        for i in range(16): A(f'v_fma_f32 v{S+qb*16+i}, v{S+qb*16+i}, s52, -v{Mx[qb]}')
        for i in range(16): A(f'v_exp_f32 v{S+qb*16+i}, v{S+qb*16+i}')
        if qb == 0:
            A('s_waitcnt lgkmcnt(0)')
            A('s_barrier')
        else: A('s_nop 0')
        for k in range(8):
            A(f'v_cvt_pk_bf16_f32 v{P+qb*8+k}, v{S+qb*16+2*k}, v{S+qb*16+2*k+1}')
        for u in range(2):
            A(f'ds_write_b128 v87, {vr(P+qb*8+4*u,4)} offset:{(qb*2+u)*1024}')
    for qb in range(2):
        for i in range(0, 8, 2):
            A(f'v_pk_add_f32 {vr(S+qb*16+i,2)}, {vr(S+qb*16+i,2)}, {vr(S+qb*16+8+i,2)}')
        for i in range(0, 4, 2):
            A(f'v_pk_add_f32 {vr(S+qb*16+i,2)}, {vr(S+qb*16+i,2)}, {vr(S+qb*16+4+i,2)}')
        A(f'v_pk_add_f32 {vr(S+qb*16,2)}, {vr(S+qb*16,2)}, {vr(S+qb*16+2,2)}')
        A(f'v_add_f32 v{Lx[qb]}, v{Lx[qb]}, v{S+qb*16}')
        A(f'v_add_f32 v{Lx[qb]}, v{Lx[qb]}, v{S+qb*16+1}')
    for qb in range(2): A(f'v_mov_b32 v{24+qb}, v{Lx[qb]}')
    for qb in range(2): A(f'v_mov_b32 v{26+qb}, v{Lx[qb]}')
    for qb in range(2): A(f'v_mov_b32 v{28+2*qb}, v{Mx[qb]}')
    for qb in range(2): A(f'v_permlane32_swap_b32 v{24+qb}, v{26+qb}')
    for qb in range(2): A(f'v_add_f32 v{29+2*qb}, v{24+qb}, v{26+qb}')
    A('ds_write2st64_b64 v88, v[28:29], v[30:31] offset0:0 offset1:1')
    A('s_add_u32 s50, s50, 3')
    A('s_cmp_lt_u32 s50, 64')
    A('s_cbranch_scc1 L_tile')
    A('s_waitcnt lgkmcnt(0)')
    if dual:
        advance(125, 'L_qend0')
        A('s_cmp_lg_u32 s39, 0')
        A('s_cbranch_scc1 L_qend')
        A(f's_lshl_b32 s42, s40, {FS}'); A(f's_add_u32 s42, s42, {WS_FLAGS+512}')
        A(f'v_lshl_add_u32 v8, v{L16}, 3, s42')
        A('s_mov_b64 exec, 15')
        A('global_load_dword v9, v8, s[22:23]')
        A('s_mov_b64 exec, -1')
    advance(128, 'L_qend')
    A('s_branch L_recv')

    A.label('L_pv')
    VA, VSA, PA, ALA, VAC, ALF = 1, 2, 3, 4, 5, 6
    PF = 8; FR = 16; RAW = 32; VSC = 64; ACC = 96
    A('s_and_b32 s39, s3, 3')
    A('s_xor_b32 s55, s39, s43')
    A('s_lshr_b32 s56, s55, 1')
    A('s_and_b32 s57, s55, 1')
    A(f'v_lshlrev_b32 v{VA}, 3, v8')
    A(f'v_lshl_or_b32 v{VA}, v9, 11, v{VA}')
    A('s_lshl_b32 s47, s57, 8')
    A(f'v_add_u32 v{VA}, s47, v{VA}')
    A(f'v_lshlrev_b32 v{VSA}, 5, v9')
    A(f'v_add_u32 v{VSA}, {VS_T}, v{VSA}')
    A('s_lshl_b32 s47, s56, 11'); A(f's_add_u32 s47, s47, {PB}'); A(f'v_lshl_add_u32 v{PA}, v0, 4, s47')
    A('s_lshl_b32 s47, s56, 8'); A(f's_add_u32 s47, s47, {PB+4096}'); A(f'v_lshl_add_u32 v{ALA}, v0, 2, s47')
    for i in range(32): A(f'v_mov_b32 v{ACC+i}, 0')
    A('s_lshl_b32 s47, s56, 9'); A(f's_add_u32 s47, s47, {MLB}'); A('v_lshl_add_u32 v10, v0, 3, s47')
    A('v_accvgpr_write_b32 a0, v10')
    A('s_lshl_b32 s44, s41, 2'); A('s_or_b32 s44, s44, s55')
    A('s_mul_i32 s42, s44, 3'); A('s_add_u32 s42, s42, s39'); A('s_max_u32 s42, s42, 1'); A('s_sub_u32 s42, s42, 1'); A(f's_mul_i32 s42, s42, {MSG}')
    A(f's_lshl_b32 s44, s44, {FS}'); A('s_lshl_b32 s47, s43, 7'); A('s_add_u32 s44, s44, s47'); A(f's_add_u32 s44, s44, {WS_FLAGS}')
    A('s_waitcnt lgkmcnt(0)')
    srd(A, 24, 22, 's42', 4608)
    A('s_mov_b32 s50, 0')
    A('s_mov_b32 s45, 0')
    A('s_lshl_b32 s58, s2, 2'); A('s_or_b32 s58, s58, s39')
    if diag:
        A('s_cmp_lg_u32 s58, 1')
        A('s_cbranch_scc1 L_noDiag')
        A('v_mov_b32 v26, s76')
        A(f'v_lshlrev_b32 v27, 2, v0'); A(f'v_add_u32 v27, 0x2000000, v27')
        A('global_store_dword v27, v26, s[22:23] sc1')
        A.label('L_noDiag')
    A('s_cmp_lg_u32 s58, 0')
    A('s_cbranch_scc1 L_noTag')
    A('s_memrealtime s[48:49]')
    A('v_lshlrev_b32 v15, 3, v0')
    A('s_waitcnt lgkmcnt(0)')
    A('s_lshl_b64 s[48:49], s[48:49], 1')
    A('s_bitset1_b32 s48, 0'); A('s_bitset1_b32 s49, 31')
    A('v_mov_b32 v16, s48'); A('v_mov_b32 v17, s49')
    A('s_mov_b64 exec, 0xffff')
    A('global_store_dwordx2 v15, v[16:17], s[20:21] sc1')
    A('s_mov_b64 exec, -1')
    A.label('L_noTag')
    A('s_barrier'); A('s_barrier')
    A.label('L_pvrun')
    A(f's_cmp_ge_u32 s50, {R*(NRUN-1)}')
    A(f's_cselect_b32 s47, {LAST}, {R}')
    A('s_add_u32 s51, s50, s47')
    A('s_add_u32 s48, s50, s51')
    A('s_mov_b32 s46, 0')
    if rst is not None:
        A(f's_cmp_lg_u32 s50, {rst*R}')
        A('s_cbranch_scc1 L_noRst')
        A('s_cmp_eq_u32 s39, 0')
        A('s_cbranch_scc1 L_noRst')
        for i in range(4): A(f'v_mov_b32 v{16+i}, -1')
        A('v_lshlrev_b32 v20, 4, v0')
        A('s_movk_i32 s47, 0x1000')
        for a in range(4):
            A(f'buffer_store_dwordx4 v[16:19], v20, s[24:27], 0 offen offset:{a*1024} sc1')
            if 'spread' in exp: A('s_barrier'); A('s_barrier')
        A(f'buffer_store_dwordx4 v[16:19], v20, s[24:27], s47 offen sc1')
        if 'spread' in exp: A('s_add_u32 s45, s45, 8')
        A.label('L_noRst')
    A('s_cmp_lg_u32 s51, 64')
    A('s_cbranch_scc1 L_pvwait')
    A('s_cmp_lg_u32 s39, 0')
    A('s_cbranch_scc1 L_pvwait')
    A('v_mov_b32 v16, 0')
    A('global_load_dwordx2 v[18:19], v16, s[20:21] sc1')
    A('s_barrier'); A('s_barrier'); A('s_barrier')
    A('s_add_u32 s45, s45, 3')
    A('s_mov_b32 s49, 0x100000')
    A.label('L_annWait')
    A('s_waitcnt vmcnt(0)')
    A('v_min_u32 v17, v18, v19')
    A('s_sub_u32 s49, s49, 1')
    A('s_cbranch_scc1 L_annDone')
    A('v_readfirstlane_b32 s47, v17')
    A('s_nop 1')
    A('s_cmp_lg_u32 s47, 0')
    A('s_cbranch_scc1 L_annDone')
    A('global_load_dwordx2 v[18:19], v16, s[20:21] sc1')
    A('s_branch L_annWait')
    A.label('L_annDone')
    A(f'v_mov_b32 v16, {NONCE}')
    A('ds_write_b64 v16, v[18:19]')
    A('s_waitcnt lgkmcnt(0)')
    advance('s48', 'L_pvwait')
    A('s_branch L_pvpre')
    A.label('L_pvtile')
    stamp(3, stamps == 6, True)
    A('s_barrier')
    stamp(1, stamps == 6, True)
    def rawrd(i):
        a, b = i >> 1, 2*(i & 1)
        A(f'ds_read2st64_b64 {vr(RAW+4*i,4)}, v{VAC} offset0:{8*a+b} offset1:{8*a+b+1}')
    for i in range(8): rawrd(i)
    for i in range(8):
        a, b, u = i >> 1, 2*(i & 1), i >> 2
        A(f's_waitcnt lgkmcnt({7-i})')
        for x in range(4):
            r = RAW + 4*i + x
            A(f'v_fma_mix_f32 v{r}, v{r}, v{VSC+a*8+b+(x>>1)}, v{VSC+a*8+4+b+(x>>1)} op_sel_hi:[1,0,0]')
        if i in (4, 5):
            j = i - 4
            A(f'v_mfma_f32_32x32x16_bf16 {vr(ACC+16*j,16)}, {vr(FR+4*j,4)}, {vr(PF,4)}, {vr(ACC+16*j,16)}')
        for j in range(2):
            A(f'v_cvt_pk_bf16_f32 v{FR+8*u+4*j+(i&3)}, v{RAW+4*i+j}, v{RAW+4*i+2+j}')
    A('s_add_u32 s50, s50, 1')
    A('s_nop 0')
    for j in range(2):
        A(f'v_mfma_f32_32x32x16_bf16 {vr(ACC+16*j,16)}, {vr(FR+8+4*j,4)}, {vr(PF+4,4)}, {vr(ACC+16*j,16)}')
    A('s_cmp_eq_u32 s50, 64')
    A('s_cbranch_scc1 L_pvdone')
    A('s_cmp_eq_u32 s50, s51')
    A('s_cbranch_scc1 L_pvrun')
    A(f's_add_u32 s46, s46, {PSTR}')
    A.label('L_pvpre')
    A(f'v_add_u32 v7, s46, v{ALA}')
    A(f'ds_read_b32 v{ALF}, v7')
    A(f'v_add_u32 v7, s46, v{PA}')
    A(f'ds_read_b128 {vr(PF,4)}, v7')
    A(f'ds_read_b128 {vr(PF+4,4)}, v7 offset:1024')
    A('s_add_u32 s49, s50, s38')
    A('s_and_b32 s49, s49, 63')
    A('s_lshl_b32 s49, s49, 8')
    A(f'v_add_u32 v7, s49, v{VSA}')
    for a in range(4):
        for k in range(2):
            A(f'ds_read_b128 {vr(VSC+a*8+4*k,4)}, v7 offset:{a*64 + k*16}')
    A('s_and_b32 s47, s45, 3'); A('s_lshl_b32 s47, s47, 14')
    A(f'v_add_u32 v{VAC}, s47, v{VA}')
    A('s_add_u32 s45, s45, 1')
    A('s_waitcnt lgkmcnt(10)')
    for i in range(0, 32, 2):
        A(f'v_pk_mul_f32 {vr(ACC+i,2)}, {vr(ACC+i,2)}, {vr(ALF,2)} op_sel_hi:[1,0]')
    A('s_waitcnt lgkmcnt(0)')
    A('s_branch L_pvtile')

    A.label('L_pvdone')
    stamp(4, stamps == 6)
    A('v_accvgpr_read_b32 v10, a0')
    A('v_lshlrev_b32 v2, 4, v0')
    A('v_lshlrev_b32 v3, 3, v0')
    for c in range(3): A(f'ds_read_b64 {vr(32+2*c,2)}, v10 offset:{c*1024}')
    A(f'v_mov_b32 v5, {NONCE}')
    A('ds_read_b64 v[6:7], v5')
    A('v_lshl_add_u32 v4, v0, 3, s44')
    A('s_cmp_eq_u32 s39, 0')
    A('s_cbranch_scc1 L_own')
    def stats():
        A('s_waitcnt lgkmcnt(0)')
        for c in range(1, 3): A(f'v_sub_f32 v{32+2*c}, v{32+2*c}, v32')
        for c in range(1, 3): A(f'v_exp_f32 v{32+2*c}, v{32+2*c}')
        A('s_nop 0')
        for c in range(1, 3): A(f'v_fmac_f32 v33, v{33+2*c}, v{32+2*c}')
    A('s_nop 1')
    for a in range(4):
        for b in range(4):
            A(f'v_cvt_pk_bf16_f32 v{40+4*a+b}, v{ACC+4*a+b}, v{ACC+16+4*a+b}')
        A(f'buffer_store_dwordx4 {vr(40+4*a,4)}, v2, s[24:27], 0 offen offset:{a*1024} {xflags}')
    stats()
    A('s_movk_i32 s47, 0x1000')
    A(f'buffer_store_dwordx2 v[32:33], v3, s[24:27], s47 offen {xflags}')
    stamp(5, stamps == 6)
    A('s_barrier')
    A('s_waitcnt vmcnt(0)')
    stamp(6, stamps == 6)
    A('s_mov_b64 exec, 0xffff')
    if dual: A(f'global_store_dwordx2 v4, v[6:7], s[22:23] offset:512')
    A(f'global_store_dwordx2 v4, v[6:7], s[22:23] {xflags}')
    A('s_mov_b64 exec, -1')
    if onepoll: A('s_barrier')
    A('s_branch L_fin')
    A.label('L_own')
    A(f'v_add_u32 v3, {OWNS}, v3')
    stats()
    A('ds_write_b64 v3, v[32:33]')
    for i in range(8): A(f'ds_write_b128 v2, {vr(ACC+4*i,4)} offset:{i*1024}')
    A('s_waitcnt lgkmcnt(0)')
    A('s_barrier')
    if onepoll: A('s_barrier')
    A('s_branch L_fin')

    A.label('L_recv')
    A('v_mbcnt_lo_u32_b32 v0, -1, 0')
    A('v_mbcnt_hi_u32_b32 v0, -1, v0')
    A('s_and_b32 s43, s40, 3')
    A(f's_mul_i32 s42, s40, {3*MSG}')
    srd(A, 24, 22, 's42', 3*MSG)
    A('s_lshl_b32 s42, s41, 14')
    A('s_lshr_b32 s56, s43, 1'); A('s_lshl_b32 s56, s56, 13')
    A('s_add_u32 s42, s42, s56')
    srd(A, 32, 18, 's42', 8192)
    A('s_and_b32 s56, s43, 1'); A('s_lshl_b32 s56, s56, 7'); A('s_lshl_b32 s47, s3, 5'); A('s_add_u32 s56, s56, s47')
    A('v_and_b32 v4, 31, v0'); A('v_lshlrev_b32 v4, 8, v4')
    A('v_lshrrev_b32 v3, 5, v0'); A('v_lshl_or_b32 v4, v3, 4, v4')
    A(f's_lshl_b32 s42, s40, {FS}'); A(f's_add_u32 s42, s42, {WS_FLAGS}')
    A('v_lshl_add_u32 v7, v0, 7, s42')
    A('v_lshlrev_b32 v5, 3, v0')
    A(f'v_add_u32 v1, {OWNS}, v5')
    A('v_add_u32 v5, 4096, v5')
    A('s_lshl_b32 s47, s3, 10'); A('v_lshl_add_u32 v2, v0, 4, s47')
    for k in range(3):
        A(f's_mov_b32 s{51+k}, {k*MSG}')
    A('s_mov_b32 s54, 0xffff0000')
    A('s_lshl_b32 s48, 1, s43')
    A('s_mov_b32 s49, 0x100000')
    A(f'v_mov_b32 v28, {NONCE}')
    A('ds_read_b64 v[28:29], v28')
    A('s_waitcnt lgkmcnt(0)')
    A('s_barrier')
    stamp(3, stamps == 4)
    R = 32; D = 40
    A('ds_read_b64 v[14:15], v1')
    for j in range(2): A(f'ds_read_b128 {vr(R+4*j,4)}, v2 offset:{j*4096}')
    A(f's_xor_b32 s47, s48, 15')
    if dual: A('s_mul_i32 s47, s47, 17')
    A('s_mov_b32 exec_lo, s47'); A('s_mov_b32 exec_hi, 0')
    if onepoll:
        A('s_cmp_lg_u32 s3, 1')
        A('s_cbranch_scc1 L_final')
    A.label('L_poll')
    A(f'global_load_dwordx2 v[30:31], v7, s[22:23] {pflags}')
    A('s_waitcnt vmcnt(0)')
    A('v_cmp_eq_u64 vcc, v[28:29], v[30:31]')
    A('s_sub_u32 s49, s49, 1')
    A('s_cbranch_scc1 L_final')
    if dual:
        A('s_lshr_b32 s47, vcc_lo, 4'); A('s_or_b32 s47, s47, vcc_lo'); A('s_and_b32 s47, s47, 15'); A('s_or_b32 s47, s47, s48')
    else: A('s_or_b32 s47, vcc_lo, s48')
    A('s_cmp_lg_u32 s47, 15')
    A('s_cbranch_scc1 L_poll')
    A.label('L_final')
    if onepoll: A('s_barrier')
    A('s_mov_b64 exec, -1')
    for k in range(3): A(f'buffer_load_dwordx2 {vr(8+2*k,2)}, v5, s[24:27], s{51+k} offen sc1')
    for k in range(3): A(f'buffer_load_dwordx4 {vr(D+4*k,4)}, v2, s[24:27], s{51+k} offen sc1')
    stamp(4, stamps == 4)
    A('s_waitcnt vmcnt(3) lgkmcnt(0)')
    stamp(5, stamps == 4)
    A('v_max3_f32 v24, v8, v10, v12'); A('v_max_f32 v24, v24, v14')
    A('v_sub_f32 v16, v14, v24')
    for k in range(3): A(f'v_sub_f32 v{18+2*k}, v{8+2*k}, v24')
    for k in range(4): A(f'v_exp_f32 v{16+2*k}, v{16+2*k}')
    A('s_nop 0')
    A('v_mul_f32 v25, v15, v16')
    for k in range(3): A(f'v_fmac_f32 v25, v{9+2*k}, v{18+2*k}')
    A('v_rcp_f32 v26, v25')
    for x in range(4): A(f'v_pk_mul_f32 {vr(R+2*x,2)}, {vr(R+2*x,2)}, v[16:17] op_sel_hi:[1,0]')
    for k in range(3):
        A(f's_waitcnt vmcnt({2-k})')
        for b in range(4):
            A(f'v_lshlrev_b32 v{56+b}, 16, v{D+4*k+b}')
            A(f'v_and_b32 v{60+b}, s54, v{D+4*k+b}')
        for x in range(4):
            A(f'v_pk_fma_f32 {vr(R+2*x,2)}, {vr(56+2*x,2)}, {vr(18+2*k,2)}, {vr(R+2*x,2)} op_sel_hi:[1,0,1]')
    for x in range(4): A(f'v_pk_mul_f32 {vr(R+2*x,2)}, {vr(R+2*x,2)}, v[26:27] op_sel_hi:[1,0]')
    for b in range(4): A(f'v_cvt_pk_bf16_f32 v{52+b}, v{R+b}, v{R+4+b}')
    A(f'buffer_store_dwordx4 v[52:55], v4, s[32:35], s56 offen {oflags}')
    stamp(6, stamps == 4)
    A.label('L_fin')
    if diag:
        A('s_waitcnt vmcnt(0)')
        A('s_memrealtime s[84:85]')
        A('v_mov_b32 v18, 0x2000000')
        A('global_load_dword v17, v18, s[22:23] sc1')
        A('s_waitcnt vmcnt(0) lgkmcnt(0)')
        A('v_readfirstlane_b32 s81, v17')
        A('s_nop 1')
        A('s_mov_b32 s86, 0')
        A(f's_cmp_lg_u32 s3, {stw}')
        A('s_cbranch_scc1 L_dg')
        if diag.startswith('iv'):
            a_, b_ = int(diag[2]), int(diag[3])
            if len(diag) > 4:
                A('s_cmp_lg_u32 s2, 77'); A('s_cbranch_scc1 L_dg')
            ra = 84 if a_ == 9 else 60 + 2*a_
            rb = 84 if b_ == 9 else 60 + 2*b_
            A(f's_sub_u32 s86, s{rb}, s{ra}'); A('s_mul_i32 s86, s86, 20')
        if diag == 'tail': A('s_sub_u32 s86, s84, s82'); A('s_mul_i32 s86, s86, 10')
        if diag == 'send': A('s_sub_u32 s86, s82, s81'); A('s_sub_u32 s86, s86, 6500'); A('s_mul_i32 s86, s86, 10')
        if diag == 'fin': A('s_sub_u32 s86, s84, s81'); A('s_sub_u32 s86, s86, 6500'); A('s_mul_i32 s86, s86, 10')
        if diag == 'sendmin': A('s_sub_u32 s86, s82, s81'); A('s_sub_u32 s86, 9000, s86'); A('s_mul_i32 s86, s86, 10')
        A('s_min_u32 s86, s86, 100000')
        A.label('L_dg')
        A('s_add_u32 s86, s86, 10000')
        A.label('L_spin')
        A('s_memrealtime s[78:79]')
        A('s_waitcnt lgkmcnt(0)')
        A('s_sub_u32 s80, s78, s81')
        A(f's_cmp_lt_u32 s80, s86')
        A('s_cbranch_scc1 L_spin')
    if stamps and not diag:
        A('s_waitcnt vmcnt(0)')
        stamp(2)
        A('s_waitcnt lgkmcnt(0)')
        A(f's_cmp_lg_u32 s3, {stw}')
        A('s_cbranch_scc1 L_end')
        A('s_getreg_b32 s74, hwreg(HW_REG_XCC_ID)')
        A(f's_mov_b32 s75, {7 if stamps in (4, 6) else 6 if stamps == 2 else 4 if stamps == 5 else 3}')
        for i in range(16): A(f'v_mov_b32 v{8+i}, s{60+i}')
        A('v_mbcnt_lo_u32_b32 v0, -1, 0'); A('v_mbcnt_hi_u32_b32 v0, -1, v0')
        A('s_lshl_b32 s42, s2, 6')
        A('s_add_u32 s42, s42, 0x10000000')
        A('v_mov_b32 v1, s42')
        A('s_mov_b64 exec, 1')
        for i in range(4): A(f'global_store_dwordx4 v1, v[{8+4*i}:{11+4*i}], s[22:23] offset:{16*i}')
        if stamps in (3, 7):
            A('s_mov_b64 exec, -1')
            A('s_lshl_b32 s42, s2, 8')
            A('s_add_u32 s42, s42, 0x11000000')
            A('v_lshlrev_b32 v1, 2, v0')
            A('v_add_u32 v1, s42, v1')
            A('global_store_dword v1, v120, s[22:23]')
            A('v_add_u32 v1, 0x10000, v1')
            A('global_store_dword v1, v121, s[22:23]')
    A.label('L_end')
    A('s_endpgm')

    A('.section .rodata,"a"')
    A('.p2align 6')
    A(f'.amdhsa_kernel {main}')
    for l in ['.amdhsa_next_free_vgpr 192', '.amdhsa_next_free_sgpr 96', '.amdhsa_accum_offset 128',
              '.amdhsa_group_segment_fixed_size 0', '.amdhsa_kernarg_size 80', '.amdhsa_user_sgpr_count 2',
              '.amdhsa_user_sgpr_kernarg_segment_ptr 1', '.amdhsa_system_sgpr_workgroup_id_x 1',
              '.amdhsa_float_denorm_mode_32 3', '.amdhsa_float_denorm_mode_16_64 3']:
        A.lines.append('  ' + l)
    A('.end_amdhsa_kernel')
    return A.text()

if __name__ == '__main__':
    kw = eval('dict(' + (sys.argv[2] if len(sys.argv) > 2 else '') + ')')
    t = gen(**kw)
    errs = check_hazards(t)
    for e in errs: print('HAZARD', e)
    out = sys.argv[1] if len(sys.argv) > 1 and sys.argv[1] != '-' else f'cdna_kernels/{NAME}.s'
    open(out, 'w').write(t)
    import subprocess
    r = subprocess.run(['clang', '-x', 'assembler', '-target', 'amdgcn-amd-amdhsa', '-mcpu=gfx950', '-c', out, '-o', 'chk.o'], capture_output=True, text=True)
    print('wrote', out, len(t), 'bytes', 'hazards', len(errs), 'asm rc', r.returncode, r.stderr[:1500])
```

```python
import sys, math, struct
sys.path.insert(0, 'gen')
from asmlib import *

NAME = 'standalone__kv_cache_quant_int4_int2_kv_with_per_channel_or_per_token_scales__sampling'
HEADER = open(f'cdna_kernels/{NAME}.s.ref').read().split('; Override launch geometry')[0]

SLOT = 16384
RING = 4*SLOT
KS_T = RING
VS_T = RING + 16384
MP = RING + 32768
MLB = MP + 1536
OWNS = MLB + 3072
NONCE = OWNS + 512
PB = NONCE + 16
PSTR = 4608
STG = 2*SLOT
QST = 3*SLOT
WS_FLAGS = 0x900000
WS_CTR = 0xa00000

CSCALE = (128.0 ** -0.5) * math.log2(math.e)
def f2u(x): return struct.unpack('<I', struct.pack('<f', x))[0]

def srd(A, d, base_lo, off_lo, nbytes):
    A(f's_add_u32 s{d}, s{base_lo}, {off_lo}')
    A(f's_addc_u32 s{d+1}, s{base_lo+1}, 0')
    A(f's_and_b32 s{d+1}, s{d+1}, 0xffff')
    A(f's_mov_b32 s{d+2}, {nbytes}')
    A(f's_mov_b32 s{d+3}, 0x20000')

def gen(W=20, flags='nt', stamps=0, wgmap=2, qflags='', sflags='nt', oflags='', diag='', ctl=1, Wmin=14, Wmax=31,
        kp=24, ki=3, pflags='sc1', greedy=0, Wst=28, G=1, rot=(1,3,1), phi=(1,4), warm='', warmat=52, xflags='sc1', prio=3, stw=0, Wend=None, Gst=4, touch=0, R=13, CP=6, exp='', MSG=4608, rst=None, dual=1, iclamp=3, onepoll=1, burst=0, Wb=31, nl=0, rdb64=1, pretouch=124, lazy=40):
    FS = 10 if dual else 9
    LDS_BYTES = PB + R*PSTR
    assert LDS_BYTES <= 163840
    NRUN = (64 + R - 1)//R; LAST = 64 - R*(NRUN-1)
    MG = next(m for m in range(1, 4096) if all((n*m) >> 10 == n//R for n in range(67)))
    if Wend is None: Wend = W
    if not ctl: Wmin = Wmax = W
    A = Asm()
    A.lines += HEADER.rstrip('\n').split('\n')
    main = NAME + '_kernel'
    A(f'; @launch grid=(256,1,1) block=(512,1,1) lds={LDS_BYTES}')
    A('.amdgcn_target "amdgcn-amd-amdhsa--gfx950"')
    A('.text')
    A(f'.globl {main}')
    A('.p2align 8')
    A(f'.type {main},@function')
    A(f'{main}:')
    def stamp(i, cond=True, wait=False):
        if stamps and cond:
            A(f's_memrealtime s[{60+2*i}:{61+2*i}]')
            if wait: A('s_waitcnt lgkmcnt(0)')
    A('s_cmp_ge_u32 s2, 256')
    A('s_cbranch_scc1 L_end')
    stamp(0)
    if diag: A('s_memrealtime s[76:77]')
    A('s_load_dwordx16 s[4:19], s[0:1], 0')
    A('s_load_dwordx4 s[20:23], s[0:1], 64')
    A('v_lshrrev_b32 v1, 6, v0')
    A('v_and_b32 v0, 63, v0')
    A('v_readfirstlane_b32 s3, v1')
    if wgmap == 0:
        A('s_mov_b32 s40, s2')
    elif wgmap == 1:
        A('s_and_b32 s40, s2, 7'); A('s_lshl_b32 s40, s40, 2')
        A('s_lshr_b32 s41, s2, 3'); A('s_and_b32 s41, s41, 3'); A('s_or_b32 s40, s40, s41')
        A('s_and_b32 s41, s2, 0xe0'); A('s_or_b32 s40, s40, s41')
    elif wgmap == 2:
        A('s_and_b32 s40, s2, 7'); A('s_lshl_b32 s40, s40, 5')
        A('s_lshr_b32 s41, s2, 3'); A('s_or_b32 s40, s40, s41')
    A('s_lshr_b32 s41, s40, 2')
    if rot:
        if rot[0] != 1: A(f's_mul_i32 s38, s2, {rot[0]}'); A(f's_lshr_b32 s38, s38, {rot[1]}')
        else: A(f's_lshr_b32 s38, s2, {rot[1]}')
        A(f's_and_b32 s38, s38, {rot[2]}')
    else: A('s_mov_b32 s38, 0')
    A('s_cmp_lg_u32 s3, 0')
    A('s_cbranch_scc1 L_worker')

    if prio: A(f's_setprio {prio}')
    if ctl: A('s_memrealtime s[78:79]')
    A('v_lshlrev_b32 v16, 4, v0')
    A('s_lshl_b32 s42, s40, 12')
    A('v_add_u32 v17, s42, v16')
    A(f's_mov_b32 m0, {STG}')
    A('v_lshrrev_b32 v1, 4, v0')
    A('v_and_b32 v2, 15, v0')
    A('v_xor_b32 v2, v2, v1')
    A('v_lshlrev_b32 v2, 4, v2')
    A('v_lshl_or_b32 v2, v1, 8, v2')
    A('s_lshl_b32 s43, s41, 14')
    A('v_add_u32 v20, s43, v2')
    for jj in range(1, 4):
        A(f'v_xor_b32 v{20+jj}, {4*jj*16}, v20')
    if touch:
        A('s_lshl_b32 s42, s40, 20'); A('s_lshl_b32 s44, s38, 14'); A('s_add_u32 s42, s42, s44'); A('v_mov_b32 v26, s42')
    A('s_waitcnt lgkmcnt(0)')
    if touch:
        A('s_mov_b64 exec, 1')
        A(f'global_load_dword v24, v26, s[6:7]')
        A(f'global_load_dword v25, v26, s[8:9]')
        A('s_mov_b64 exec, -1')
    for g in range(4):
        if g: A(f's_mov_b32 m0, {STG + g*4096}')
        if g*4 > Wst: A(f's_waitcnt vmcnt({Wst})')
        if g: A('s_nop 0')
        for i in range(4):
            A(f'global_load_lds_dwordx4 v17, s[{10+2*g}:{11+2*g}] offset:{i*1024} {sflags}')
    for g in range(4):
        A(f's_mov_b32 m0, {QST + g*4096}')
        if 16 + g*4 > Wst: A(f's_waitcnt vmcnt({Wst})')
        A('s_nop 0')
        for i in range(4):
            A(f'global_load_lds_dwordx4 v{20+i}, s[4:5] offset:{i*1024} {qflags}')
        if g < 3:
            A('s_add_u32 s4, s4, 4096'); A('s_addc_u32 s5, s5, 0')
        if g == 0:
            A('v_lshrrev_b32 v1, 5, v0')
            A('v_and_b32 v2, 31, v0')
            A('v_xor_b32 v2, v2, v1')
            A('v_lshlrev_b32 v2, 4, v2')
            A('v_lshl_or_b32 v8, v1, 9, v2')
            if phi:
                A(f's_mul_i32 s37, s2, {phi[0]}'); A(f's_lshr_b32 s37, s37, {phi[1]}'); A(f's_and_b32 s37, s37, 3')
                A('s_and_b32 s36, s37, 1'); A('s_lshl_b32 s36, s36, 7'); A('v_xor_b32 v8, s36, v8')
                A('s_lshl_b32 s32, s37, 12')
                for gg in range(1, 4): A(f's_xor_b32 s{32+gg}, s32, {gg*4096}')
            for j in range(1, 8):
                A(f'v_xor_b32 v{8+j}, {2*j*16}, v8')
            A('s_lshl_b32 s42, s40, 20')
            srd(A, 24, 6, 's42', 1 << 20)
            A('s_add_u32 s28, s8, s42'); A('s_addc_u32 s29, s9, 0'); A('s_and_b32 s29, s29, 0xffff')
            A('s_lshl_b32 s44, s38, 14'); A('s_mov_b32 s45, s44'); A('s_mov_b32 s46, 0')
            for j in range(8): A(f'v_xor_b32 v{32+j}, v{8+j}, v16')
            A(f's_mov_b32 s50, 0')
            A(f's_mov_b32 s51, {R}')
            if ctl:
                A('v_and_b32 v28, 15, v0'); A('v_mul_u32_u24 v28, 0x22100, v28'); A(f'v_add_u32 v28, {WS_CTR}, v28')
                A('s_mov_b32 s84, 0'); A('s_mov_b32 s80, 0'); A('s_mov_b32 s88, 0'); A('s_mov_b32 s89, -1')
                A('s_lshr_b32 s87, s2, 7'); A('s_lshl_b32 s87, s87, 3'); A('s_and_b32 s47, s2, 7'); A('s_or_b32 s87, s87, s47')
                A('s_mul_i32 s47, s87, 0x22100'); A(f's_add_u32 s47, s47, {WS_CTR}'); A('v_lshl_add_u32 v27, v0, 2, s47')
                A('s_lshr_b32 s47, s2, 3'); A('s_and_b32 s87, s47, 15')
                A(f's_mov_b32 s85, {CP-2}')
            A(f's_mov_b32 s93, {W}')
    def slot(w, GG, st=None):
        bi = max(0, (w - 16 + GG - 1) // GG * GG)
        assert bi < 16
        for jj in range(16):
            g, i = jj >> 2, jj & 3
            if i == 0:
                go = f's{32+g}' if phi else g*4096
                A(f's_add_u32 m0, s46, {go}')
                A(f's_add_u32 s48, s44, {go}')
            if jj == 13:
                A(f's_add_u32 s44, s44, {SLOT}'); A('s_and_b32 s44, s44, 0xfffff')
            if jj == 14:
                A(f's_add_u32 s46, s46, {SLOT}'); A(f's_and_b32 s46, s46, {RING-1}')
            if jj == 15:
                A('s_add_u32 s50, s50, 1')
            if jj % GG == 0: A(f's_waitcnt vmcnt({w})')
            if jj == bi:
                if st is not None: stamp(st, stamps == 2)
                A('s_barrier')
            A(f'buffer_load_dwordx4 v{8 + (jj & 7)}, s[24:27], s48 offen offset:{i*1024} {flags} lds')
    slot(Wst, Gst, 3)
    slot(Wst, Gst, 4)
    stamp(5, stamps == 2)
    order = sorted(range(Wmin, Wmax+1), key=lambda w: (abs(w - W), w))
    for n, w in enumerate(order):
        A.label(f'L_it{w}')
        slot(w, G)
        if n == 0:
            A.label('L_next')
            if stamps == 7:
                A('s_lshr_b32 m0, s50, 1')
                A('s_nop 0')
                A('v_writelane_b32 v120, s94, m0')
                A('v_writelane_b32 v121, s93, m0')
                A('s_memrealtime s[94:95]')
            if stamps == 3:
                A('s_lshr_b32 m0, s50, 1')
                A('s_bitcmp1_b32 s50, 0')
                A('s_cbranch_scc1 L_stodd')
                A('v_writelane_b32 v120, s94, m0')
                A.label('L_stodd')
                A('v_writelane_b32 v121, s94, m0')
                A('s_memrealtime s[94:95]')
            A('s_cmp_eq_u32 s50, s51')
            A('s_cbranch_scc1 L_switch')
            A.label('L_switched')
            if ctl:
                A('s_sub_u32 s85, s85, 1')
                A('s_cmp_lt_u32 s85, 3')
                A('s_cbranch_scc1 L_ctl')
                A.label('L_disp')
                if burst:
                    A('s_sub_u32 s47, s51, s50')
                    A(f's_cmp_le_u32 s47, {burst}')
                    A(f's_cbranch_scc1 L_it{Wb}')
                for w2 in order[:-1]:
                    A(f's_cmp_eq_u32 s93, {w2}')
                    A(f's_cbranch_scc1 L_it{w2}')
            A(f's_branch L_it{order[-1]}')
            A.label('L_switch')
            A('s_cmp_eq_u32 s50, 128')
            A('s_cbranch_scc1 L_drain')
            for j in range(8): A(f'v_xor_b32 v{8+j}, v{8+j}, v{32+j}')
            A('s_mov_b64 s[30:31], s[24:25]'); A('s_mov_b64 s[24:25], s[28:29]'); A('s_mov_b64 s[28:29], s[30:31]')
            A('s_mov_b32 s47, s44'); A('s_mov_b32 s44, s45'); A('s_mov_b32 s45, s47')
            A(f's_cmp_ge_u32 s50, {2*R*(NRUN-1)}')
            A(f's_cselect_b32 s47, {LAST}, {R}')
            A('s_add_u32 s51, s51, s47')
            A('s_branch L_switched')
            if ctl:
                A.label('L_ctl')
                A('s_cmp_eq_u32 s85, 1')
                A('s_cbranch_scc1 L_pub')
                A('s_cmp_eq_u32 s85, 0')
                A('s_cbranch_scc1 L_cmp')
                A('s_mov_b32 s82, s80')
                A('s_memrealtime s[80:81]')
                A('s_mov_b64 exec, 0xffff')
                if 'noload' not in exp: A('global_load_dword v29, v28, s[22:23] sc1')
                A('s_mov_b64 exec, -1')
                A('s_branch L_disp')
                A.label('L_pub')
                A('v_add_u32 v28, 4352, v28')
                A('v_add_u32 v27, 4352, v27')
                A('s_waitcnt lgkmcnt(0)')
                A('s_cmp_lg_u32 s87, 5')
                A('s_cbranch_scc1 L_disp')
                A('v_mov_b32 v30, s80')
                A('s_mov_b32 exec_hi, 0')
                A('global_store_dword v27, v30, s[22:23] sc1')
                A('s_mov_b32 exec_hi, -1')
                A('s_branch L_disp')
                A.label('L_cmp')
                A(f's_mov_b32 s85, {CP}')
                A('s_cmp_eq_u32 s82, 0')
                A('s_cbranch_scc1 L_disp')
                A('s_sub_u32 s83, s80, s78')
                A('v_subrev_u32 v29, s78, v29')
                A('v_min_u32 v29, s83, v29')
                A('s_sub_u32 s47, s82, s78')
                A('s_lshl_b32 s47, s47, 4')
                for sh in (1, 2, 4, 8):
                    A(f'v_add_u32_dpp v29, v29, v29 row_ror:{sh} row_mask:0xf bank_mask:0xf')
                    A('s_nop 1' if sh < 8 else 's_lshl_b32 s83, s83, 4')
                A('v_readfirstlane_b32 s92, v29')
                A('s_mov_b32 s86, s88')
                A('s_sub_i32 s47, s47, s92')
                A('s_add_i32 s84, s84, s47')
                A('s_sub_u32 s49, s92, s88')
                A('s_mov_b32 s88, s92')
                A('s_min_u32 s31, s49, s89')
                A('s_mov_b32 s89, s49')
                A('s_add_u32 s92, s92, s31')
                A('s_sub_i32 s92, s83, s92')
                A('s_cmp_eq_u32 s86, 0')
                A('s_cselect_b32 s47, s47, s92')
                A('s_cselect_b32 s89, -1, s89')
                A(f's_max_i32 s84, s84, {-(iclamp*8192)//max(ki,1)}'); A(f's_min_i32 s84, s84, {(iclamp*8192)//max(ki,1)}')
                if nl:
                    A(f's_sub_i32 s49, s47, {16*nl}'); A('s_max_i32 s49, s49, 0'); A('s_add_i32 s47, s47, s49')
                A(f's_mul_i32 s47, s47, {kp}')
                A(f's_mul_i32 s49, s84, {ki}')
                A('s_add_i32 s47, s47, s49')
                A(f's_add_i32 s47, s47, {W*8192 + 4096}')
                A('s_ashr_i32 s47, s47, 13')
                A(f's_max_i32 s47, s47, {Wmin}'); A(f's_min_i32 s93, s47, {Wmax}')
                if 'fix' in exp: A(f's_mov_b32 s93, {W}')
                A('s_branch L_disp')
        else:
            A('s_branch L_next')
    A.label('L_drain')
    A('s_waitcnt vmcnt(16)'); A('s_barrier')
    A('s_waitcnt vmcnt(0) lgkmcnt(0)')
    if diag and not stamps: A('s_memrealtime s[82:83]')
    stamp(1)
    A('s_barrier')
    A('s_branch L_recv')

    A.label('L_worker')
    A('s_and_b32 s43, s40, 3')
    A('v_and_b32 v8, 31, v0')
    A('v_lshrrev_b32 v9, 5, v0')
    A('s_cmp_ge_u32 s3, 4')
    A('s_cbranch_scc1 L_pv')
    KBASE, KSA, L8, L16, M0_, M1_, L0_, L1_ = 0, 1, 2, 3, 4, 5, 6, 7
    P = 8; KADDR = 8; KFRAG = 16; KST = (32, 56); S = 96
    A('s_sub_u32 s39, s3, 1')
    A(f'v_lshlrev_b32 v{L8}, 3, v0')
    A(f'v_lshlrev_b32 v{L16}, 4, v0')
    A('v_lshlrev_b32 v14, 6, v0')
    A('v_and_b32 v12, 15, v8')
    A('v_xor_b32 v11, v12, v9')
    A('v_lshlrev_b32 v11, 4, v11')
    A('v_lshl_or_b32 v11, v8, 8, v11')
    A(f'v_add_u32 v11, {QST}, v11')
    A('v_lshlrev_b32 v13, 1, v9')
    A('v_xor_b32 v12, v12, v13')
    A('v_lshlrev_b32 v12, 4, v12')
    A(f'v_lshlrev_b32 v{KSA}, 6, v9')
    A(f'v_add_u32 v{KSA}, {KS_T}, v{KSA}')
    A('s_lshl_b32 s47, s39, 9'); A(f's_add_u32 s48, s47, {MP}')
    A(f'v_add_u32 v85, s48, v{L8}')
    A('s_sub_u32 s48, s48, 512'); A('s_cmp_eq_u32 s39, 0'); A(f's_cselect_b32 s48, {MP+1024}, s48')
    A(f'v_add_u32 v84, s48, v{L8}')
    A('s_lshl_b32 s47, s39, 10'); A(f's_add_u32 s48, s47, {MLB}'); A(f'v_add_u32 v88, s48, v{L8}')
    A('v_lshlrev_b32 v89, 2, v0')
    A(f'v_mov_b32 v{M0_}, 0xff800000'); A(f'v_mov_b32 v{M1_}, 0xff800000')
    A(f'v_mov_b32 v{L0_}, 0'); A(f'v_mov_b32 v{L1_}, 0')
    A('s_waitcnt lgkmcnt(0)')
    A(f'ds_write_b64 v85, v[{M0_}:{M1_}]')
    A(f'v_lshl_or_b32 v{KBASE}, v8, 9, v12')
    A(f's_mov_b32 s52, {hex(f2u(CSCALE))}')
    A('s_mov_b32 s53, 0x4b800000')
    A('s_mov_b32 s54, 0xffff0000')
    A('s_mov_b32 s50, s39')
    A('s_waitcnt lgkmcnt(0)')
    A('s_barrier')
    A.label('L_tab')
    A('s_lshr_b32 s47, s50, 2'); A('s_lshl_b32 s47, s47, 12')
    A('s_lshl_b32 s48, s50, 10')
    A('s_add_u32 s47, s47, s48')
    A(f's_add_u32 s47, s47, {STG}')
    A(f'v_add_u32 v15, s47, v{L16}')
    A('s_lshl_b32 s48, s50, 12')
    A(f's_add_u32 s48, s48, {KS_T}')
    A('ds_read_b128 v[64:67], v15')
    A('ds_read_b128 v[68:71], v15 offset:4096')
    A('v_add_u32 v13, s48, v14')
    A('s_waitcnt lgkmcnt(0)')
    sc, zr, t = 64, 68, 16
    for e in range(8):
        q, i = e >> 2, e & 3
        ds, dc = t + q*8 + i, t + q*8 + 4 + i
        if e & 1:
            A(f'v_and_b32 v{ds}, s54, v{sc + (e>>1)}'); A(f'v_and_b32 v{dc}, s54, v{zr + (e>>1)}')
        else:
            A(f'v_lshlrev_b32 v{ds}, 16, v{sc + (e>>1)}'); A(f'v_lshlrev_b32 v{dc}, 16, v{zr + (e>>1)}')
        A(f'v_mul_f32_e64 v{dc}, -v{dc}, v{ds}')
        A(f'v_mul_f32 v{ds}, s53, v{ds}')
    for k in range(4):
        A(f'ds_write_b128 v13, v[{t+4*k}:{t+4*k+3}] offset:{k*16}')
    A('s_add_u32 s50, s50, 3')
    A('s_cmp_lt_u32 s50, 8')
    A('s_cbranch_scc1 L_tab')
    for s in range(1, 8):
        A(f'v_xor_b32 v{32+s}, {2*s*16}, v11')
    A('s_waitcnt lgkmcnt(0)')
    A('s_barrier')
    for qb in range(2):
        for s in range(8):
            a = (qb*8 + s)*4
            if qb == 1 and s == 7: A('s_waitcnt lgkmcnt(8)')
            A(f'ds_read_b128 a[{a}:{a+3}], v{32+s if s else 11} offset:{qb*8192}')
    A('s_mov_b32 s50, s39')
    A('s_mov_b32 s45, 0')
    def advance(tgt, lab):
        A.label(lab)
        A(f's_cmp_ge_u32 s45, {tgt}')
        A(f's_cbranch_scc1 {lab}_d')
        A('s_barrier')
        A('s_add_u32 s45, s45, 1')
        A(f's_branch {lab}')
        A.label(lab + '_d')

    A.label('L_tile')
    A(f's_mul_i32 s47, s50, {MG}'); A('s_lshr_b32 s47, s47, 10'); A(f's_mul_i32 s47, s47, {R}')
    A('s_add_u32 s44, s50, s47')
    A('s_sub_u32 s47, s50, s47'); A(f's_mul_i32 s47, s47, {PSTR}'); A(f's_add_u32 s46, s47, {PB}')
    A('s_add_u32 s49, s50, s38')
    A('s_and_b32 s49, s49, 63')
    A('s_lshr_b32 s51, s49, 2')
    A('s_lshl_b32 s51, s51, 10')
    A('s_and_b32 s47, s44, 3'); A('s_lshl_b32 s47, s47, 14')
    KSCUR = 24
    A('s_waitcnt lgkmcnt(0)')
    A(f'v_add_u32 v{KSCUR}, s51, v{KSA}')
    A(f'v_add_u32 v{KADDR}, s47, v{KBASE}')
    for x in range(1, 8):
        s3_, e = x >> 1, x & 1
        A(f'v_xor_b32 v{KADDR+x}, {(4*s3_+e)*16}, v{KADDR}')
    A(f'v_add_u32 v87, s46, v{L16}')
    A('v_add_u32 v86, s46, v89')
    def kscale_reads(s):
        b = KST[s & 1]
        for k in range(4):
            A(f'ds_read_b128 v[{b+8+4*k}:{b+8+4*k+3}], v{KSCUR} offset:{s*128 + k*16}')
    def kraw_reads(s):
        b = KST[s & 1]
        for e in range(2):
            A(f'ds_read_b128 v[{b+4*e}:{b+4*e+3}], v{KADDR + (s&3)*2 + e} offset:{(s>>2)*256}')
    kscale_reads(0)
    advance('s44', 'L_qadv')
    A('s_add_u32 s45, s45, 3')
    A('s_barrier')
    kraw_reads(0)
    for s in range(8):
        if s + 1 < 8:
            kraw_reads(s+1); kscale_reads(s+1)
            A('s_waitcnt lgkmcnt(6)')
        else:
            A('s_waitcnt lgkmcnt(0)')
        b = KST[s & 1]; f = KFRAG + (s & 1)*4
        for e in range(2):
            for i in range(4):
                A(f'v_fma_mix_f32 v{b+4*e+i}, v{b+4*e+i}, v{b+8+8*e+i}, v{b+8+8*e+4+i} op_sel_hi:[1,0,0]')
        for k in range(4):
            A(f'v_cvt_pk_bf16_f32 v{f+k}, v{b+2*k}, v{b+2*k+1}')
        A('s_nop 1')
        for qb in range(2):
            a = (qb*8 + s)*4
            c = '0' if s == 0 else vr(S + qb*16, 16)
            A(f'v_mfma_f32_32x32x16_bf16 {vr(S+qb*16,16)}, {vr(f,4)}, {ar(a,4)}, {c}')
    A('s_barrier')
    A('ds_read_b64 v[82:83], v84')
    A('s_nop 10')
    T = [24, 25]; T2 = [26, 27]; AL = [28, 29]; Mx = [M0_, M1_]; Lx = [L0_, L1_]
    for qb in range(2):
        A(f'v_max3_f32 v{T[qb]}, v{S+qb*16}, v{S+qb*16+1}, v{S+qb*16+2}')
    for i in range(3, 15, 2):
        for qb in range(2):
            A(f'v_max3_f32 v{T[qb]}, v{T[qb]}, v{S+qb*16+i}, v{S+qb*16+i+1}')
    for qb in range(2): A(f'v_max_f32 v{T[qb]}, v{T[qb]}, v{S+qb*16+15}')
    for qb in range(2): A(f'v_mov_b32 v{T2[qb]}, v{T[qb]}')
    A('s_nop 1')
    for qb in range(2): A(f'v_permlane32_swap_b32 v{T[qb]}, v{T2[qb]}')
    for qb in range(2): A(f'v_max_f32 v{T[qb]}, v{T[qb]}, v{T2[qb]}')
    for qb in range(2): A(f'v_mul_f32 v{T[qb]}, s52, v{T[qb]}')
    A('s_waitcnt lgkmcnt(0)')
    for qb in range(2): A(f'v_max3_f32 v{T[qb]}, v{T[qb]}, v{Mx[qb]}, v{82+qb}')
    for qb in range(2): A(f'v_sub_f32 v{82+qb}, v{82+qb}, v{T[qb]}')
    for qb in range(2): A(f'v_sub_f32 v{AL[qb]}, v{Mx[qb]}, v{T[qb]}')
    for qb in range(2): A(f'v_exp_f32 v{82+qb}, v{82+qb}')
    for qb in range(2): A(f'v_exp_f32 v{AL[qb]}, v{AL[qb]}')
    for qb in range(2): A(f'v_mov_b32 v{Mx[qb]}, v{T[qb]}')
    A(f'ds_write_b64 v85, v[{M0_}:{M1_}]')
    A('ds_write2st64_b32 v86, v82, v83 offset0:16 offset1:17')
    for qb in range(2): A(f'v_mul_f32 v{Lx[qb]}, v{Lx[qb]}, v{AL[qb]}')
    for qb in range(2):
        for i in range(16): A(f'v_fma_f32 v{S+qb*16+i}, v{S+qb*16+i}, s52, -v{Mx[qb]}')
        for i in range(16): A(f'v_exp_f32 v{S+qb*16+i}, v{S+qb*16+i}')
        if qb == 0:
            A('s_waitcnt lgkmcnt(0)')
            A('s_barrier')
        else: A('s_nop 0')
        for k in range(8):
            A(f'v_cvt_pk_bf16_f32 v{P+qb*8+k}, v{S+qb*16+2*k}, v{S+qb*16+2*k+1}')
        for u in range(2):
            A(f'ds_write_b128 v87, {vr(P+qb*8+4*u,4)} offset:{(qb*2+u)*1024}')
    for qb in range(2):
        for i in range(0, 8, 2):
            A(f'v_pk_add_f32 {vr(S+qb*16+i,2)}, {vr(S+qb*16+i,2)}, {vr(S+qb*16+8+i,2)}')
        for i in range(0, 4, 2):
            A(f'v_pk_add_f32 {vr(S+qb*16+i,2)}, {vr(S+qb*16+i,2)}, {vr(S+qb*16+4+i,2)}')
        A(f'v_pk_add_f32 {vr(S+qb*16,2)}, {vr(S+qb*16,2)}, {vr(S+qb*16+2,2)}')
        A(f'v_add_f32 v{Lx[qb]}, v{Lx[qb]}, v{S+qb*16}')
        A(f'v_add_f32 v{Lx[qb]}, v{Lx[qb]}, v{S+qb*16+1}')
    for qb in range(2): A(f'v_mov_b32 v{24+qb}, v{Lx[qb]}')
    for qb in range(2): A(f'v_mov_b32 v{26+qb}, v{Lx[qb]}')
    for qb in range(2): A(f'v_mov_b32 v{28+2*qb}, v{Mx[qb]}')
    for qb in range(2): A(f'v_permlane32_swap_b32 v{24+qb}, v{26+qb}')
    for qb in range(2): A(f'v_add_f32 v{29+2*qb}, v{24+qb}, v{26+qb}')
    A('ds_write2st64_b64 v88, v[28:29], v[30:31] offset0:0 offset1:1')
    A('s_add_u32 s50, s50, 3')
    A('s_cmp_lt_u32 s50, 64')
    A('s_cbranch_scc1 L_tile')
    A('s_waitcnt lgkmcnt(0)')
    if pretouch:
        advance(pretouch, 'L_qend0')
        A('s_cmp_lg_u32 s39, 0')
        A('s_cbranch_scc1 L_qend')
        A(f's_lshl_b32 s42, s40, {FS}'); A(f's_add_u32 s42, s42, {WS_FLAGS}')
        A(f'v_lshl_add_u32 v8, v{L16}, 3, s42')
        A(f's_mov_b64 exec, {0xf0 if dual and lazy else 0xff if dual else 15}')
        A('global_load_dword v9, v8, s[22:23] sc1')
        A('s_mov_b64 exec, -1')
    advance(128, 'L_qend')
    A('s_branch L_recv')

    A.label('L_pv')
    VA, VSA, PA, ALA, VAC, ALF = 1, 2, 3, 4, 5, 6
    PF = 8; FR = 16; RAW = 32; VSC = 64; ACC = 96
    A('s_and_b32 s39, s3, 3')
    A('s_xor_b32 s55, s39, s43')
    A('s_lshr_b32 s56, s55, 1')
    A('s_and_b32 s57, s55, 1')
    A(f'v_lshlrev_b32 v{VA}, 3, v8')
    A(f'v_lshl_or_b32 v{VA}, v9, 11, v{VA}')
    A('s_lshl_b32 s47, s57, 8')
    A(f'v_add_u32 v{VA}, s47, v{VA}')
    A(f'v_lshlrev_b32 v{VSA}, 5, v9')
    A(f'v_add_u32 v{VSA}, {VS_T}, v{VSA}')
    A('s_lshl_b32 s47, s56, 11'); A(f's_add_u32 s47, s47, {PB}'); A(f'v_lshl_add_u32 v{PA}, v0, 4, s47')
    A('s_lshl_b32 s47, s56, 8'); A(f's_add_u32 s47, s47, {PB+4096}'); A(f'v_lshl_add_u32 v{ALA}, v0, 2, s47')
    for i in range(32): A(f'v_mov_b32 v{ACC+i}, 0')
    A('s_lshl_b32 s47, s56, 9'); A(f's_add_u32 s47, s47, {MLB}'); A('v_lshl_add_u32 v10, v0, 3, s47')
    A('v_accvgpr_write_b32 a0, v10')
    A('s_lshl_b32 s44, s41, 2'); A('s_or_b32 s44, s44, s55')
    A('s_mul_i32 s42, s44, 3'); A('s_add_u32 s42, s42, s39'); A('s_max_u32 s42, s42, 1'); A('s_sub_u32 s42, s42, 1'); A(f's_mul_i32 s42, s42, {MSG}')
    A(f's_lshl_b32 s44, s44, {FS}'); A('s_lshl_b32 s47, s43, 7'); A('s_add_u32 s44, s44, s47'); A(f's_add_u32 s44, s44, {WS_FLAGS}')
    A('s_waitcnt lgkmcnt(0)')
    srd(A, 24, 22, 's42', 4608)
    A('s_mov_b32 s50, 0')
    A('s_mov_b32 s45, 0')
    A('s_lshl_b32 s58, s2, 2'); A('s_or_b32 s58, s58, s39')
    if diag:
        A('s_cmp_lg_u32 s58, 1')
        A('s_cbranch_scc1 L_noDiag')
        A('v_mov_b32 v26, s76')
        A(f'v_lshlrev_b32 v27, 2, v0'); A(f'v_add_u32 v27, 0x2000000, v27')
        A('global_store_dword v27, v26, s[22:23] sc1')
        A.label('L_noDiag')
    A('s_cmp_lg_u32 s58, 0')
    A('s_cbranch_scc1 L_noTag')
    A('s_memrealtime s[48:49]')
    A('v_lshlrev_b32 v15, 3, v0')
    A('s_waitcnt lgkmcnt(0)')
    A('s_lshl_b64 s[48:49], s[48:49], 1')
    A('s_bitset1_b32 s48, 0'); A('s_bitset1_b32 s49, 31')
    A('v_mov_b32 v16, s48'); A('v_mov_b32 v17, s49')
    A('s_mov_b64 exec, 0xffff')
    A('global_store_dwordx2 v15, v[16:17], s[20:21] sc1')
    A('s_mov_b64 exec, -1')
    A.label('L_noTag')
    A('s_barrier'); A('s_barrier')
    A.label('L_pvrun')
    A(f's_cmp_ge_u32 s50, {R*(NRUN-1)}')
    A(f's_cselect_b32 s47, {LAST}, {R}')
    A('s_add_u32 s51, s50, s47')
    A('s_add_u32 s48, s50, s51')
    A('s_mov_b32 s46, 0')
    if rst is not None:
        A(f's_cmp_lg_u32 s50, {rst*R}')
        A('s_cbranch_scc1 L_noRst')
        A('s_cmp_eq_u32 s39, 0')
        A('s_cbranch_scc1 L_noRst')
        for i in range(4): A(f'v_mov_b32 v{16+i}, -1')
        A('v_lshlrev_b32 v20, 4, v0')
        A('s_movk_i32 s47, 0x1000')
        for a in range(4):
            A(f'buffer_store_dwordx4 v[16:19], v20, s[24:27], 0 offen offset:{a*1024} sc1')
            if 'spread' in exp: A('s_barrier'); A('s_barrier')
        A(f'buffer_store_dwordx4 v[16:19], v20, s[24:27], s47 offen sc1')
        if 'spread' in exp: A('s_add_u32 s45, s45, 8')
        A.label('L_noRst')
    A('s_cmp_lg_u32 s51, 64')
    A('s_cbranch_scc1 L_pvwait')
    A('s_cmp_lg_u32 s39, 0')
    A('s_cbranch_scc1 L_pvwait')
    A('v_mov_b32 v16, 0')
    A('global_load_dwordx2 v[18:19], v16, s[20:21] sc1')
    A('s_barrier'); A('s_barrier'); A('s_barrier')
    A('s_add_u32 s45, s45, 3')
    A('s_mov_b32 s49, 0x100000')
    A.label('L_annWait')
    A('s_waitcnt vmcnt(0)')
    A('v_min_u32 v17, v18, v19')
    A('s_sub_u32 s49, s49, 1')
    A('s_cbranch_scc1 L_annDone')
    A('v_readfirstlane_b32 s47, v17')
    A('s_nop 1')
    A('s_cmp_lg_u32 s47, 0')
    A('s_cbranch_scc1 L_annDone')
    A('global_load_dwordx2 v[18:19], v16, s[20:21] sc1')
    A('s_branch L_annWait')
    A.label('L_annDone')
    A(f'v_mov_b32 v16, {NONCE}')
    A('v_mov_b32 v17, 0')
    A('ds_write_b64 v16, v[18:19]')
    A('ds_write_b32 v16, v17 offset:8')
    A('s_waitcnt lgkmcnt(0)')
    advance('s48', 'L_pvwait')
    A('s_branch L_pvpre')
    A.label('L_pvtile')
    stamp(3, stamps == 6, True)
    A('s_barrier')
    stamp(1, stamps == 6, True)
    def rawrd(i):
        a, b = i >> 1, 2*(i & 1)
        if rdb64:
            for x in range(2): A(f'ds_read_b64 {vr(RAW+4*i+2*x,2)}, v{VAC} offset:{(8*a+b+x)*512}')
        else: A(f'ds_read2st64_b64 {vr(RAW+4*i,4)}, v{VAC} offset0:{8*a+b} offset1:{8*a+b+1}')
    for i in range(7 if rdb64 else 8): rawrd(i)
    for i in range(8):
        a, b, u = i >> 1, 2*(i & 1), i >> 2
        if rdb64:
            if i == 0: A('s_waitcnt lgkmcnt(12)'); rawrd(7)
            else: A(f's_waitcnt lgkmcnt({14-2*i})')
        else: A(f's_waitcnt lgkmcnt({7-i})')
        for x in range(4):
            r = RAW + 4*i + x
            A(f'v_fma_mix_f32 v{r}, v{r}, v{VSC+a*8+b+(x>>1)}, v{VSC+a*8+4+b+(x>>1)} op_sel_hi:[1,0,0]')
        if i in (4, 5):
            j = i - 4
            A(f'v_mfma_f32_32x32x16_bf16 {vr(ACC+16*j,16)}, {vr(FR+4*j,4)}, {vr(PF,4)}, {vr(ACC+16*j,16)}')
        for j in range(2):
            A(f'v_cvt_pk_bf16_f32 v{FR+8*u+4*j+(i&3)}, v{RAW+4*i+j}, v{RAW+4*i+2+j}')
    A('s_add_u32 s50, s50, 1')
    A('s_nop 0')
    for j in range(2):
        A(f'v_mfma_f32_32x32x16_bf16 {vr(ACC+16*j,16)}, {vr(FR+8+4*j,4)}, {vr(PF+4,4)}, {vr(ACC+16*j,16)}')
    A('s_cmp_eq_u32 s50, 64')
    A('s_cbranch_scc1 L_pvdone')
    A('s_cmp_eq_u32 s50, s51')
    A('s_cbranch_scc1 L_pvrun')
    A(f's_add_u32 s46, s46, {PSTR}')
    A.label('L_pvpre')
    A(f'v_add_u32 v7, s46, v{ALA}')
    A(f'ds_read_b32 v{ALF}, v7')
    A(f'v_add_u32 v7, s46, v{PA}')
    A(f'ds_read_b128 {vr(PF,4)}, v7')
    A(f'ds_read_b128 {vr(PF+4,4)}, v7 offset:1024')
    A('s_add_u32 s49, s50, s38')
    A('s_and_b32 s49, s49, 63')
    A('s_lshl_b32 s49, s49, 8')
    A(f'v_add_u32 v7, s49, v{VSA}')
    for a in range(4):
        for k in range(2):
            A(f'ds_read_b128 {vr(VSC+a*8+4*k,4)}, v7 offset:{a*64 + k*16}')
    A('s_and_b32 s47, s45, 3'); A('s_lshl_b32 s47, s47, 14')
    A(f'v_add_u32 v{VAC}, s47, v{VA}')
    A('s_add_u32 s45, s45, 1')
    A('s_waitcnt lgkmcnt(10)')
    for i in range(0, 32, 2):
        A(f'v_pk_mul_f32 {vr(ACC+i,2)}, {vr(ACC+i,2)}, {vr(ALF,2)} op_sel_hi:[1,0]')
    A('s_waitcnt lgkmcnt(0)')
    A('s_branch L_pvtile')

    A.label('L_pvdone')
    stamp(4, stamps == 6)
    A('v_accvgpr_read_b32 v10, a0')
    A('v_lshlrev_b32 v2, 4, v0')
    A('v_lshlrev_b32 v3, 3, v0')
    for c in range(3): A(f'ds_read_b64 {vr(32+2*c,2)}, v10 offset:{c*1024}')
    A(f'v_mov_b32 v5, {NONCE}')
    A('ds_read_b64 v[6:7], v5')
    A('v_lshl_add_u32 v4, v0, 3, s44')
    A('s_cmp_eq_u32 s39, 0')
    A('s_cbranch_scc1 L_own')
    def stats():
        A('s_waitcnt lgkmcnt(0)')
        for c in range(1, 3): A(f'v_sub_f32 v{32+2*c}, v{32+2*c}, v32')
        for c in range(1, 3): A(f'v_exp_f32 v{32+2*c}, v{32+2*c}')
        A('s_nop 0')
        for c in range(1, 3): A(f'v_fmac_f32 v33, v{33+2*c}, v{32+2*c}')
    A('s_nop 1')
    for a in range(4):
        for b in range(4):
            A(f'v_cvt_pk_bf16_f32 v{40+4*a+b}, v{ACC+4*a+b}, v{ACC+16+4*a+b}')
        A(f'buffer_store_dwordx4 {vr(40+4*a,4)}, v2, s[24:27], 0 offen offset:{a*1024} {xflags}')
    stats()
    A('s_movk_i32 s47, 0x1000')
    A(f'buffer_store_dwordx2 v[32:33], v3, s[24:27], s47 offen {xflags}')
    stamp(5, stamps == 6)
    A('s_barrier')
    A('s_waitcnt vmcnt(0)')
    stamp(6, stamps == 6)
    A('s_mov_b64 exec, 0xffff')
    if dual: A(f'global_store_dwordx2 v4, v[6:7], s[22:23] offset:512')
    A(f'global_store_dwordx2 v4, v[6:7], s[22:23] {xflags}')
    A('s_mov_b64 exec, -1')
    A('s_branch L_fin')
    A.label('L_own')
    A(f'v_add_u32 v3, {OWNS}, v3')
    stats()
    A('ds_write_b64 v3, v[32:33]')
    for i in range(8): A(f'ds_write_b128 v2, {vr(ACC+4*i,4)} offset:{i*1024}')
    A('s_waitcnt lgkmcnt(0)')
    A('s_barrier')
    if dual:
        A(f's_lshl_b32 s42, s40, {FS}'); A(f's_add_u32 s42, s42, {WS_FLAGS}')
        A('v_mov_b32 v28, v6'); A('v_mov_b32 v29, v7')
        A('v_lshl_add_u32 v7, v0, 7, s42')
        A(f'v_mov_b32 v26, {NONCE}')
        A('s_lshl_b32 s48, 1, s43'); A('s_xor_b32 s48, s48, 15')
        if lazy:
            A(f's_mov_b32 s49, {lazy}')
            A.label('L_lazy')
            A('ds_read_b32 v27, v26 offset:8')
            A('s_waitcnt lgkmcnt(0)')
            A('v_readfirstlane_b32 s47, v27')
            A('s_sub_u32 s49, s49, 1')
            A('s_cbranch_scc1 L_lazyd')
            A('s_cmp_eq_u32 s47, 0')
            A('s_cbranch_scc1 L_lazy')
            A('s_branch L_fin')
            A.label('L_lazyd')
        A('s_mov_b32 s49, 0x100000')
        A('s_mov_b32 exec_lo, s48'); A('s_mov_b32 exec_hi, 0')
        A.label('L_poll2')
        A(f'global_load_dwordx2 v[30:31], v7, s[22:23] {pflags}')
        A('ds_read_b32 v27, v26 offset:8')
        A('s_waitcnt vmcnt(0) lgkmcnt(0)')
        A('v_cmp_eq_u64 vcc, v[28:29], v[30:31]')
        A('v_readfirstlane_b32 s47, v27')
        A('s_sub_u32 s49, s49, 1')
        A('s_cbranch_scc1 L_poll2_go')
        A('s_cmp_eq_u32 vcc_lo, s48')
        A('s_cbranch_scc1 L_poll2_go')
        A('s_cmp_eq_u32 s47, 0')
        A('s_cbranch_scc1 L_poll2')
        A.label('L_poll2_go')
        A('ds_write_b32 v26, v26 offset:8')
        A('s_mov_b64 exec, -1')
    A('s_branch L_fin')

    A.label('L_recv')
    A('v_mbcnt_lo_u32_b32 v0, -1, 0')
    A('v_mbcnt_hi_u32_b32 v0, -1, v0')
    A('s_and_b32 s43, s40, 3')
    A(f's_mul_i32 s42, s40, {3*MSG}')
    srd(A, 24, 22, 's42', 3*MSG)
    A('s_lshl_b32 s42, s41, 14')
    A('s_lshr_b32 s56, s43, 1'); A('s_lshl_b32 s56, s56, 13')
    A('s_add_u32 s42, s42, s56')
    srd(A, 32, 18, 's42', 8192)
    A('s_and_b32 s56, s43, 1'); A('s_lshl_b32 s56, s56, 7'); A('s_lshl_b32 s47, s3, 5'); A('s_add_u32 s56, s56, s47')
    A('v_and_b32 v4, 31, v0'); A('v_lshlrev_b32 v4, 8, v4')
    A('v_lshrrev_b32 v3, 5, v0'); A('v_lshl_or_b32 v4, v3, 4, v4')
    A(f's_lshl_b32 s42, s40, {FS}'); A(f's_add_u32 s42, s42, {WS_FLAGS + (512 if dual else 0)}')
    A('v_lshl_add_u32 v7, v0, 7, s42')
    A('v_lshlrev_b32 v5, 3, v0')
    A(f'v_add_u32 v1, {OWNS}, v5')
    A('v_add_u32 v5, 4096, v5')
    A('s_lshl_b32 s47, s3, 10'); A('v_lshl_add_u32 v2, v0, 4, s47')
    for k in range(3):
        A(f's_mov_b32 s{51+k}, {k*MSG}')
    A('s_mov_b32 s54, 0xffff0000')
    A('s_lshl_b32 s48, 1, s43'); A('s_xor_b32 s48, s48, 15')
    A('s_mov_b32 s49, 0x100000')
    A(f'v_mov_b32 v26, {NONCE}')
    A('ds_read_b64 v[28:29], v26')
    A('s_waitcnt lgkmcnt(0)')
    A('s_barrier')
    stamp(3, stamps == 4)
    R = 32; D = 40
    A('ds_read_b64 v[14:15], v1')
    for j in range(2): A(f'ds_read_b128 {vr(R+4*j,4)}, v2 offset:{j*4096}')
    A('s_cmp_eq_u32 s3, 1')
    A('s_cbranch_scc1 L_poller')
    A.label('L_gowait')
    A('ds_read_b32 v27, v26 offset:8')
    A('s_waitcnt lgkmcnt(0)')
    A('v_readfirstlane_b32 s47, v27')
    A('s_nop 0')
    A('s_cmp_eq_u32 s47, 0')
    A('s_cbranch_scc1 L_gowait')
    A('s_branch L_final')
    A.label('L_poller')
    A('s_mov_b32 exec_lo, s48'); A('s_mov_b32 exec_hi, 0')
    A.label('L_poll')
    A(f'global_load_dwordx2 v[30:31], v7, s[22:23] {pflags}')
    A('ds_read_b32 v27, v26 offset:8')
    A('s_waitcnt vmcnt(0) lgkmcnt(0)')
    A('v_cmp_eq_u64 vcc, v[28:29], v[30:31]')
    A('v_readfirstlane_b32 s47, v27')
    A('s_sub_u32 s49, s49, 1')
    A('s_cbranch_scc1 L_poll_go')
    A('s_cmp_eq_u32 vcc_lo, s48')
    A('s_cbranch_scc1 L_poll_go')
    A('s_cmp_eq_u32 s47, 0')
    A('s_cbranch_scc1 L_poll')
    A.label('L_poll_go')
    A('ds_write_b32 v26, v26 offset:8')
    A.label('L_final')
    A('s_mov_b64 exec, -1')
    for k in range(3): A(f'buffer_load_dwordx2 {vr(8+2*k,2)}, v5, s[24:27], s{51+k} offen sc1')
    for k in range(3): A(f'buffer_load_dwordx4 {vr(D+4*k,4)}, v2, s[24:27], s{51+k} offen sc1')
    stamp(4, stamps == 4)
    A('s_waitcnt vmcnt(3) lgkmcnt(0)')
    stamp(5, stamps == 4)
    A('v_max3_f32 v24, v8, v10, v12'); A('v_max_f32 v24, v24, v14')
    A('v_sub_f32 v16, v14, v24')
    for k in range(3): A(f'v_sub_f32 v{18+2*k}, v{8+2*k}, v24')
    for k in range(4): A(f'v_exp_f32 v{16+2*k}, v{16+2*k}')
    A('s_nop 0')
    A('v_mul_f32 v25, v15, v16')
    for k in range(3): A(f'v_fmac_f32 v25, v{9+2*k}, v{18+2*k}')
    A('v_rcp_f32 v26, v25')
    for x in range(4): A(f'v_pk_mul_f32 {vr(R+2*x,2)}, {vr(R+2*x,2)}, v[16:17] op_sel_hi:[1,0]')
    for k in range(3):
        A(f's_waitcnt vmcnt({2-k})')
        for b in range(4):
            A(f'v_lshlrev_b32 v{56+b}, 16, v{D+4*k+b}')
            A(f'v_and_b32 v{60+b}, s54, v{D+4*k+b}')
        for x in range(4):
            A(f'v_pk_fma_f32 {vr(R+2*x,2)}, {vr(56+2*x,2)}, {vr(18+2*k,2)}, {vr(R+2*x,2)} op_sel_hi:[1,0,1]')
    for x in range(4): A(f'v_pk_mul_f32 {vr(R+2*x,2)}, {vr(R+2*x,2)}, v[26:27] op_sel_hi:[1,0]')
    for b in range(4): A(f'v_cvt_pk_bf16_f32 v{52+b}, v{R+b}, v{R+4+b}')
    A(f'buffer_store_dwordx4 v[52:55], v4, s[32:35], s56 offen {oflags}')
    stamp(6, stamps == 4)
    A.label('L_fin')
    if diag:
        A('s_waitcnt vmcnt(0)')
        A('s_memrealtime s[84:85]')
        A('v_mov_b32 v18, 0x2000000')
        A('global_load_dword v17, v18, s[22:23] sc1')
        A('s_waitcnt vmcnt(0) lgkmcnt(0)')
        A('v_readfirstlane_b32 s81, v17')
        A('s_nop 1')
        A('s_mov_b32 s86, 0')
        A(f's_cmp_lg_u32 s3, {stw}')
        A('s_cbranch_scc1 L_dg')
        if diag.startswith('iv'):
            a_, b_ = int(diag[2]), int(diag[3])
            if len(diag) > 4:
                A('s_cmp_lg_u32 s2, 77'); A('s_cbranch_scc1 L_dg')
            ra = 84 if a_ == 9 else 60 + 2*a_
            rb = 84 if b_ == 9 else 60 + 2*b_
            A(f's_sub_u32 s86, s{rb}, s{ra}'); A('s_mul_i32 s86, s86, 20')
        if diag == 'tail': A('s_sub_u32 s86, s84, s82'); A('s_mul_i32 s86, s86, 10')
        if diag == 'send': A('s_sub_u32 s86, s82, s81'); A('s_sub_u32 s86, s86, 6500'); A('s_mul_i32 s86, s86, 10')
        if diag == 'fin': A('s_sub_u32 s86, s84, s81'); A('s_sub_u32 s86, s86, 6500'); A('s_mul_i32 s86, s86, 10')
        if diag == 'sendmin': A('s_sub_u32 s86, s82, s81'); A('s_sub_u32 s86, 9000, s86'); A('s_mul_i32 s86, s86, 10')
        A('s_min_u32 s86, s86, 100000')
        A.label('L_dg')
        A('s_add_u32 s86, s86, 10000')
        A.label('L_spin')
        A('s_memrealtime s[78:79]')
        A('s_waitcnt lgkmcnt(0)')
        A('s_sub_u32 s80, s78, s81')
        A(f's_cmp_lt_u32 s80, s86')
        A('s_cbranch_scc1 L_spin')
    if stamps and not diag:
        A('s_waitcnt vmcnt(0)')
        stamp(2)
        A('s_waitcnt lgkmcnt(0)')
        A(f's_cmp_lg_u32 s3, {stw}')
        A('s_cbranch_scc1 L_end')
        A('s_getreg_b32 s74, hwreg(HW_REG_XCC_ID)')
        A(f's_mov_b32 s75, {7 if stamps in (4, 6) else 6 if stamps == 2 else 4 if stamps == 5 else 3}')
        for i in range(16): A(f'v_mov_b32 v{8+i}, s{60+i}')
        A('v_mbcnt_lo_u32_b32 v0, -1, 0'); A('v_mbcnt_hi_u32_b32 v0, -1, v0')
        A('s_lshl_b32 s42, s2, 6')
        A('s_add_u32 s42, s42, 0x10000000')
        A('v_mov_b32 v1, s42')
        A('s_mov_b64 exec, 1')
        for i in range(4): A(f'global_store_dwordx4 v1, v[{8+4*i}:{11+4*i}], s[22:23] offset:{16*i}')
        if stamps in (3, 7):
            A('s_mov_b64 exec, -1')
            A('s_lshl_b32 s42, s2, 8')
            A('s_add_u32 s42, s42, 0x11000000')
            A('v_lshlrev_b32 v1, 2, v0')
            A('v_add_u32 v1, s42, v1')
            A('global_store_dword v1, v120, s[22:23]')
            A('v_add_u32 v1, 0x10000, v1')
            A('global_store_dword v1, v121, s[22:23]')
    A.label('L_end')
    A('s_endpgm')

    A('.section .rodata,"a"')
    A('.p2align 6')
    A(f'.amdhsa_kernel {main}')
    for l in ['.amdhsa_next_free_vgpr 192', '.amdhsa_next_free_sgpr 96', '.amdhsa_accum_offset 128',
              '.amdhsa_group_segment_fixed_size 0', '.amdhsa_kernarg_size 80', '.amdhsa_user_sgpr_count 2',
              '.amdhsa_user_sgpr_kernarg_segment_ptr 1', '.amdhsa_system_sgpr_workgroup_id_x 1',
              '.amdhsa_float_denorm_mode_32 3', '.amdhsa_float_denorm_mode_16_64 3']:
        A.lines.append('  ' + l)
    A('.end_amdhsa_kernel')
    return A.text()

if __name__ == '__main__':
    kw = eval('dict(' + (sys.argv[2] if len(sys.argv) > 2 else '') + ')')
    t = gen(**kw)
    errs = check_hazards(t)
    for e in errs: print('HAZARD', e)
    out = sys.argv[1] if len(sys.argv) > 1 and sys.argv[1] != '-' else f'cdna_kernels/{NAME}.s'
    open(out, 'w').write(t)
    import subprocess
    r = subprocess.run(['clang', '-x', 'assembler', '-target', 'amdgcn-amd-amdhsa', '-mcpu=gfx950', '-c', out, '-o', 'chk.o'], capture_output=True, text=True)
    print('wrote', out, len(t), 'bytes', 'hazards', len(errs), 'asm rc', r.returncode, r.stderr[:1500])
```

```python
import sys, math, struct
sys.path.insert(0, 'gen')
from asmlib import *

NAME = 'standalone__kv_cache_quant_int4_int2_kv_with_per_channel_or_per_token_scales__sampling'
HEADER = open(f'cdna_kernels/{NAME}.s.ref').read().split('; Override launch geometry')[0]

SLOT = 16384
RING = 4*SLOT
KS_T = RING
VS_T = RING + 16384
MP = RING + 32768
MLB = MP + 1536
OWNS = MLB + 3072
NONCE = OWNS + 512
PB = NONCE + 16
PSTR = 4608
STG = 2*SLOT
QST = 3*SLOT
WS_FLAGS = 0x900000
WS_CTR = 0xa00000

CSCALE = (128.0 ** -0.5) * math.log2(math.e)
def f2u(x): return struct.unpack('<I', struct.pack('<f', x))[0]

def srd(A, d, base_lo, off_lo, nbytes):
    A(f's_add_u32 s{d}, s{base_lo}, {off_lo}')
    A(f's_addc_u32 s{d+1}, s{base_lo+1}, 0')
    A(f's_and_b32 s{d+1}, s{d+1}, 0xffff')
    A(f's_mov_b32 s{d+2}, {nbytes}')
    A(f's_mov_b32 s{d+3}, 0x20000')

def gen(W=19, flags='nt', stamps=0, wgmap=2, qflags='', sflags='nt', oflags='', diag='', ctl=1, Wmin=14, Wmax=31,
        kp=96, ki=3, pflags='sc1', greedy=0, Wst=28, G=1, rot=(1,3,1), phi=(1,4), warm='', warmat=52, xflags='sc1', prio=3, stw=0, Wend=None, Gst=4, touch=0, R=13, CP=6, exp='', MSG=4608, rst=None, dual=1, iclamp=3, onepoll=1, burst=0, Wb=31, nl=0, rdb64=1, pretouch=124, lazy=40, clip=40, bias=0, ema=2, Wf=3, kp0=24, kneg=3, stag=3, cwarm=1):
    FS = 10 if dual else 9
    WB = W*8192 + 4096 + Wf*1024
    LDS_BYTES = PB + R*PSTR
    assert LDS_BYTES <= 163840
    NRUN = (64 + R - 1)//R; LAST = 64 - R*(NRUN-1)
    MG = next(m for m in range(1, 4096) if all((n*m) >> 10 == n//R for n in range(67)))
    if Wend is None: Wend = W
    if not ctl: Wmin = Wmax = W
    A = Asm()
    A.lines += HEADER.rstrip('\n').split('\n')
    main = NAME + '_kernel'
    A(f'; @launch grid=(256,1,1) block=(512,1,1) lds={LDS_BYTES}')
    A('.amdgcn_target "amdgcn-amd-amdhsa--gfx950"')
    A('.text')
    A(f'.globl {main}')
    A('.p2align 8')
    A(f'.type {main},@function')
    A(f'{main}:')
    def stamp(i, cond=True, wait=False):
        if stamps and cond:
            A(f's_memrealtime s[{60+2*i}:{61+2*i}]')
            if wait: A('s_waitcnt lgkmcnt(0)')
    A('s_cmp_ge_u32 s2, 256')
    A('s_cbranch_scc1 L_end')
    stamp(0)
    if diag: A('s_memrealtime s[76:77]')
    A('s_load_dwordx16 s[4:19], s[0:1], 0')
    A('s_load_dwordx4 s[20:23], s[0:1], 64')
    A('v_lshrrev_b32 v1, 6, v0')
    A('v_and_b32 v0, 63, v0')
    A('v_readfirstlane_b32 s3, v1')
    if wgmap == 0:
        A('s_mov_b32 s40, s2')
    elif wgmap == 1:
        A('s_and_b32 s40, s2, 7'); A('s_lshl_b32 s40, s40, 2')
        A('s_lshr_b32 s41, s2, 3'); A('s_and_b32 s41, s41, 3'); A('s_or_b32 s40, s40, s41')
        A('s_and_b32 s41, s2, 0xe0'); A('s_or_b32 s40, s40, s41')
    elif wgmap == 2:
        A('s_and_b32 s40, s2, 7'); A('s_lshl_b32 s40, s40, 5')
        A('s_lshr_b32 s41, s2, 3'); A('s_or_b32 s40, s40, s41')
    A('s_lshr_b32 s41, s40, 2')
    if rot:
        if rot[0] != 1: A(f's_mul_i32 s38, s2, {rot[0]}'); A(f's_lshr_b32 s38, s38, {rot[1]}')
        else: A(f's_lshr_b32 s38, s2, {rot[1]}')
        A(f's_and_b32 s38, s38, {rot[2]}')
    else: A('s_mov_b32 s38, 0')
    A('s_cmp_lg_u32 s3, 0')
    A('s_cbranch_scc1 L_worker')

    if prio: A(f's_setprio {prio}')
    if ctl: A('s_memrealtime s[78:79]')
    A('v_lshlrev_b32 v16, 4, v0')
    A('s_lshl_b32 s42, s40, 12')
    A('v_add_u32 v17, s42, v16')
    A(f's_mov_b32 m0, {STG}')
    A('v_lshrrev_b32 v1, 4, v0')
    A('v_and_b32 v2, 15, v0')
    A('v_xor_b32 v2, v2, v1')
    A('v_lshlrev_b32 v2, 4, v2')
    A('v_lshl_or_b32 v2, v1, 8, v2')
    A('s_lshl_b32 s43, s41, 14')
    A('v_add_u32 v20, s43, v2')
    for jj in range(1, 4):
        A(f'v_xor_b32 v{20+jj}, {4*jj*16}, v20')
    if touch:
        A('s_lshl_b32 s42, s40, 20'); A('s_lshl_b32 s44, s38, 14'); A('s_add_u32 s42, s42, s44'); A('v_mov_b32 v26, s42')
    A('s_waitcnt lgkmcnt(0)')
    if touch:
        A('s_mov_b64 exec, 1')
        A(f'global_load_dword v24, v26, s[6:7]')
        A(f'global_load_dword v25, v26, s[8:9]')
        A('s_mov_b64 exec, -1')
    for g in range(4):
        if g: A(f's_mov_b32 m0, {STG + g*4096}')
        if g*4 > Wst: A(f's_waitcnt vmcnt({Wst})')
        if g: A('s_nop 0')
        for i in range(4):
            A(f'global_load_lds_dwordx4 v17, s[{10+2*g}:{11+2*g}] offset:{i*1024} {sflags}')
    for g in range(4):
        A(f's_mov_b32 m0, {QST + g*4096}')
        if 16 + g*4 > Wst: A(f's_waitcnt vmcnt({Wst})')
        A('s_nop 0')
        for i in range(4):
            A(f'global_load_lds_dwordx4 v{20+i}, s[4:5] offset:{i*1024} {qflags}')
        if g < 3:
            A('s_add_u32 s4, s4, 4096'); A('s_addc_u32 s5, s5, 0')
        if g == 0:
            A('v_lshrrev_b32 v1, 5, v0')
            A('v_and_b32 v2, 31, v0')
            A('v_xor_b32 v2, v2, v1')
            A('v_lshlrev_b32 v2, 4, v2')
            A('v_lshl_or_b32 v8, v1, 9, v2')
            if phi:
                A(f's_mul_i32 s37, s2, {phi[0]}'); A(f's_lshr_b32 s37, s37, {phi[1]}'); A(f's_and_b32 s37, s37, 3')
                A('s_and_b32 s36, s37, 1'); A('s_lshl_b32 s36, s36, 7'); A('v_xor_b32 v8, s36, v8')
                A('s_lshl_b32 s32, s37, 12')
                for gg in range(1, 4): A(f's_xor_b32 s{32+gg}, s32, {gg*4096}')
            for j in range(1, 8):
                A(f'v_xor_b32 v{8+j}, {2*j*16}, v8')
            A('s_lshl_b32 s42, s40, 20')
            srd(A, 24, 6, 's42', 1 << 20)
            A('s_add_u32 s28, s8, s42'); A('s_addc_u32 s29, s9, 0'); A('s_and_b32 s29, s29, 0xffff')
            A('s_lshl_b32 s44, s38, 14'); A('s_mov_b32 s45, s44'); A('s_mov_b32 s46, 0')
            for j in range(8): A(f'v_xor_b32 v{32+j}, v{8+j}, v16')
            A(f's_mov_b32 s50, 0')
            A(f's_mov_b32 s51, {R}')
            if ctl:
                A('v_and_b32 v28, 15, v0'); A('v_mul_u32_u24 v28, 0x22100, v28'); A(f'v_add_u32 v28, {WS_CTR}, v28')
                A('s_mov_b32 s84, 0'); A('s_mov_b32 s90, 0'); A('s_mov_b32 s88, 0'); A('s_mov_b32 s89, 0')
                A('s_mov_b32 s52, 0'); A('s_mov_b32 s53, 0'); A('s_mov_b32 s54, 0'); A(f's_mov_b32 s55, {WB}')
                A('s_lshr_b32 s87, s2, 7'); A('s_lshl_b32 s87, s87, 3'); A('s_and_b32 s47, s2, 7'); A('s_or_b32 s87, s87, s47')
                A('s_mul_i32 s47, s87, 0x22100'); A(f's_add_u32 s47, s47, {WS_CTR}'); A('v_lshl_add_u32 v27, v0, 2, s47')
                A('s_lshr_b32 s47, s2, 3'); A('s_and_b32 s87, s47, 15')
                if stag: A('s_lshr_b32 s58, s2, 4'); A(f's_and_b32 s58, s58, {stag}'); A('s_add_u32 s58, s58, 2')
                else: A('s_mov_b32 s58, 2')
                A(f's_sub_u32 s59, {CP}, s58'); A(f's_add_u32 s92, s58, {CP+1}')
                A('s_mov_b32 s57, 4'); A('s_mov_b32 s85, 0')
            A(f's_mov_b32 s56, {4 if ctl else R}')
            A(f's_mov_b32 s93, {W}')
    def slot(w, GG, st=None):
        bi = max(0, (w - 16 + GG - 1) // GG * GG)
        assert bi < 16
        for jj in range(16):
            g, i = jj >> 2, jj & 3
            if i == 0:
                go = f's{32+g}' if phi else g*4096
                A(f's_add_u32 m0, s46, {go}')
                A(f's_add_u32 s48, s44, {go}')
            if ctl and st is None:
                if jj == 10:
                    A('s_waitcnt lgkmcnt(0)')
                    if w != W: A(f's_add_u32 s80, s80, {round((w-W)*3.4) & 0xffffffff:#x}')
                    A('s_lshl_b32 s47, s80, 4')
                    A('s_sub_i32 s47, s47, s52')
                    A('s_add_u32 s52, s52, s53')
                if jj == 11:
                    if kneg > 1: A(f's_ashr_i32 s49, s47, {kneg-1}'); A('s_max_i32 s47, s47, s49')
                    A(f's_max_i32 s47, s47, {-16*clip}')
                    A('s_mul_i32 s47, s47, s54')
                    A('s_add_i32 s47, s47, s55')
                    A('s_ashr_i32 s47, s47, 13')
                if jj == 13:
                    A(f's_max_i32 s47, s47, {Wmin}'); A(f's_min_i32 s93, s47, {Wmax}')
            if jj == 13:
                A(f's_add_u32 s44, s44, {SLOT}'); A('s_and_b32 s44, s44, 0xfffff')
            if jj == 14:
                A(f's_add_u32 s46, s46, {SLOT}'); A(f's_and_b32 s46, s46, {RING-1}')
            if jj == 15:
                A('s_add_u32 s50, s50, 1')
                if stamps == 7 and st is None:
                    A('s_mov_b32 s31, m0'); A('s_lshr_b32 m0, s50, 1'); A('s_nop 0')
                    A('v_writelane_b32 v120, s80, m0'); A('v_writelane_b32 v121, s93, m0'); A('s_mov_b32 m0, s31')
                if st is None: A('s_cmp_eq_u32 s50, s56')
            if jj % GG == 0: A(f's_waitcnt vmcnt({w})')
            if ctl and st is None and jj == 8: A('s_memrealtime s[80:81]')
            if jj == bi:
                if st is not None: stamp(st, stamps == 2)
                A('s_barrier')
            A(f'buffer_load_dwordx4 v{8 + (jj & 7)}, s[24:27], s48 offen offset:{i*1024} {flags} lds')
    slot(Wst, Gst, 3)
    slot(Wst, Gst, 4)
    stamp(5, stamps == 2)
    order = sorted(range(Wmin, Wmax+1), key=lambda w: (abs(w - W), w))
    for n, w in enumerate(order):
        A.label(f'L_it{w}')
        slot(w, G)
        A('s_cbranch_scc1 L_event')
        for w2 in (w, w+1, w-1):
            if Wmin <= w2 <= Wmax:
                A(f's_cmp_eq_u32 s93, {w2}')
                A(f's_cbranch_scc1 L_it{w2}')
        if n: A('s_branch L_disp')
        if n == 0:
            A.label('L_disp')
            for w2 in order[:-1]:
                A(f's_cmp_eq_u32 s93, {w2}')
                A(f's_cbranch_scc1 L_it{w2}')
            A(f's_branch L_it{order[-1]}')
            A.label('L_event')
            A('s_cmp_lg_u32 s50, s51')
            A('s_cbranch_scc1 L_ctl')
            A('s_cmp_eq_u32 s50, 128')
            A('s_cbranch_scc1 L_drain')
            for j in range(8): A(f'v_xor_b32 v{8+j}, v{8+j}, v{32+j}')
            A('s_mov_b64 s[30:31], s[24:25]'); A('s_mov_b64 s[24:25], s[28:29]'); A('s_mov_b64 s[28:29], s[30:31]')
            A('s_mov_b32 s47, s44'); A('s_mov_b32 s44, s45'); A('s_mov_b32 s45, s47')
            A(f's_cmp_ge_u32 s50, {2*R*(NRUN-1)}')
            A(f's_cselect_b32 s47, {LAST}, {R}')
            A('s_add_u32 s51, s51, s47')
            if not ctl:
                A.label('L_ctl')
                A('s_mov_b32 s56, s51')
                A('s_branch L_disp')
            else:
                A('s_min_u32 s56, s51, s57')
                A('s_cmp_lg_u32 s50, s57')
                A('s_cbranch_scc1 L_disp')
                A.label('L_ctl')
                A('s_xor_b32 s85, s85, 1')
                A('s_cbranch_scc0 L_cmp')
                A('s_mov_b64 exec, 0xffff')
                A('global_load_dword v29, v28, s[22:23] sc1')
                A('s_mov_b64 exec, -1')
                A('s_add_u32 s57, s57, s58')
                A('s_min_u32 s56, s51, s57')
                A('s_mov_b32 s82, s90')
                A('s_mov_b32 s90, s80')
                A('v_add_u32 v28, 4352, v28')
                A('s_cmp_lg_u32 s87, 5')
                A('s_cbranch_scc1 L_disp')
                A('v_add_u32 v27, 4352, v27')
                A('v_mov_b32 v30, s90')
                A('s_mov_b32 exec_hi, 0')
                A('global_store_dword v27, v30, s[22:23] sc1')
                A('s_mov_b32 exec_hi, -1')
                A('s_branch L_disp')
                A.label('L_cmp')
                A('s_add_u32 s57, s57, s59')
                A('s_min_u32 s56, s51, s57')
                A('s_cmp_eq_u32 s82, 0')
                A('s_cbranch_scc1 L_disp')
                A('s_sub_u32 s83, s90, s78')
                A('v_subrev_u32 v29, s78, v29')
                A('v_min_u32 v29, s83, v29')
                A('s_sub_u32 s47, s82, s78')
                A('s_lshl_b32 s47, s47, 4')
                fill = [['s_lshl_b32 s91, s78, 4', 's_lshr_b32 s31, s89, 5'], ['s_add_u32 s31, s31, s89', 's_mov_b32 s86, s88'], ['s_nop 1'], ['s_nop 0']]
                for sh, fl in zip((1, 2, 4, 8), fill):
                    A(f'v_add_u32_dpp v29, v29, v29 row_ror:{sh} row_mask:0xf bank_mask:0xf')
                    for x in fl: A(x)
                A('v_readfirstlane_b32 s88, v29')
                A('s_nop 0')
                A('s_sub_i32 s47, s47, s88')
                A('s_cmp_lg_u32 s86, 0')
                A('s_cbranch_scc1 L_step')
                A(f's_mul_i32 s55, s47, {kp0}')
                A(f's_add_i32 s55, s55, {WB}')
                A('s_branch L_disp')
                A.label('L_step')
                A('s_add_i32 s84, s84, s47')
                A('s_sub_u32 s49, s88, s86')
                A('s_cmp_eq_u32 s89, 0')
                A('s_cselect_b32 s89, s49, s89')
                A('s_cselect_b32 s31, s49, s31')
                A('s_min_u32 s49, s49, s31')
                A('s_sub_i32 s49, s49, s89'); A(f's_ashr_i32 s49, s49, {ema}'); A('s_add_i32 s89, s89, s49')
                A(f's_mul_i32 s53, s89, {(4096 + CP//2)//CP}'); A('s_lshr_b32 s53, s53, 12')
                if bias: A(f's_sub_u32 s53, s53, {bias}')
                A('s_mul_i32 s52, s53, s92'); A('s_add_u32 s52, s52, s88'); A('s_add_u32 s52, s52, s91')
                A(f's_max_i32 s84, s84, {-(iclamp*8192)//max(ki,1)}'); A(f's_min_i32 s84, s84, {(iclamp*8192)//max(ki,1)}')
                A(f's_mul_i32 s55, s84, {ki}')
                A(f's_add_i32 s55, s55, {WB}')
                A(f's_mov_b32 s54, {kp}')
                A('s_branch L_disp')
    A.label('L_drain')
    A('s_waitcnt vmcnt(16)'); A('s_barrier')
    A('s_waitcnt vmcnt(0) lgkmcnt(0)')
    if diag and not stamps: A('s_memrealtime s[82:83]')
    stamp(1)
    A('s_barrier')
    A('s_branch L_recv')

    A.label('L_worker')
    A('s_and_b32 s43, s40, 3')
    A('v_and_b32 v8, 31, v0')
    A('v_lshrrev_b32 v9, 5, v0')
    A('s_cmp_ge_u32 s3, 4')
    A('s_cbranch_scc1 L_pv')
    KBASE, KSA, L8, L16, M0_, M1_, L0_, L1_ = 0, 1, 2, 3, 4, 5, 6, 7
    P = 8; KADDR = 8; KFRAG = 16; KST = (32, 56); S = 96
    A('s_sub_u32 s39, s3, 1')
    A(f'v_lshlrev_b32 v{L8}, 3, v0')
    A(f'v_lshlrev_b32 v{L16}, 4, v0')
    A('v_lshlrev_b32 v14, 6, v0')
    A('v_and_b32 v12, 15, v8')
    A('v_xor_b32 v11, v12, v9')
    A('v_lshlrev_b32 v11, 4, v11')
    A('v_lshl_or_b32 v11, v8, 8, v11')
    A(f'v_add_u32 v11, {QST}, v11')
    A('v_lshlrev_b32 v13, 1, v9')
    A('v_xor_b32 v12, v12, v13')
    A('v_lshlrev_b32 v12, 4, v12')
    A(f'v_lshlrev_b32 v{KSA}, 6, v9')
    A(f'v_add_u32 v{KSA}, {KS_T}, v{KSA}')
    A('s_lshl_b32 s47, s39, 9'); A(f's_add_u32 s48, s47, {MP}')
    A(f'v_add_u32 v85, s48, v{L8}')
    A('s_sub_u32 s48, s48, 512'); A('s_cmp_eq_u32 s39, 0'); A(f's_cselect_b32 s48, {MP+1024}, s48')
    A(f'v_add_u32 v84, s48, v{L8}')
    A('s_lshl_b32 s47, s39, 10'); A(f's_add_u32 s48, s47, {MLB}'); A(f'v_add_u32 v88, s48, v{L8}')
    A('v_lshlrev_b32 v89, 2, v0')
    A(f'v_mov_b32 v{M0_}, 0xff800000'); A(f'v_mov_b32 v{M1_}, 0xff800000')
    A(f'v_mov_b32 v{L0_}, 0'); A(f'v_mov_b32 v{L1_}, 0')
    A('s_waitcnt lgkmcnt(0)')
    A(f'ds_write_b64 v85, v[{M0_}:{M1_}]')
    A(f'v_lshl_or_b32 v{KBASE}, v8, 9, v12')
    A(f's_mov_b32 s52, {hex(f2u(CSCALE))}')
    A('s_mov_b32 s53, 0x4b800000')
    A('s_mov_b32 s54, 0xffff0000')
    A('s_mov_b32 s50, s39')
    A('s_waitcnt lgkmcnt(0)')
    A('s_barrier')
    A.label('L_tab')
    A('s_lshr_b32 s47, s50, 2'); A('s_lshl_b32 s47, s47, 12')
    A('s_lshl_b32 s48, s50, 10')
    A('s_add_u32 s47, s47, s48')
    A(f's_add_u32 s47, s47, {STG}')
    A(f'v_add_u32 v15, s47, v{L16}')
    A('s_lshl_b32 s48, s50, 12')
    A(f's_add_u32 s48, s48, {KS_T}')
    A('ds_read_b128 v[64:67], v15')
    A('ds_read_b128 v[68:71], v15 offset:4096')
    A('v_add_u32 v13, s48, v14')
    A('s_waitcnt lgkmcnt(0)')
    sc, zr, t = 64, 68, 16
    for e in range(8):
        q, i = e >> 2, e & 3
        ds, dc = t + q*8 + i, t + q*8 + 4 + i
        if e & 1:
            A(f'v_and_b32 v{ds}, s54, v{sc + (e>>1)}'); A(f'v_and_b32 v{dc}, s54, v{zr + (e>>1)}')
        else:
            A(f'v_lshlrev_b32 v{ds}, 16, v{sc + (e>>1)}'); A(f'v_lshlrev_b32 v{dc}, 16, v{zr + (e>>1)}')
        A(f'v_mul_f32_e64 v{dc}, -v{dc}, v{ds}')
        A(f'v_mul_f32 v{ds}, s53, v{ds}')
    for k in range(4):
        A(f'ds_write_b128 v13, v[{t+4*k}:{t+4*k+3}] offset:{k*16}')
    A('s_add_u32 s50, s50, 3')
    A('s_cmp_lt_u32 s50, 8')
    A('s_cbranch_scc1 L_tab')
    for s in range(1, 8):
        A(f'v_xor_b32 v{32+s}, {2*s*16}, v11')
    A('s_waitcnt lgkmcnt(0)')
    A('s_barrier')
    for qb in range(2):
        for s in range(8):
            a = (qb*8 + s)*4
            if qb == 1 and s == 7: A('s_waitcnt lgkmcnt(8)')
            A(f'ds_read_b128 a[{a}:{a+3}], v{32+s if s else 11} offset:{qb*8192}')
    A('s_mov_b32 s50, s39')
    A('s_mov_b32 s45, 0')
    def advance(tgt, lab):
        A.label(lab)
        A(f's_cmp_ge_u32 s45, {tgt}')
        A(f's_cbranch_scc1 {lab}_d')
        A('s_barrier')
        A('s_add_u32 s45, s45, 1')
        A(f's_branch {lab}')
        A.label(lab + '_d')

    A.label('L_tile')
    A(f's_mul_i32 s47, s50, {MG}'); A('s_lshr_b32 s47, s47, 10'); A(f's_mul_i32 s47, s47, {R}')
    A('s_add_u32 s44, s50, s47')
    A('s_sub_u32 s47, s50, s47'); A(f's_mul_i32 s47, s47, {PSTR}'); A(f's_add_u32 s46, s47, {PB}')
    A('s_add_u32 s49, s50, s38')
    A('s_and_b32 s49, s49, 63')
    A('s_lshr_b32 s51, s49, 2')
    A('s_lshl_b32 s51, s51, 10')
    A('s_and_b32 s47, s44, 3'); A('s_lshl_b32 s47, s47, 14')
    KSCUR = 24
    A('s_waitcnt lgkmcnt(0)')
    A(f'v_add_u32 v{KSCUR}, s51, v{KSA}')
    A(f'v_add_u32 v{KADDR}, s47, v{KBASE}')
    for x in range(1, 8):
        s3_, e = x >> 1, x & 1
        A(f'v_xor_b32 v{KADDR+x}, {(4*s3_+e)*16}, v{KADDR}')
    A(f'v_add_u32 v87, s46, v{L16}')
    A('v_add_u32 v86, s46, v89')
    def kscale_reads(s):
        b = KST[s & 1]
        for k in range(4):
            A(f'ds_read_b128 v[{b+8+4*k}:{b+8+4*k+3}], v{KSCUR} offset:{s*128 + k*16}')
    def kraw_reads(s):
        b = KST[s & 1]
        for e in range(2):
            A(f'ds_read_b128 v[{b+4*e}:{b+4*e+3}], v{KADDR + (s&3)*2 + e} offset:{(s>>2)*256}')
    kscale_reads(0)
    advance('s44', 'L_qadv')
    A('s_add_u32 s45, s45, 3')
    A('s_barrier')
    kraw_reads(0)
    for s in range(8):
        if s + 1 < 8:
            kraw_reads(s+1); kscale_reads(s+1)
            A('s_waitcnt lgkmcnt(6)')
        else:
            A('s_waitcnt lgkmcnt(0)')
        b = KST[s & 1]; f = KFRAG + (s & 1)*4
        for e in range(2):
            for i in range(4):
                A(f'v_fma_mix_f32 v{b+4*e+i}, v{b+4*e+i}, v{b+8+8*e+i}, v{b+8+8*e+4+i} op_sel_hi:[1,0,0]')
        for k in range(4):
            A(f'v_cvt_pk_bf16_f32 v{f+k}, v{b+2*k}, v{b+2*k+1}')
        A('s_nop 1')
        for qb in range(2):
            a = (qb*8 + s)*4
            c = '0' if s == 0 else vr(S + qb*16, 16)
            A(f'v_mfma_f32_32x32x16_bf16 {vr(S+qb*16,16)}, {vr(f,4)}, {ar(a,4)}, {c}')
    A('s_barrier')
    A('ds_read_b64 v[82:83], v84')
    A('s_nop 10')
    T = [24, 25]; T2 = [26, 27]; AL = [28, 29]; Mx = [M0_, M1_]; Lx = [L0_, L1_]
    for qb in range(2):
        A(f'v_max3_f32 v{T[qb]}, v{S+qb*16}, v{S+qb*16+1}, v{S+qb*16+2}')
    for i in range(3, 15, 2):
        for qb in range(2):
            A(f'v_max3_f32 v{T[qb]}, v{T[qb]}, v{S+qb*16+i}, v{S+qb*16+i+1}')
    for qb in range(2): A(f'v_max_f32 v{T[qb]}, v{T[qb]}, v{S+qb*16+15}')
    for qb in range(2): A(f'v_mov_b32 v{T2[qb]}, v{T[qb]}')
    A('s_nop 1')
    for qb in range(2): A(f'v_permlane32_swap_b32 v{T[qb]}, v{T2[qb]}')
    for qb in range(2): A(f'v_max_f32 v{T[qb]}, v{T[qb]}, v{T2[qb]}')
    for qb in range(2): A(f'v_mul_f32 v{T[qb]}, s52, v{T[qb]}')
    A('s_waitcnt lgkmcnt(0)')
    for qb in range(2): A(f'v_max3_f32 v{T[qb]}, v{T[qb]}, v{Mx[qb]}, v{82+qb}')
    for qb in range(2): A(f'v_sub_f32 v{82+qb}, v{82+qb}, v{T[qb]}')
    for qb in range(2): A(f'v_sub_f32 v{AL[qb]}, v{Mx[qb]}, v{T[qb]}')
    for qb in range(2): A(f'v_exp_f32 v{82+qb}, v{82+qb}')
    for qb in range(2): A(f'v_exp_f32 v{AL[qb]}, v{AL[qb]}')
    for qb in range(2): A(f'v_mov_b32 v{Mx[qb]}, v{T[qb]}')
    A(f'ds_write_b64 v85, v[{M0_}:{M1_}]')
    A('ds_write2st64_b32 v86, v82, v83 offset0:16 offset1:17')
    for qb in range(2): A(f'v_mul_f32 v{Lx[qb]}, v{Lx[qb]}, v{AL[qb]}')
    for qb in range(2):
        for i in range(16): A(f'v_fma_f32 v{S+qb*16+i}, v{S+qb*16+i}, s52, -v{Mx[qb]}')
        for i in range(16): A(f'v_exp_f32 v{S+qb*16+i}, v{S+qb*16+i}')
        if qb == 0:
            A('s_waitcnt lgkmcnt(0)')
            A('s_barrier')
        else: A('s_nop 0')
        for k in range(8):
            A(f'v_cvt_pk_bf16_f32 v{P+qb*8+k}, v{S+qb*16+2*k}, v{S+qb*16+2*k+1}')
        for u in range(2):
            A(f'ds_write_b128 v87, {vr(P+qb*8+4*u,4)} offset:{(qb*2+u)*1024}')
    for qb in range(2):
        for i in range(0, 8, 2):
            A(f'v_pk_add_f32 {vr(S+qb*16+i,2)}, {vr(S+qb*16+i,2)}, {vr(S+qb*16+8+i,2)}')
        for i in range(0, 4, 2):
            A(f'v_pk_add_f32 {vr(S+qb*16+i,2)}, {vr(S+qb*16+i,2)}, {vr(S+qb*16+4+i,2)}')
        A(f'v_pk_add_f32 {vr(S+qb*16,2)}, {vr(S+qb*16,2)}, {vr(S+qb*16+2,2)}')
        A(f'v_add_f32 v{Lx[qb]}, v{Lx[qb]}, v{S+qb*16}')
        A(f'v_add_f32 v{Lx[qb]}, v{Lx[qb]}, v{S+qb*16+1}')
    for qb in range(2): A(f'v_mov_b32 v{24+qb}, v{Lx[qb]}')
    for qb in range(2): A(f'v_mov_b32 v{26+qb}, v{Lx[qb]}')
    for qb in range(2): A(f'v_mov_b32 v{28+2*qb}, v{Mx[qb]}')
    for qb in range(2): A(f'v_permlane32_swap_b32 v{24+qb}, v{26+qb}')
    for qb in range(2): A(f'v_add_f32 v{29+2*qb}, v{24+qb}, v{26+qb}')
    A('ds_write2st64_b64 v88, v[28:29], v[30:31] offset0:0 offset1:1')
    A('s_add_u32 s50, s50, 3')
    A('s_cmp_lt_u32 s50, 64')
    A('s_cbranch_scc1 L_tile')
    A('s_waitcnt lgkmcnt(0)')
    if pretouch:
        advance(pretouch, 'L_qend0')
        A('s_cmp_lg_u32 s39, 0')
        A('s_cbranch_scc1 L_qend')
        A(f's_lshl_b32 s42, s40, {FS}'); A(f's_add_u32 s42, s42, {WS_FLAGS}')
        A(f'v_lshl_add_u32 v8, v{L16}, 3, s42')
        A(f's_mov_b64 exec, {0xf0 if dual and lazy else 0xff if dual else 15}')
        A('global_load_dword v9, v8, s[22:23] sc1')
        A('s_mov_b64 exec, -1')
    advance(128, 'L_qend')
    A('s_branch L_recv')

    A.label('L_pv')
    VA, VSA, PA, ALA, VAC, ALF = 1, 2, 3, 4, 5, 6
    PF = 8; FR = 16; RAW = 32; VSC = 64; ACC = 96
    A('s_and_b32 s39, s3, 3')
    A('s_xor_b32 s55, s39, s43')
    A('s_lshr_b32 s56, s55, 1')
    A('s_and_b32 s57, s55, 1')
    A(f'v_lshlrev_b32 v{VA}, 3, v8')
    A(f'v_lshl_or_b32 v{VA}, v9, 11, v{VA}')
    A('s_lshl_b32 s47, s57, 8')
    A(f'v_add_u32 v{VA}, s47, v{VA}')
    A(f'v_lshlrev_b32 v{VSA}, 5, v9')
    A(f'v_add_u32 v{VSA}, {VS_T}, v{VSA}')
    A('s_lshl_b32 s47, s56, 11'); A(f's_add_u32 s47, s47, {PB}'); A(f'v_lshl_add_u32 v{PA}, v0, 4, s47')
    A('s_lshl_b32 s47, s56, 8'); A(f's_add_u32 s47, s47, {PB+4096}'); A(f'v_lshl_add_u32 v{ALA}, v0, 2, s47')
    for i in range(32): A(f'v_mov_b32 v{ACC+i}, 0')
    A('s_lshl_b32 s47, s56, 9'); A(f's_add_u32 s47, s47, {MLB}'); A('v_lshl_add_u32 v10, v0, 3, s47')
    A('v_accvgpr_write_b32 a0, v10')
    A('s_lshl_b32 s44, s41, 2'); A('s_or_b32 s44, s44, s55')
    A('s_mul_i32 s42, s44, 3'); A('s_add_u32 s42, s42, s39'); A('s_max_u32 s42, s42, 1'); A('s_sub_u32 s42, s42, 1'); A(f's_mul_i32 s42, s42, {MSG}')
    A(f's_lshl_b32 s44, s44, {FS}'); A('s_lshl_b32 s47, s43, 7'); A('s_add_u32 s44, s44, s47'); A(f's_add_u32 s44, s44, {WS_FLAGS}')
    A('s_waitcnt lgkmcnt(0)')
    srd(A, 24, 22, 's42', 4608)
    A('s_mov_b32 s50, 0')
    A('s_mov_b32 s45, 0')
    A('s_lshl_b32 s58, s2, 2'); A('s_or_b32 s58, s58, s39')
    if diag:
        A('s_cmp_lg_u32 s58, 1')
        A('s_cbranch_scc1 L_noDiag')
        A('v_mov_b32 v26, s76')
        A(f'v_lshlrev_b32 v27, 2, v0'); A(f'v_add_u32 v27, 0x2000000, v27')
        A('global_store_dword v27, v26, s[22:23] sc1')
        A.label('L_noDiag')
    A('s_cmp_lg_u32 s58, 0')
    A('s_cbranch_scc1 L_noTag')
    A('s_memrealtime s[48:49]')
    A('v_lshlrev_b32 v15, 3, v0')
    A('s_waitcnt lgkmcnt(0)')
    A('s_lshl_b64 s[48:49], s[48:49], 1')
    A('s_bitset1_b32 s48, 0'); A('s_bitset1_b32 s49, 31')
    A('v_mov_b32 v16, s48'); A('v_mov_b32 v17, s49')
    A('s_mov_b64 exec, 0xffff')
    A('global_store_dwordx2 v15, v[16:17], s[20:21] sc1')
    A('s_mov_b64 exec, -1')
    A.label('L_noTag')
    if cwarm:
        A('s_cmp_lg_u32 s39, 1')
        A('s_cbranch_scc1 L_noWarm')
        A('s_getpc_b64 s[48:49]')
        A.label('L_pcref')
        A('s_sub_u32 s48, s48, L_pcref-L_disp'); A('s_subb_u32 s49, s49, 0')
        A('v_lshlrev_b32 v15, 7, v0')
        A('v_min_u32 v15, L_worker-L_disp, v15')
        A('global_load_dword v16, v15, s[48:49]')
        A.label('L_noWarm')
    A('s_barrier'); A('s_barrier')
    A.label('L_pvrun')
    A(f's_cmp_ge_u32 s50, {R*(NRUN-1)}')
    A(f's_cselect_b32 s47, {LAST}, {R}')
    A('s_add_u32 s51, s50, s47')
    A('s_add_u32 s48, s50, s51')
    A('s_mov_b32 s46, 0')
    if rst is not None:
        A(f's_cmp_lg_u32 s50, {rst*R}')
        A('s_cbranch_scc1 L_noRst')
        A('s_cmp_eq_u32 s39, 0')
        A('s_cbranch_scc1 L_noRst')
        for i in range(4): A(f'v_mov_b32 v{16+i}, -1')
        A('v_lshlrev_b32 v20, 4, v0')
        A('s_movk_i32 s47, 0x1000')
        for a in range(4):
            A(f'buffer_store_dwordx4 v[16:19], v20, s[24:27], 0 offen offset:{a*1024} sc1')
            if 'spread' in exp: A('s_barrier'); A('s_barrier')
        A(f'buffer_store_dwordx4 v[16:19], v20, s[24:27], s47 offen sc1')
        if 'spread' in exp: A('s_add_u32 s45, s45, 8')
        A.label('L_noRst')
    A('s_cmp_lg_u32 s51, 64')
    A('s_cbranch_scc1 L_pvwait')
    A('s_cmp_lg_u32 s39, 0')
    A('s_cbranch_scc1 L_pvwait')
    A('v_mov_b32 v16, 0')
    A('global_load_dwordx2 v[18:19], v16, s[20:21] sc1')
    A('s_barrier'); A('s_barrier'); A('s_barrier')
    A('s_add_u32 s45, s45, 3')
    A('s_mov_b32 s49, 0x100000')
    A.label('L_annWait')
    A('s_waitcnt vmcnt(0)')
    A('v_min_u32 v17, v18, v19')
    A('s_sub_u32 s49, s49, 1')
    A('s_cbranch_scc1 L_annDone')
    A('v_readfirstlane_b32 s47, v17')
    A('s_nop 1')
    A('s_cmp_lg_u32 s47, 0')
    A('s_cbranch_scc1 L_annDone')
    A('global_load_dwordx2 v[18:19], v16, s[20:21] sc1')
    A('s_branch L_annWait')
    A.label('L_annDone')
    A(f'v_mov_b32 v16, {NONCE}')
    A('v_mov_b32 v17, 0')
    A('ds_write_b64 v16, v[18:19]')
    A('ds_write_b32 v16, v17 offset:8')
    A('s_waitcnt lgkmcnt(0)')
    advance('s48', 'L_pvwait')
    A('s_branch L_pvpre')
    A.label('L_pvtile')
    stamp(3, stamps == 6, True)
    A('s_barrier')
    stamp(1, stamps == 6, True)
    def rawrd(i):
        a, b = i >> 1, 2*(i & 1)
        if rdb64:
            for x in range(2): A(f'ds_read_b64 {vr(RAW+4*i+2*x,2)}, v{VAC} offset:{(8*a+b+x)*512}')
        else: A(f'ds_read2st64_b64 {vr(RAW+4*i,4)}, v{VAC} offset0:{8*a+b} offset1:{8*a+b+1}')
    for i in range(7 if rdb64 else 8): rawrd(i)
    for i in range(8):
        a, b, u = i >> 1, 2*(i & 1), i >> 2
        if rdb64:
            if i == 0: A('s_waitcnt lgkmcnt(12)'); rawrd(7)
            else: A(f's_waitcnt lgkmcnt({14-2*i})')
        else: A(f's_waitcnt lgkmcnt({7-i})')
        for x in range(4):
            r = RAW + 4*i + x
            A(f'v_fma_mix_f32 v{r}, v{r}, v{VSC+a*8+b+(x>>1)}, v{VSC+a*8+4+b+(x>>1)} op_sel_hi:[1,0,0]')
        if i in (4, 5):
            j = i - 4
            A(f'v_mfma_f32_32x32x16_bf16 {vr(ACC+16*j,16)}, {vr(FR+4*j,4)}, {vr(PF,4)}, {vr(ACC+16*j,16)}')
        for j in range(2):
            A(f'v_cvt_pk_bf16_f32 v{FR+8*u+4*j+(i&3)}, v{RAW+4*i+j}, v{RAW+4*i+2+j}')
    A('s_add_u32 s50, s50, 1')
    A('s_nop 0')
    for j in range(2):
        A(f'v_mfma_f32_32x32x16_bf16 {vr(ACC+16*j,16)}, {vr(FR+8+4*j,4)}, {vr(PF+4,4)}, {vr(ACC+16*j,16)}')
    A('s_cmp_eq_u32 s50, 64')
    A('s_cbranch_scc1 L_pvdone')
    A('s_cmp_eq_u32 s50, s51')
    A('s_cbranch_scc1 L_pvrun')
    A(f's_add_u32 s46, s46, {PSTR}')
    A.label('L_pvpre')
    A(f'v_add_u32 v7, s46, v{ALA}')
    A(f'ds_read_b32 v{ALF}, v7')
    A(f'v_add_u32 v7, s46, v{PA}')
    A(f'ds_read_b128 {vr(PF,4)}, v7')
    A(f'ds_read_b128 {vr(PF+4,4)}, v7 offset:1024')
    A('s_add_u32 s49, s50, s38')
    A('s_and_b32 s49, s49, 63')
    A('s_lshl_b32 s49, s49, 8')
    A(f'v_add_u32 v7, s49, v{VSA}')
    for a in range(4):
        for k in range(2):
            A(f'ds_read_b128 {vr(VSC+a*8+4*k,4)}, v7 offset:{a*64 + k*16}')
    A('s_and_b32 s47, s45, 3'); A('s_lshl_b32 s47, s47, 14')
    A(f'v_add_u32 v{VAC}, s47, v{VA}')
    A('s_add_u32 s45, s45, 1')
    A('s_waitcnt lgkmcnt(10)')
    for i in range(0, 32, 2):
        A(f'v_pk_mul_f32 {vr(ACC+i,2)}, {vr(ACC+i,2)}, {vr(ALF,2)} op_sel_hi:[1,0]')
    A('s_waitcnt lgkmcnt(0)')
    A('s_branch L_pvtile')

    A.label('L_pvdone')
    stamp(4, stamps == 6)
    A('v_accvgpr_read_b32 v10, a0')
    A('v_lshlrev_b32 v2, 4, v0')
    A('v_lshlrev_b32 v3, 3, v0')
    for c in range(3): A(f'ds_read_b64 {vr(32+2*c,2)}, v10 offset:{c*1024}')
    A(f'v_mov_b32 v5, {NONCE}')
    A('ds_read_b64 v[6:7], v5')
    A('v_lshl_add_u32 v4, v0, 3, s44')
    A('s_cmp_eq_u32 s39, 0')
    A('s_cbranch_scc1 L_own')
    def stats():
        A('s_waitcnt lgkmcnt(0)')
        for c in range(1, 3): A(f'v_sub_f32 v{32+2*c}, v{32+2*c}, v32')
        for c in range(1, 3): A(f'v_exp_f32 v{32+2*c}, v{32+2*c}')
        A('s_nop 0')
        for c in range(1, 3): A(f'v_fmac_f32 v33, v{33+2*c}, v{32+2*c}')
    A('s_nop 1')
    for a in range(4):
        for b in range(4):
            A(f'v_cvt_pk_bf16_f32 v{40+4*a+b}, v{ACC+4*a+b}, v{ACC+16+4*a+b}')
        A(f'buffer_store_dwordx4 {vr(40+4*a,4)}, v2, s[24:27], 0 offen offset:{a*1024} {xflags}')
    stats()
    A('s_movk_i32 s47, 0x1000')
    A(f'buffer_store_dwordx2 v[32:33], v3, s[24:27], s47 offen {xflags}')
    stamp(5, stamps == 6)
    A('s_barrier')
    A('s_waitcnt vmcnt(0)')
    stamp(6, stamps == 6)
    A('s_mov_b64 exec, 0xffff')
    if dual: A(f'global_store_dwordx2 v4, v[6:7], s[22:23] offset:512')
    A(f'global_store_dwordx2 v4, v[6:7], s[22:23] {xflags}')
    A('s_mov_b64 exec, -1')
    A('s_branch L_fin')
    A.label('L_own')
    A(f'v_add_u32 v3, {OWNS}, v3')
    stats()
    A('ds_write_b64 v3, v[32:33]')
    for i in range(8): A(f'ds_write_b128 v2, {vr(ACC+4*i,4)} offset:{i*1024}')
    A('s_waitcnt lgkmcnt(0)')
    A('s_barrier')
    if dual:
        A(f's_lshl_b32 s42, s40, {FS}'); A(f's_add_u32 s42, s42, {WS_FLAGS}')
        A('v_mov_b32 v28, v6'); A('v_mov_b32 v29, v7')
        A('v_lshl_add_u32 v7, v0, 7, s42')
        A(f'v_mov_b32 v26, {NONCE}')
        A('s_lshl_b32 s48, 1, s43'); A('s_xor_b32 s48, s48, 15')
        if lazy:
            A(f's_mov_b32 s49, {lazy}')
            A.label('L_lazy')
            A('ds_read_b32 v27, v26 offset:8')
            A('s_waitcnt lgkmcnt(0)')
            A('v_readfirstlane_b32 s47, v27')
            A('s_sub_u32 s49, s49, 1')
            A('s_cbranch_scc1 L_lazyd')
            A('s_cmp_eq_u32 s47, 0')
            A('s_cbranch_scc1 L_lazy')
            A('s_branch L_fin')
            A.label('L_lazyd')
        A('s_mov_b32 s49, 0x100000')
        A('s_mov_b32 exec_lo, s48'); A('s_mov_b32 exec_hi, 0')
        A.label('L_poll2')
        A(f'global_load_dwordx2 v[30:31], v7, s[22:23] {pflags}')
        A('ds_read_b32 v27, v26 offset:8')
        A('s_waitcnt vmcnt(0) lgkmcnt(0)')
        A('v_cmp_eq_u64 vcc, v[28:29], v[30:31]')
        A('v_readfirstlane_b32 s47, v27')
        A('s_sub_u32 s49, s49, 1')
        A('s_cbranch_scc1 L_poll2_go')
        A('s_cmp_eq_u32 vcc_lo, s48')
        A('s_cbranch_scc1 L_poll2_go')
        A('s_cmp_eq_u32 s47, 0')
        A('s_cbranch_scc1 L_poll2')
        A.label('L_poll2_go')
        A('ds_write_b32 v26, v26 offset:8')
        A('s_mov_b64 exec, -1')
    A('s_branch L_fin')

    A.label('L_recv')
    A('v_mbcnt_lo_u32_b32 v0, -1, 0')
    A('v_mbcnt_hi_u32_b32 v0, -1, v0')
    A('s_and_b32 s43, s40, 3')
    A(f's_mul_i32 s42, s40, {3*MSG}')
    srd(A, 24, 22, 's42', 3*MSG)
    A('s_lshl_b32 s42, s41, 14')
    A('s_lshr_b32 s56, s43, 1'); A('s_lshl_b32 s56, s56, 13')
    A('s_add_u32 s42, s42, s56')
    srd(A, 32, 18, 's42', 8192)
    A('s_and_b32 s56, s43, 1'); A('s_lshl_b32 s56, s56, 7'); A('s_lshl_b32 s47, s3, 5'); A('s_add_u32 s56, s56, s47')
    A('v_and_b32 v4, 31, v0'); A('v_lshlrev_b32 v4, 8, v4')
    A('v_lshrrev_b32 v3, 5, v0'); A('v_lshl_or_b32 v4, v3, 4, v4')
    A(f's_lshl_b32 s42, s40, {FS}'); A(f's_add_u32 s42, s42, {WS_FLAGS + (512 if dual else 0)}')
    A('v_lshl_add_u32 v7, v0, 7, s42')
    A('v_lshlrev_b32 v5, 3, v0')
    A(f'v_add_u32 v1, {OWNS}, v5')
    A('v_add_u32 v5, 4096, v5')
    A('s_lshl_b32 s47, s3, 10'); A('v_lshl_add_u32 v2, v0, 4, s47')
    for k in range(3):
        A(f's_mov_b32 s{51+k}, {k*MSG}')
    A('s_mov_b32 s54, 0xffff0000')
    A('s_lshl_b32 s48, 1, s43'); A('s_xor_b32 s48, s48, 15')
    A('s_mov_b32 s49, 0x100000')
    A(f'v_mov_b32 v26, {NONCE}')
    A('ds_read_b64 v[28:29], v26')
    A('s_waitcnt lgkmcnt(0)')
    A('s_barrier')
    stamp(3, stamps == 4)
    R = 32; D = 40
    A('ds_read_b64 v[14:15], v1')
    for j in range(2): A(f'ds_read_b128 {vr(R+4*j,4)}, v2 offset:{j*4096}')
    A('s_cmp_eq_u32 s3, 1')
    A('s_cbranch_scc1 L_poller')
    A.label('L_gowait')
    A('ds_read_b32 v27, v26 offset:8')
    A('s_waitcnt lgkmcnt(0)')
    A('v_readfirstlane_b32 s47, v27')
    A('s_nop 0')
    A('s_cmp_eq_u32 s47, 0')
    A('s_cbranch_scc1 L_gowait')
    A('s_branch L_final')
    A.label('L_poller')
    A('s_mov_b32 exec_lo, s48'); A('s_mov_b32 exec_hi, 0')
    A.label('L_poll')
    A(f'global_load_dwordx2 v[30:31], v7, s[22:23] {pflags}')
    A('ds_read_b32 v27, v26 offset:8')
    A('s_waitcnt vmcnt(0) lgkmcnt(0)')
    A('v_cmp_eq_u64 vcc, v[28:29], v[30:31]')
    A('v_readfirstlane_b32 s47, v27')
    A('s_sub_u32 s49, s49, 1')
    A('s_cbranch_scc1 L_poll_go')
    A('s_cmp_eq_u32 vcc_lo, s48')
    A('s_cbranch_scc1 L_poll_go')
    A('s_cmp_eq_u32 s47, 0')
    A('s_cbranch_scc1 L_poll')
    A.label('L_poll_go')
    A('ds_write_b32 v26, v26 offset:8')
    A.label('L_final')
    A('s_mov_b64 exec, -1')
    for k in range(3): A(f'buffer_load_dwordx2 {vr(8+2*k,2)}, v5, s[24:27], s{51+k} offen sc1')
    for k in range(3): A(f'buffer_load_dwordx4 {vr(D+4*k,4)}, v2, s[24:27], s{51+k} offen sc1')
    stamp(4, stamps == 4)
    A('s_waitcnt vmcnt(3) lgkmcnt(0)')
    stamp(5, stamps == 4)
    A('v_max3_f32 v24, v8, v10, v12'); A('v_max_f32 v24, v24, v14')
    A('v_sub_f32 v16, v14, v24')
    for k in range(3): A(f'v_sub_f32 v{18+2*k}, v{8+2*k}, v24')
    for k in range(4): A(f'v_exp_f32 v{16+2*k}, v{16+2*k}')
    A('s_nop 0')
    A('v_mul_f32 v25, v15, v16')
    for k in range(3): A(f'v_fmac_f32 v25, v{9+2*k}, v{18+2*k}')
    A('v_rcp_f32 v26, v25')
    for x in range(4): A(f'v_pk_mul_f32 {vr(R+2*x,2)}, {vr(R+2*x,2)}, v[16:17] op_sel_hi:[1,0]')
    for k in range(3):
        A(f's_waitcnt vmcnt({2-k})')
        for b in range(4):
            A(f'v_lshlrev_b32 v{56+b}, 16, v{D+4*k+b}')
            A(f'v_and_b32 v{60+b}, s54, v{D+4*k+b}')
        for x in range(4):
            A(f'v_pk_fma_f32 {vr(R+2*x,2)}, {vr(56+2*x,2)}, {vr(18+2*k,2)}, {vr(R+2*x,2)} op_sel_hi:[1,0,1]')
    for x in range(4): A(f'v_pk_mul_f32 {vr(R+2*x,2)}, {vr(R+2*x,2)}, v[26:27] op_sel_hi:[1,0]')
    for b in range(4): A(f'v_cvt_pk_bf16_f32 v{52+b}, v{R+b}, v{R+4+b}')
    A(f'buffer_store_dwordx4 v[52:55], v4, s[32:35], s56 offen {oflags}')
    stamp(6, stamps == 4)
    A.label('L_fin')
    if diag:
        A('s_waitcnt vmcnt(0)')
        A('s_memrealtime s[84:85]')
        A('v_mov_b32 v18, 0x2000000')
        A('global_load_dword v17, v18, s[22:23] sc1')
        A('s_waitcnt vmcnt(0) lgkmcnt(0)')
        A('v_readfirstlane_b32 s81, v17')
        A('s_nop 1')
        A('s_mov_b32 s86, 0')
        A(f's_cmp_lg_u32 s3, {stw}')
        A('s_cbranch_scc1 L_dg')
        if diag.startswith('iv'):
            a_, b_ = int(diag[2]), int(diag[3])
            if len(diag) > 4:
                A('s_cmp_lg_u32 s2, 77'); A('s_cbranch_scc1 L_dg')
            ra = 84 if a_ == 9 else 60 + 2*a_
            rb = 84 if b_ == 9 else 60 + 2*b_
            A(f's_sub_u32 s86, s{rb}, s{ra}'); A('s_mul_i32 s86, s86, 20')
        if diag == 'tail': A('s_sub_u32 s86, s84, s82'); A('s_mul_i32 s86, s86, 10')
        if diag == 'send': A('s_sub_u32 s86, s82, s81'); A('s_sub_u32 s86, s86, 6500'); A('s_mul_i32 s86, s86, 10')
        if diag == 'fin': A('s_sub_u32 s86, s84, s81'); A('s_sub_u32 s86, s86, 6500'); A('s_mul_i32 s86, s86, 10')
        if diag == 'sendmin': A('s_sub_u32 s86, s82, s81'); A('s_sub_u32 s86, 9000, s86'); A('s_mul_i32 s86, s86, 10')
        A('s_min_u32 s86, s86, 100000')
        A.label('L_dg')
        A('s_add_u32 s86, s86, 10000')
        A.label('L_spin')
        A('s_memrealtime s[78:79]')
        A('s_waitcnt lgkmcnt(0)')
        A('s_sub_u32 s80, s78, s81')
        A(f's_cmp_lt_u32 s80, s86')
        A('s_cbranch_scc1 L_spin')
    if stamps and not diag:
        A('s_waitcnt vmcnt(0)')
        stamp(2)
        A('s_waitcnt lgkmcnt(0)')
        A(f's_cmp_lg_u32 s3, {stw}')
        A('s_cbranch_scc1 L_end')
        A('s_getreg_b32 s74, hwreg(HW_REG_XCC_ID)')
        A(f's_mov_b32 s75, {7 if stamps in (4, 6) else 6 if stamps == 2 else 4 if stamps == 5 else 3}')
        for i in range(16): A(f'v_mov_b32 v{8+i}, s{60+i}')
        A('v_mbcnt_lo_u32_b32 v0, -1, 0'); A('v_mbcnt_hi_u32_b32 v0, -1, v0')
        A('s_lshl_b32 s42, s2, 6')
        A('s_add_u32 s42, s42, 0x10000000')
        A('v_mov_b32 v1, s42')
        A('s_mov_b64 exec, 1')
        for i in range(4): A(f'global_store_dwordx4 v1, v[{8+4*i}:{11+4*i}], s[22:23] offset:{16*i}')
        if stamps in (3, 7):
            A('s_mov_b64 exec, -1')
            A('s_lshl_b32 s42, s2, 8')
            A('s_add_u32 s42, s42, 0x11000000')
            A('v_lshlrev_b32 v1, 2, v0')
            A('v_add_u32 v1, s42, v1')
            A('global_store_dword v1, v120, s[22:23]')
            A('v_add_u32 v1, 0x10000, v1')
            A('global_store_dword v1, v121, s[22:23]')
    A.label('L_end')
    A('s_endpgm')

    A('.section .rodata,"a"')
    A('.p2align 6')
    A(f'.amdhsa_kernel {main}')
    for l in ['.amdhsa_next_free_vgpr 192', '.amdhsa_next_free_sgpr 96', '.amdhsa_accum_offset 128',
              '.amdhsa_group_segment_fixed_size 0', '.amdhsa_kernarg_size 80', '.amdhsa_user_sgpr_count 2',
              '.amdhsa_user_sgpr_kernarg_segment_ptr 1', '.amdhsa_system_sgpr_workgroup_id_x 1',
              '.amdhsa_float_denorm_mode_32 3', '.amdhsa_float_denorm_mode_16_64 3']:
        A.lines.append('  ' + l)
    A('.end_amdhsa_kernel')
    return A.text()

if __name__ == '__main__':
    kw = eval('dict(' + (sys.argv[2] if len(sys.argv) > 2 else '') + ')')
    t = gen(**kw)
    errs = check_hazards(t)
    for e in errs: print('HAZARD', e)
    out = sys.argv[1] if len(sys.argv) > 1 and sys.argv[1] != '-' else f'cdna_kernels/{NAME}.s'
    open(out, 'w').write(t)
    import subprocess
    r = subprocess.run(['clang', '-x', 'assembler', '-target', 'amdgcn-amd-amdhsa', '-mcpu=gfx950', '-c', out, '-o', 'chk.o'], capture_output=True, text=True)
    print('wrote', out, len(t), 'bytes', 'hazards', len(errs), 'asm rc', r.returncode, r.stderr[:1500])
```

```python
import sys, math, struct
sys.path.insert(0, 'gen')
from asmlib import *

NAME = 'standalone__kv_cache_quant_int4_int2_kv_with_per_channel_or_per_token_scales__sampling'
HEADER = open(f'cdna_kernels/{NAME}.s.ref').read().split('; Override launch geometry')[0]

SLOT = 16384
RING = 4*SLOT
KS_T = RING
VS_T = RING + 16384
MP = RING + 32768
MLB = MP + 1536
OWNS = MLB + 3072
NONCE = OWNS + 512
PB = NONCE + 16
PSTR = 4608
STG = 2*SLOT
QST = 3*SLOT
WS_FLAGS = 0x900000
WS_CTR = 0xa00000

CSCALE = (128.0 ** -0.5) * math.log2(math.e)
def f2u(x): return struct.unpack('<I', struct.pack('<f', x))[0]

def srd(A, d, base_lo, off_lo, nbytes):
    A(f's_add_u32 s{d}, s{base_lo}, {off_lo}')
    A(f's_addc_u32 s{d+1}, s{base_lo+1}, 0')
    A(f's_and_b32 s{d+1}, s{d+1}, 0xffff')
    A(f's_mov_b32 s{d+2}, {nbytes}')
    A(f's_mov_b32 s{d+3}, 0x20000')

def gen(W=19, flags='nt', stamps=0, wgmap=2, qflags='', sflags='nt', oflags='', diag='', ctl=1, Wmin=14, Wmax=31,
        kp=96, ki=3, pflags='sc1', greedy=0, Wst=28, G=1, rot=(1,3,1), phi=(1,4), warm='', warmat=52, xflags='sc1', prio=3, stw=0, Wend=None, Gst=4, touch=0, R=13, CP=6, exp='', MSG=4608, rst=None, dual=1, iclamp=3, onepoll=1, burst=0, Wb=31, nl=0, rdb64=1, pretouch=124, lazy=40, clip=40, bias=0, ema=2, Wf=3, kp0=24, kneg=3, stag=3, cwarm=1, ewarm=0, twarm=0):
    FS = 10 if dual else 9
    WB = W*8192 + 4096 + Wf*1024
    LDS_BYTES = PB + R*PSTR
    assert LDS_BYTES <= 163840
    NRUN = (64 + R - 1)//R; LAST = 64 - R*(NRUN-1)
    MG = next(m for m in range(1, 4096) if all((n*m) >> 10 == n//R for n in range(67)))
    if Wend is None: Wend = W
    if not ctl: Wmin = Wmax = W
    A = Asm()
    A.lines += HEADER.rstrip('\n').split('\n')
    main = NAME + '_kernel'
    A(f'; @launch grid=(256,1,1) block=(512,1,1) lds={LDS_BYTES}')
    A('.amdgcn_target "amdgcn-amd-amdhsa--gfx950"')
    A('.text')
    A(f'.globl {main}')
    A('.p2align 8')
    A(f'.type {main},@function')
    A(f'{main}:')
    def stamp(i, cond=True, wait=False):
        if stamps and cond:
            A(f's_memrealtime s[{60+2*i}:{61+2*i}]')
            if wait: A('s_waitcnt lgkmcnt(0)')
    A('s_cmp_ge_u32 s2, 256')
    A('s_cbranch_scc1 L_end')
    stamp(0)
    if diag: A('s_memrealtime s[76:77]')
    A('s_load_dwordx16 s[4:19], s[0:1], 0')
    A('s_load_dwordx4 s[20:23], s[0:1], 64')
    A('v_lshrrev_b32 v1, 6, v0')
    A('v_and_b32 v0, 63, v0')
    A('v_readfirstlane_b32 s3, v1')
    if ewarm:
        A('v_lshlrev_b32 v2, 7, v0')
        A(f's_lshr_b32 s47, s2, {ewarm}'); A('s_lshl_b32 s47, s47, 3'); A('s_or_b32 s47, s47, s3')
        A('s_cmp_lg_u32 s47, 7')
        A('s_cbranch_scc1 L_noEW')
        A('s_getpc_b64 s[48:49]')
        A.label('L_ewref')
        A('v_add_u32 v3, 8192, v2')
        A('v_min_u32 v3, L_end-L_ewref, v3')
        A('global_load_dword v4, v2, s[48:49]')
        A('global_load_dword v5, v3, s[48:49]')
        A('s_waitcnt vmcnt(0)')
        A.label('L_noEW')
    if wgmap == 0:
        A('s_mov_b32 s40, s2')
    elif wgmap == 1:
        A('s_and_b32 s40, s2, 7'); A('s_lshl_b32 s40, s40, 2')
        A('s_lshr_b32 s41, s2, 3'); A('s_and_b32 s41, s41, 3'); A('s_or_b32 s40, s40, s41')
        A('s_and_b32 s41, s2, 0xe0'); A('s_or_b32 s40, s40, s41')
    elif wgmap == 2:
        A('s_and_b32 s40, s2, 7'); A('s_lshl_b32 s40, s40, 5')
        A('s_lshr_b32 s41, s2, 3'); A('s_or_b32 s40, s40, s41')
    A('s_lshr_b32 s41, s40, 2')
    if rot:
        if rot[0] != 1: A(f's_mul_i32 s38, s2, {rot[0]}'); A(f's_lshr_b32 s38, s38, {rot[1]}')
        else: A(f's_lshr_b32 s38, s2, {rot[1]}')
        A(f's_and_b32 s38, s38, {rot[2]}')
    else: A('s_mov_b32 s38, 0')
    A('s_cmp_lg_u32 s3, 0')
    A('s_cbranch_scc1 L_worker')

    if prio: A(f's_setprio {prio}')
    if ctl: A('s_memrealtime s[78:79]')
    A('v_lshlrev_b32 v16, 4, v0')
    A('s_lshl_b32 s42, s40, 12')
    A('v_add_u32 v17, s42, v16')
    A(f's_mov_b32 m0, {STG}')
    A('v_lshrrev_b32 v1, 4, v0')
    A('v_and_b32 v2, 15, v0')
    A('v_xor_b32 v2, v2, v1')
    A('v_lshlrev_b32 v2, 4, v2')
    A('v_lshl_or_b32 v2, v1, 8, v2')
    A('s_lshl_b32 s43, s41, 14')
    A('v_add_u32 v20, s43, v2')
    for jj in range(1, 4):
        A(f'v_xor_b32 v{20+jj}, {4*jj*16}, v20')
    if touch:
        A('s_lshl_b32 s42, s40, 20'); A('s_lshl_b32 s44, s38, 14'); A('s_add_u32 s42, s42, s44'); A('v_mov_b32 v26, s42')
    A('s_waitcnt lgkmcnt(0)')
    if touch:
        A('s_mov_b64 exec, 1')
        A(f'global_load_dword v24, v26, s[6:7]')
        A(f'global_load_dword v25, v26, s[8:9]')
        A('s_mov_b64 exec, -1')
    for g in range(4):
        if g: A(f's_mov_b32 m0, {STG + g*4096}')
        if g*4 > Wst: A(f's_waitcnt vmcnt({Wst})')
        if g: A('s_nop 0')
        for i in range(4):
            A(f'global_load_lds_dwordx4 v17, s[{10+2*g}:{11+2*g}] offset:{i*1024} {sflags}')
    for g in range(4):
        A(f's_mov_b32 m0, {QST + g*4096}')
        if 16 + g*4 > Wst: A(f's_waitcnt vmcnt({Wst})')
        A('s_nop 0')
        for i in range(4):
            A(f'global_load_lds_dwordx4 v{20+i}, s[4:5] offset:{i*1024} {qflags}')
        if g < 3:
            A('s_add_u32 s4, s4, 4096'); A('s_addc_u32 s5, s5, 0')
        if g == 0:
            A('v_lshrrev_b32 v1, 5, v0')
            A('v_and_b32 v2, 31, v0')
            A('v_xor_b32 v2, v2, v1')
            A('v_lshlrev_b32 v2, 4, v2')
            A('v_lshl_or_b32 v8, v1, 9, v2')
            if phi:
                A(f's_mul_i32 s37, s2, {phi[0]}'); A(f's_lshr_b32 s37, s37, {phi[1]}'); A(f's_and_b32 s37, s37, 3')
                A('s_and_b32 s36, s37, 1'); A('s_lshl_b32 s36, s36, 7'); A('v_xor_b32 v8, s36, v8')
                A('s_lshl_b32 s32, s37, 12')
                for gg in range(1, 4): A(f's_xor_b32 s{32+gg}, s32, {gg*4096}')
            for j in range(1, 8):
                A(f'v_xor_b32 v{8+j}, {2*j*16}, v8')
            A('s_lshl_b32 s42, s40, 20')
            srd(A, 24, 6, 's42', 1 << 20)
            A('s_add_u32 s28, s8, s42'); A('s_addc_u32 s29, s9, 0'); A('s_and_b32 s29, s29, 0xffff')
            A('s_lshl_b32 s44, s38, 14'); A('s_mov_b32 s45, s44'); A('s_mov_b32 s46, 0')
            for j in range(8): A(f'v_xor_b32 v{32+j}, v{8+j}, v16')
            A(f's_mov_b32 s50, 0')
            A(f's_mov_b32 s51, {R}')
            if ctl:
                A('v_and_b32 v28, 15, v0'); A('v_mul_u32_u24 v28, 0x22100, v28'); A(f'v_add_u32 v28, {WS_CTR}, v28')
                A('s_mov_b32 s84, 0'); A('s_mov_b32 s90, 0'); A('s_mov_b32 s88, 0'); A('s_mov_b32 s89, 0')
                A('s_mov_b32 s52, 0'); A('s_mov_b32 s53, 0'); A('s_mov_b32 s54, 0'); A(f's_mov_b32 s55, {WB}')
                A('s_lshr_b32 s87, s2, 7'); A('s_lshl_b32 s87, s87, 3'); A('s_and_b32 s47, s2, 7'); A('s_or_b32 s87, s87, s47')
                A('s_mul_i32 s47, s87, 0x22100'); A(f's_add_u32 s47, s47, {WS_CTR}'); A('v_lshl_add_u32 v27, v0, 2, s47')
                A('s_lshr_b32 s47, s2, 3'); A('s_and_b32 s87, s47, 15')
                if stag: A('s_lshr_b32 s58, s2, 4'); A(f's_and_b32 s58, s58, {stag}'); A('s_add_u32 s58, s58, 2')
                else: A('s_mov_b32 s58, 2')
                A(f's_sub_u32 s59, {CP}, s58'); A(f's_add_u32 s92, s58, {CP+1}')
                A('s_mov_b32 s57, 4'); A('s_mov_b32 s85, 0')
            A(f's_mov_b32 s56, {4 if ctl else R}')
            A(f's_mov_b32 s93, {W}')
    def slot(w, GG, st=None):
        bi = max(0, (w - 16 + GG - 1) // GG * GG)
        assert bi < 16
        for jj in range(16):
            g, i = jj >> 2, jj & 3
            if i == 0:
                go = f's{32+g}' if phi else g*4096
                A(f's_add_u32 m0, s46, {go}')
                A(f's_add_u32 s48, s44, {go}')
            if ctl and st is None:
                if jj == 10:
                    A('s_waitcnt lgkmcnt(0)')
                    if w != W: A(f's_add_u32 s80, s80, {round((w-W)*3.4) & 0xffffffff:#x}')
                    A('s_lshl_b32 s47, s80, 4')
                    A('s_sub_i32 s47, s47, s52')
                    A('s_add_u32 s52, s52, s53')
                if jj == 11:
                    if kneg > 1: A(f's_ashr_i32 s49, s47, {kneg-1}'); A('s_max_i32 s47, s47, s49')
                    A(f's_max_i32 s47, s47, {-16*clip}')
                    A('s_mul_i32 s47, s47, s54')
                    A('s_add_i32 s47, s47, s55')
                    A('s_ashr_i32 s47, s47, 13')
                if jj == 13:
                    A(f's_max_i32 s47, s47, {Wmin}'); A(f's_min_i32 s93, s47, {Wmax}')
            if jj == 13:
                A(f's_add_u32 s44, s44, {SLOT}'); A('s_and_b32 s44, s44, 0xfffff')
            if jj == 14:
                A(f's_add_u32 s46, s46, {SLOT}'); A(f's_and_b32 s46, s46, {RING-1}')
            if jj == 15:
                A('s_add_u32 s50, s50, 1')
                if stamps == 7 and st is None:
                    A('s_mov_b32 s31, m0'); A('s_lshr_b32 m0, s50, 1'); A('s_nop 0')
                    A('v_writelane_b32 v120, s80, m0'); A('v_writelane_b32 v121, s93, m0'); A('s_mov_b32 m0, s31')
                if st is None: A('s_cmp_eq_u32 s50, s56')
            if jj % GG == 0: A(f's_waitcnt vmcnt({w})')
            if ctl and st is None and jj == 8: A('s_memrealtime s[80:81]')
            if jj == bi:
                if st is not None: stamp(st, stamps == 2)
                A('s_barrier')
            A(f'buffer_load_dwordx4 v{8 + (jj & 7)}, s[24:27], s48 offen offset:{i*1024} {flags} lds')
    slot(Wst, Gst, 3)
    slot(Wst, Gst, 4)
    stamp(5, stamps == 2)
    order = sorted(range(Wmin, Wmax+1), key=lambda w: (abs(w - W), w))
    for n, w in enumerate(order):
        A.label(f'L_it{w}')
        slot(w, G)
        A('s_cbranch_scc1 L_event')
        for w2 in (w, w+1, w-1):
            if Wmin <= w2 <= Wmax:
                A(f's_cmp_eq_u32 s93, {w2}')
                A(f's_cbranch_scc1 L_it{w2}')
        if n: A('s_branch L_disp')
        if n == 0:
            A.label('L_disp')
            for w2 in order[:-1]:
                A(f's_cmp_eq_u32 s93, {w2}')
                A(f's_cbranch_scc1 L_it{w2}')
            A(f's_branch L_it{order[-1]}')
            A.label('L_event')
            A('s_cmp_lg_u32 s50, s51')
            A('s_cbranch_scc1 L_ctl')
            A('s_cmp_eq_u32 s50, 128')
            A('s_cbranch_scc1 L_drain')
            for j in range(8): A(f'v_xor_b32 v{8+j}, v{8+j}, v{32+j}')
            A('s_mov_b64 s[30:31], s[24:25]'); A('s_mov_b64 s[24:25], s[28:29]'); A('s_mov_b64 s[28:29], s[30:31]')
            A('s_mov_b32 s47, s44'); A('s_mov_b32 s44, s45'); A('s_mov_b32 s45, s47')
            A(f's_cmp_ge_u32 s50, {2*R*(NRUN-1)}')
            A(f's_cselect_b32 s47, {LAST}, {R}')
            A('s_add_u32 s51, s51, s47')
            if not ctl:
                A.label('L_ctl')
                A('s_mov_b32 s56, s51')
                A('s_branch L_disp')
            else:
                A('s_min_u32 s56, s51, s57')
                A('s_cmp_lg_u32 s50, s57')
                A('s_cbranch_scc1 L_disp')
                A.label('L_ctl')
                A('s_xor_b32 s85, s85, 1')
                A('s_cbranch_scc0 L_cmp')
                A('s_mov_b64 exec, 0xffff')
                A('global_load_dword v29, v28, s[22:23] sc1')
                A('s_mov_b64 exec, -1')
                A('s_add_u32 s57, s57, s58')
                A('s_min_u32 s56, s51, s57')
                A('s_mov_b32 s82, s90')
                A('s_mov_b32 s90, s80')
                A('v_add_u32 v28, 4352, v28')
                A('s_cmp_lg_u32 s87, 5')
                A('s_cbranch_scc1 L_disp')
                A('v_add_u32 v27, 4352, v27')
                A('v_mov_b32 v30, s90')
                A('s_mov_b32 exec_hi, 0')
                A('global_store_dword v27, v30, s[22:23] sc1')
                A('s_mov_b32 exec_hi, -1')
                A('s_branch L_disp')
                A.label('L_cmp')
                A('s_add_u32 s57, s57, s59')
                A('s_min_u32 s56, s51, s57')
                A('s_cmp_eq_u32 s82, 0')
                A('s_cbranch_scc1 L_disp')
                A('s_sub_u32 s83, s90, s78')
                A('v_subrev_u32 v29, s78, v29')
                A('v_min_u32 v29, s83, v29')
                A('s_sub_u32 s47, s82, s78')
                A('s_lshl_b32 s47, s47, 4')
                fill = [['s_lshl_b32 s91, s78, 4', 's_lshr_b32 s31, s89, 5'], ['s_add_u32 s31, s31, s89', 's_mov_b32 s86, s88'], ['s_nop 1'], ['s_nop 0']]
                for sh, fl in zip((1, 2, 4, 8), fill):
                    A(f'v_add_u32_dpp v29, v29, v29 row_ror:{sh} row_mask:0xf bank_mask:0xf')
                    for x in fl: A(x)
                A('v_readfirstlane_b32 s88, v29')
                A('s_nop 0')
                A('s_sub_i32 s47, s47, s88')
                A('s_cmp_lg_u32 s86, 0')
                A('s_cbranch_scc1 L_step')
                A(f's_mul_i32 s55, s47, {kp0}')
                A(f's_add_i32 s55, s55, {WB}')
                A('s_branch L_disp')
                A.label('L_step')
                A('s_add_i32 s84, s84, s47')
                A('s_sub_u32 s49, s88, s86')
                A('s_cmp_eq_u32 s89, 0')
                A('s_cselect_b32 s89, s49, s89')
                A('s_cselect_b32 s31, s49, s31')
                A('s_min_u32 s49, s49, s31')
                A('s_sub_i32 s49, s49, s89'); A(f's_ashr_i32 s49, s49, {ema}'); A('s_add_i32 s89, s89, s49')
                A(f's_mul_i32 s53, s89, {(4096 + CP//2)//CP}'); A('s_lshr_b32 s53, s53, 12')
                if bias: A(f's_sub_u32 s53, s53, {bias}')
                A('s_mul_i32 s52, s53, s92'); A('s_add_u32 s52, s52, s88'); A('s_add_u32 s52, s52, s91')
                A(f's_max_i32 s84, s84, {-(iclamp*8192)//max(ki,1)}'); A(f's_min_i32 s84, s84, {(iclamp*8192)//max(ki,1)}')
                A(f's_mul_i32 s55, s84, {ki}')
                A(f's_add_i32 s55, s55, {WB}')
                A(f's_mov_b32 s54, {kp}')
                A('s_branch L_disp')
    A.label('L_drain')
    A('s_waitcnt vmcnt(16)'); A('s_barrier')
    A('s_waitcnt vmcnt(0) lgkmcnt(0)')
    if diag and not stamps: A('s_memrealtime s[82:83]')
    stamp(1)
    A('s_barrier')
    A('s_branch L_recv')

    A.label('L_worker')
    A('s_and_b32 s43, s40, 3')
    A('v_and_b32 v8, 31, v0')
    A('v_lshrrev_b32 v9, 5, v0')
    A('s_cmp_ge_u32 s3, 4')
    A('s_cbranch_scc1 L_pv')
    KBASE, KSA, L8, L16, M0_, M1_, L0_, L1_ = 0, 1, 2, 3, 4, 5, 6, 7
    P = 8; KADDR = 8; KFRAG = 16; KST = (32, 56); S = 96
    A('s_sub_u32 s39, s3, 1')
    A(f'v_lshlrev_b32 v{L8}, 3, v0')
    A(f'v_lshlrev_b32 v{L16}, 4, v0')
    A('v_lshlrev_b32 v14, 6, v0')
    A('v_and_b32 v12, 15, v8')
    A('v_xor_b32 v11, v12, v9')
    A('v_lshlrev_b32 v11, 4, v11')
    A('v_lshl_or_b32 v11, v8, 8, v11')
    A(f'v_add_u32 v11, {QST}, v11')
    A('v_lshlrev_b32 v13, 1, v9')
    A('v_xor_b32 v12, v12, v13')
    A('v_lshlrev_b32 v12, 4, v12')
    A(f'v_lshlrev_b32 v{KSA}, 6, v9')
    A(f'v_add_u32 v{KSA}, {KS_T}, v{KSA}')
    A('s_lshl_b32 s47, s39, 9'); A(f's_add_u32 s48, s47, {MP}')
    A(f'v_add_u32 v85, s48, v{L8}')
    A('s_sub_u32 s48, s48, 512'); A('s_cmp_eq_u32 s39, 0'); A(f's_cselect_b32 s48, {MP+1024}, s48')
    A(f'v_add_u32 v84, s48, v{L8}')
    A('s_lshl_b32 s47, s39, 10'); A(f's_add_u32 s48, s47, {MLB}'); A(f'v_add_u32 v88, s48, v{L8}')
    A('v_lshlrev_b32 v89, 2, v0')
    A(f'v_mov_b32 v{M0_}, 0xff800000'); A(f'v_mov_b32 v{M1_}, 0xff800000')
    A(f'v_mov_b32 v{L0_}, 0'); A(f'v_mov_b32 v{L1_}, 0')
    A('s_waitcnt lgkmcnt(0)')
    A(f'ds_write_b64 v85, v[{M0_}:{M1_}]')
    A(f'v_lshl_or_b32 v{KBASE}, v8, 9, v12')
    A(f's_mov_b32 s52, {hex(f2u(CSCALE))}')
    A('s_mov_b32 s53, 0x4b800000')
    A('s_mov_b32 s54, 0xffff0000')
    A('s_mov_b32 s50, s39')
    A('s_waitcnt lgkmcnt(0)')
    A('s_barrier')
    A.label('L_tab')
    A('s_lshr_b32 s47, s50, 2'); A('s_lshl_b32 s47, s47, 12')
    A('s_lshl_b32 s48, s50, 10')
    A('s_add_u32 s47, s47, s48')
    A(f's_add_u32 s47, s47, {STG}')
    A(f'v_add_u32 v15, s47, v{L16}')
    A('s_lshl_b32 s48, s50, 12')
    A(f's_add_u32 s48, s48, {KS_T}')
    A('ds_read_b128 v[64:67], v15')
    A('ds_read_b128 v[68:71], v15 offset:4096')
    A('v_add_u32 v13, s48, v14')
    A('s_waitcnt lgkmcnt(0)')
    sc, zr, t = 64, 68, 16
    for e in range(8):
        q, i = e >> 2, e & 3
        ds, dc = t + q*8 + i, t + q*8 + 4 + i
        if e & 1:
            A(f'v_and_b32 v{ds}, s54, v{sc + (e>>1)}'); A(f'v_and_b32 v{dc}, s54, v{zr + (e>>1)}')
        else:
            A(f'v_lshlrev_b32 v{ds}, 16, v{sc + (e>>1)}'); A(f'v_lshlrev_b32 v{dc}, 16, v{zr + (e>>1)}')
        A(f'v_mul_f32_e64 v{dc}, -v{dc}, v{ds}')
        A(f'v_mul_f32 v{ds}, s53, v{ds}')
    for k in range(4):
        A(f'ds_write_b128 v13, v[{t+4*k}:{t+4*k+3}] offset:{k*16}')
    A('s_add_u32 s50, s50, 3')
    A('s_cmp_lt_u32 s50, 8')
    A('s_cbranch_scc1 L_tab')
    for s in range(1, 8):
        A(f'v_xor_b32 v{32+s}, {2*s*16}, v11')
    A('s_waitcnt lgkmcnt(0)')
    A('s_barrier')
    for qb in range(2):
        for s in range(8):
            a = (qb*8 + s)*4
            if qb == 1 and s == 7: A('s_waitcnt lgkmcnt(8)')
            A(f'ds_read_b128 a[{a}:{a+3}], v{32+s if s else 11} offset:{qb*8192}')
    A('s_mov_b32 s50, s39')
    A('s_mov_b32 s45, 0')
    def advance(tgt, lab):
        A.label(lab)
        A(f's_cmp_ge_u32 s45, {tgt}')
        A(f's_cbranch_scc1 {lab}_d')
        A('s_barrier')
        A('s_add_u32 s45, s45, 1')
        A(f's_branch {lab}')
        A.label(lab + '_d')

    A.label('L_tile')
    A(f's_mul_i32 s47, s50, {MG}'); A('s_lshr_b32 s47, s47, 10'); A(f's_mul_i32 s47, s47, {R}')
    A('s_add_u32 s44, s50, s47')
    A('s_sub_u32 s47, s50, s47'); A(f's_mul_i32 s47, s47, {PSTR}'); A(f's_add_u32 s46, s47, {PB}')
    A('s_add_u32 s49, s50, s38')
    A('s_and_b32 s49, s49, 63')
    A('s_lshr_b32 s51, s49, 2')
    A('s_lshl_b32 s51, s51, 10')
    A('s_and_b32 s47, s44, 3'); A('s_lshl_b32 s47, s47, 14')
    KSCUR = 24
    A('s_waitcnt lgkmcnt(0)')
    A(f'v_add_u32 v{KSCUR}, s51, v{KSA}')
    A(f'v_add_u32 v{KADDR}, s47, v{KBASE}')
    for x in range(1, 8):
        s3_, e = x >> 1, x & 1
        A(f'v_xor_b32 v{KADDR+x}, {(4*s3_+e)*16}, v{KADDR}')
    A(f'v_add_u32 v87, s46, v{L16}')
    A('v_add_u32 v86, s46, v89')
    def kscale_reads(s):
        b = KST[s & 1]
        for k in range(4):
            A(f'ds_read_b128 v[{b+8+4*k}:{b+8+4*k+3}], v{KSCUR} offset:{s*128 + k*16}')
    def kraw_reads(s):
        b = KST[s & 1]
        for e in range(2):
            A(f'ds_read_b128 v[{b+4*e}:{b+4*e+3}], v{KADDR + (s&3)*2 + e} offset:{(s>>2)*256}')
    kscale_reads(0)
    advance('s44', 'L_qadv')
    A('s_add_u32 s45, s45, 3')
    A('s_barrier')
    kraw_reads(0)
    for s in range(8):
        if s + 1 < 8:
            kraw_reads(s+1); kscale_reads(s+1)
            A('s_waitcnt lgkmcnt(6)')
        else:
            A('s_waitcnt lgkmcnt(0)')
        b = KST[s & 1]; f = KFRAG + (s & 1)*4
        for e in range(2):
            for i in range(4):
                A(f'v_fma_mix_f32 v{b+4*e+i}, v{b+4*e+i}, v{b+8+8*e+i}, v{b+8+8*e+4+i} op_sel_hi:[1,0,0]')
        for k in range(4):
            A(f'v_cvt_pk_bf16_f32 v{f+k}, v{b+2*k}, v{b+2*k+1}')
        A('s_nop 1')
        for qb in range(2):
            a = (qb*8 + s)*4
            c = '0' if s == 0 else vr(S + qb*16, 16)
            A(f'v_mfma_f32_32x32x16_bf16 {vr(S+qb*16,16)}, {vr(f,4)}, {ar(a,4)}, {c}')
    A('s_barrier')
    A('ds_read_b64 v[82:83], v84')
    A('s_nop 10')
    T = [24, 25]; T2 = [26, 27]; AL = [28, 29]; Mx = [M0_, M1_]; Lx = [L0_, L1_]
    for qb in range(2):
        A(f'v_max3_f32 v{T[qb]}, v{S+qb*16}, v{S+qb*16+1}, v{S+qb*16+2}')
    for i in range(3, 15, 2):
        for qb in range(2):
            A(f'v_max3_f32 v{T[qb]}, v{T[qb]}, v{S+qb*16+i}, v{S+qb*16+i+1}')
    for qb in range(2): A(f'v_max_f32 v{T[qb]}, v{T[qb]}, v{S+qb*16+15}')
    for qb in range(2): A(f'v_mov_b32 v{T2[qb]}, v{T[qb]}')
    A('s_nop 1')
    for qb in range(2): A(f'v_permlane32_swap_b32 v{T[qb]}, v{T2[qb]}')
    for qb in range(2): A(f'v_max_f32 v{T[qb]}, v{T[qb]}, v{T2[qb]}')
    for qb in range(2): A(f'v_mul_f32 v{T[qb]}, s52, v{T[qb]}')
    A('s_waitcnt lgkmcnt(0)')
    for qb in range(2): A(f'v_max3_f32 v{T[qb]}, v{T[qb]}, v{Mx[qb]}, v{82+qb}')
    for qb in range(2): A(f'v_sub_f32 v{82+qb}, v{82+qb}, v{T[qb]}')
    for qb in range(2): A(f'v_sub_f32 v{AL[qb]}, v{Mx[qb]}, v{T[qb]}')
    for qb in range(2): A(f'v_exp_f32 v{82+qb}, v{82+qb}')
    for qb in range(2): A(f'v_exp_f32 v{AL[qb]}, v{AL[qb]}')
    for qb in range(2): A(f'v_mov_b32 v{Mx[qb]}, v{T[qb]}')
    A(f'ds_write_b64 v85, v[{M0_}:{M1_}]')
    A('ds_write2st64_b32 v86, v82, v83 offset0:16 offset1:17')
    for qb in range(2): A(f'v_mul_f32 v{Lx[qb]}, v{Lx[qb]}, v{AL[qb]}')
    for qb in range(2):
        for i in range(16): A(f'v_fma_f32 v{S+qb*16+i}, v{S+qb*16+i}, s52, -v{Mx[qb]}')
        for i in range(16): A(f'v_exp_f32 v{S+qb*16+i}, v{S+qb*16+i}')
        if qb == 0:
            A('s_waitcnt lgkmcnt(0)')
            A('s_barrier')
        else: A('s_nop 0')
        for k in range(8):
            A(f'v_cvt_pk_bf16_f32 v{P+qb*8+k}, v{S+qb*16+2*k}, v{S+qb*16+2*k+1}')
        for u in range(2):
            A(f'ds_write_b128 v87, {vr(P+qb*8+4*u,4)} offset:{(qb*2+u)*1024}')
    for qb in range(2):
        for i in range(0, 8, 2):
            A(f'v_pk_add_f32 {vr(S+qb*16+i,2)}, {vr(S+qb*16+i,2)}, {vr(S+qb*16+8+i,2)}')
        for i in range(0, 4, 2):
            A(f'v_pk_add_f32 {vr(S+qb*16+i,2)}, {vr(S+qb*16+i,2)}, {vr(S+qb*16+4+i,2)}')
        A(f'v_pk_add_f32 {vr(S+qb*16,2)}, {vr(S+qb*16,2)}, {vr(S+qb*16+2,2)}')
        A(f'v_add_f32 v{Lx[qb]}, v{Lx[qb]}, v{S+qb*16}')
        A(f'v_add_f32 v{Lx[qb]}, v{Lx[qb]}, v{S+qb*16+1}')
    for qb in range(2): A(f'v_mov_b32 v{24+qb}, v{Lx[qb]}')
    for qb in range(2): A(f'v_mov_b32 v{26+qb}, v{Lx[qb]}')
    for qb in range(2): A(f'v_mov_b32 v{28+2*qb}, v{Mx[qb]}')
    for qb in range(2): A(f'v_permlane32_swap_b32 v{24+qb}, v{26+qb}')
    for qb in range(2): A(f'v_add_f32 v{29+2*qb}, v{24+qb}, v{26+qb}')
    A('ds_write2st64_b64 v88, v[28:29], v[30:31] offset0:0 offset1:1')
    A('s_add_u32 s50, s50, 3')
    A('s_cmp_lt_u32 s50, 64')
    A('s_cbranch_scc1 L_tile')
    A('s_waitcnt lgkmcnt(0)')
    if pretouch:
        advance(pretouch, 'L_qend0')
        A('s_cmp_lg_u32 s39, 0')
        A('s_cbranch_scc1 L_qend')
        A(f's_lshl_b32 s42, s40, {FS}'); A(f's_add_u32 s42, s42, {WS_FLAGS}')
        A(f'v_lshl_add_u32 v8, v{L16}, 3, s42')
        A(f's_mov_b64 exec, {0xf0 if dual and lazy else 0xff if dual else 15}')
        A('global_load_dword v9, v8, s[22:23] sc1')
        A('s_mov_b64 exec, -1')
        if twarm:
            A('s_getpc_b64 s[48:49]')
            A.label('L_twref')
            A('s_add_u32 s48, s48, L_pvdone-L_twref'); A('s_addc_u32 s49, s49, 0')
            A(f'v_lshlrev_b32 v10, 3, v{L16}')
            A('v_min_u32 v10, L_end-L_pvdone, v10')
            A('global_load_dword v11, v10, s[48:49]')
    advance(128, 'L_qend')
    A('s_branch L_recv')

    A.label('L_pv')
    VA, VSA, PA, ALA, VAC, ALF = 1, 2, 3, 4, 5, 6
    PF = 8; FR = 16; RAW = 32; VSC = 64; ACC = 96
    A('s_and_b32 s39, s3, 3')
    A('s_xor_b32 s55, s39, s43')
    A('s_lshr_b32 s56, s55, 1')
    A('s_and_b32 s57, s55, 1')
    A(f'v_lshlrev_b32 v{VA}, 3, v8')
    A(f'v_lshl_or_b32 v{VA}, v9, 11, v{VA}')
    A('s_lshl_b32 s47, s57, 8')
    A(f'v_add_u32 v{VA}, s47, v{VA}')
    A(f'v_lshlrev_b32 v{VSA}, 5, v9')
    A(f'v_add_u32 v{VSA}, {VS_T}, v{VSA}')
    A('s_lshl_b32 s47, s56, 11'); A(f's_add_u32 s47, s47, {PB}'); A(f'v_lshl_add_u32 v{PA}, v0, 4, s47')
    A('s_lshl_b32 s47, s56, 8'); A(f's_add_u32 s47, s47, {PB+4096}'); A(f'v_lshl_add_u32 v{ALA}, v0, 2, s47')
    for i in range(32): A(f'v_mov_b32 v{ACC+i}, 0')
    A('s_lshl_b32 s47, s56, 9'); A(f's_add_u32 s47, s47, {MLB}'); A('v_lshl_add_u32 v10, v0, 3, s47')
    A('v_accvgpr_write_b32 a0, v10')
    A('s_lshl_b32 s44, s41, 2'); A('s_or_b32 s44, s44, s55')
    A('s_mul_i32 s42, s44, 3'); A('s_add_u32 s42, s42, s39'); A('s_max_u32 s42, s42, 1'); A('s_sub_u32 s42, s42, 1'); A(f's_mul_i32 s42, s42, {MSG}')
    A(f's_lshl_b32 s44, s44, {FS}'); A('s_lshl_b32 s47, s43, 7'); A('s_add_u32 s44, s44, s47'); A(f's_add_u32 s44, s44, {WS_FLAGS}')
    A('s_waitcnt lgkmcnt(0)')
    srd(A, 24, 22, 's42', 4608)
    A('s_mov_b32 s50, 0')
    A('s_mov_b32 s45, 0')
    A('s_lshl_b32 s58, s2, 2'); A('s_or_b32 s58, s58, s39')
    if diag:
        A('s_cmp_lg_u32 s58, 1')
        A('s_cbranch_scc1 L_noDiag')
        A('v_mov_b32 v26, s76')
        A(f'v_lshlrev_b32 v27, 2, v0'); A(f'v_add_u32 v27, 0x2000000, v27')
        A('global_store_dword v27, v26, s[22:23] sc1')
        A.label('L_noDiag')
    A('s_cmp_lg_u32 s58, 0')
    A('s_cbranch_scc1 L_noTag')
    A('s_memrealtime s[48:49]')
    A('v_lshlrev_b32 v15, 3, v0')
    A('s_waitcnt lgkmcnt(0)')
    A('s_lshl_b64 s[48:49], s[48:49], 1')
    A('s_bitset1_b32 s48, 0'); A('s_bitset1_b32 s49, 31')
    A('v_mov_b32 v16, s48'); A('v_mov_b32 v17, s49')
    A('s_mov_b64 exec, 0xffff')
    A('global_store_dwordx2 v15, v[16:17], s[20:21] sc1')
    A('s_mov_b64 exec, -1')
    A.label('L_noTag')
    if cwarm:
        A('s_cmp_lg_u32 s39, 1')
        A('s_cbranch_scc1 L_noWarm')
        A('s_getpc_b64 s[48:49]')
        A.label('L_pcref')
        A('s_sub_u32 s48, s48, L_pcref-L_disp'); A('s_subb_u32 s49, s49, 0')
        A('v_lshlrev_b32 v15, 7, v0')
        A('v_min_u32 v15, L_worker-L_disp, v15')
        A('global_load_dword v16, v15, s[48:49]')
        A.label('L_noWarm')
    A('s_barrier'); A('s_barrier')
    A.label('L_pvrun')
    A(f's_cmp_ge_u32 s50, {R*(NRUN-1)}')
    A(f's_cselect_b32 s47, {LAST}, {R}')
    A('s_add_u32 s51, s50, s47')
    A('s_add_u32 s48, s50, s51')
    A('s_mov_b32 s46, 0')
    if rst is not None:
        A(f's_cmp_lg_u32 s50, {rst*R}')
        A('s_cbranch_scc1 L_noRst')
        A('s_cmp_eq_u32 s39, 0')
        A('s_cbranch_scc1 L_noRst')
        for i in range(4): A(f'v_mov_b32 v{16+i}, -1')
        A('v_lshlrev_b32 v20, 4, v0')
        A('s_movk_i32 s47, 0x1000')
        for a in range(4):
            A(f'buffer_store_dwordx4 v[16:19], v20, s[24:27], 0 offen offset:{a*1024} sc1')
            if 'spread' in exp: A('s_barrier'); A('s_barrier')
        A(f'buffer_store_dwordx4 v[16:19], v20, s[24:27], s47 offen sc1')
        if 'spread' in exp: A('s_add_u32 s45, s45, 8')
        A.label('L_noRst')
    A('s_cmp_lg_u32 s51, 64')
    A('s_cbranch_scc1 L_pvwait')
    A('s_cmp_lg_u32 s39, 0')
    A('s_cbranch_scc1 L_pvwait')
    A('v_mov_b32 v16, 0')
    A('global_load_dwordx2 v[18:19], v16, s[20:21] sc1')
    A('s_barrier'); A('s_barrier'); A('s_barrier')
    A('s_add_u32 s45, s45, 3')
    A('s_mov_b32 s49, 0x100000')
    A.label('L_annWait')
    A('s_waitcnt vmcnt(0)')
    A('v_min_u32 v17, v18, v19')
    A('s_sub_u32 s49, s49, 1')
    A('s_cbranch_scc1 L_annDone')
    A('v_readfirstlane_b32 s47, v17')
    A('s_nop 1')
    A('s_cmp_lg_u32 s47, 0')
    A('s_cbranch_scc1 L_annDone')
    A('global_load_dwordx2 v[18:19], v16, s[20:21] sc1')
    A('s_branch L_annWait')
    A.label('L_annDone')
    A(f'v_mov_b32 v16, {NONCE}')
    A('v_mov_b32 v17, 0')
    A('ds_write_b64 v16, v[18:19]')
    A('ds_write_b32 v16, v17 offset:8')
    A('s_waitcnt lgkmcnt(0)')
    advance('s48', 'L_pvwait')
    A('s_branch L_pvpre')
    A.label('L_pvtile')
    stamp(3, stamps == 6, True)
    A('s_barrier')
    stamp(1, stamps == 6, True)
    def rawrd(i):
        a, b = i >> 1, 2*(i & 1)
        if rdb64:
            for x in range(2): A(f'ds_read_b64 {vr(RAW+4*i+2*x,2)}, v{VAC} offset:{(8*a+b+x)*512}')
        else: A(f'ds_read2st64_b64 {vr(RAW+4*i,4)}, v{VAC} offset0:{8*a+b} offset1:{8*a+b+1}')
    for i in range(7 if rdb64 else 8): rawrd(i)
    for i in range(8):
        a, b, u = i >> 1, 2*(i & 1), i >> 2
        if rdb64:
            if i == 0: A('s_waitcnt lgkmcnt(12)'); rawrd(7)
            else: A(f's_waitcnt lgkmcnt({14-2*i})')
        else: A(f's_waitcnt lgkmcnt({7-i})')
        for x in range(4):
            r = RAW + 4*i + x
            A(f'v_fma_mix_f32 v{r}, v{r}, v{VSC+a*8+b+(x>>1)}, v{VSC+a*8+4+b+(x>>1)} op_sel_hi:[1,0,0]')
        if i in (4, 5):
            j = i - 4
            A(f'v_mfma_f32_32x32x16_bf16 {vr(ACC+16*j,16)}, {vr(FR+4*j,4)}, {vr(PF,4)}, {vr(ACC+16*j,16)}')
        for j in range(2):
            A(f'v_cvt_pk_bf16_f32 v{FR+8*u+4*j+(i&3)}, v{RAW+4*i+j}, v{RAW+4*i+2+j}')
    A('s_add_u32 s50, s50, 1')
    A('s_nop 0')
    for j in range(2):
        A(f'v_mfma_f32_32x32x16_bf16 {vr(ACC+16*j,16)}, {vr(FR+8+4*j,4)}, {vr(PF+4,4)}, {vr(ACC+16*j,16)}')
    A('s_cmp_eq_u32 s50, 64')
    A('s_cbranch_scc1 L_pvdone')
    A('s_cmp_eq_u32 s50, s51')
    A('s_cbranch_scc1 L_pvrun')
    A(f's_add_u32 s46, s46, {PSTR}')
    A.label('L_pvpre')
    A(f'v_add_u32 v7, s46, v{ALA}')
    A(f'ds_read_b32 v{ALF}, v7')
    A(f'v_add_u32 v7, s46, v{PA}')
    A(f'ds_read_b128 {vr(PF,4)}, v7')
    A(f'ds_read_b128 {vr(PF+4,4)}, v7 offset:1024')
    A('s_add_u32 s49, s50, s38')
    A('s_and_b32 s49, s49, 63')
    A('s_lshl_b32 s49, s49, 8')
    A(f'v_add_u32 v7, s49, v{VSA}')
    for a in range(4):
        for k in range(2):
            A(f'ds_read_b128 {vr(VSC+a*8+4*k,4)}, v7 offset:{a*64 + k*16}')
    A('s_and_b32 s47, s45, 3'); A('s_lshl_b32 s47, s47, 14')
    A(f'v_add_u32 v{VAC}, s47, v{VA}')
    A('s_add_u32 s45, s45, 1')
    A('s_waitcnt lgkmcnt(10)')
    for i in range(0, 32, 2):
        A(f'v_pk_mul_f32 {vr(ACC+i,2)}, {vr(ACC+i,2)}, {vr(ALF,2)} op_sel_hi:[1,0]')
    A('s_waitcnt lgkmcnt(0)')
    A('s_branch L_pvtile')

    A.label('L_pvdone')
    stamp(4, stamps == 6)
    A('v_accvgpr_read_b32 v10, a0')
    A('v_lshlrev_b32 v2, 4, v0')
    A('v_lshlrev_b32 v3, 3, v0')
    for c in range(3): A(f'ds_read_b64 {vr(32+2*c,2)}, v10 offset:{c*1024}')
    A(f'v_mov_b32 v5, {NONCE}')
    A('ds_read_b64 v[6:7], v5')
    A('v_lshl_add_u32 v4, v0, 3, s44')
    A('s_cmp_eq_u32 s39, 0')
    A('s_cbranch_scc1 L_own')
    def stats():
        A('s_waitcnt lgkmcnt(0)')
        for c in range(1, 3): A(f'v_sub_f32 v{32+2*c}, v{32+2*c}, v32')
        for c in range(1, 3): A(f'v_exp_f32 v{32+2*c}, v{32+2*c}')
        A('s_nop 0')
        for c in range(1, 3): A(f'v_fmac_f32 v33, v{33+2*c}, v{32+2*c}')
    A('s_nop 1')
    for a in range(4):
        for b in range(4):
            A(f'v_cvt_pk_bf16_f32 v{40+4*a+b}, v{ACC+4*a+b}, v{ACC+16+4*a+b}')
        A(f'buffer_store_dwordx4 {vr(40+4*a,4)}, v2, s[24:27], 0 offen offset:{a*1024} {xflags}')
    stats()
    A('s_movk_i32 s47, 0x1000')
    A(f'buffer_store_dwordx2 v[32:33], v3, s[24:27], s47 offen {xflags}')
    stamp(5, stamps == 6)
    A('s_barrier')
    A('s_waitcnt vmcnt(0)')
    stamp(6, stamps == 6)
    A('s_mov_b64 exec, 0xffff')
    if dual: A(f'global_store_dwordx2 v4, v[6:7], s[22:23] offset:512')
    A(f'global_store_dwordx2 v4, v[6:7], s[22:23] {xflags}')
    A('s_mov_b64 exec, -1')
    A('s_branch L_fin')
    A.label('L_own')
    A(f'v_add_u32 v3, {OWNS}, v3')
    stats()
    A('ds_write_b64 v3, v[32:33]')
    for i in range(8): A(f'ds_write_b128 v2, {vr(ACC+4*i,4)} offset:{i*1024}')
    A('s_waitcnt lgkmcnt(0)')
    A('s_barrier')
    if dual:
        A(f's_lshl_b32 s42, s40, {FS}'); A(f's_add_u32 s42, s42, {WS_FLAGS}')
        A('v_mov_b32 v28, v6'); A('v_mov_b32 v29, v7')
        A('v_lshl_add_u32 v7, v0, 7, s42')
        A(f'v_mov_b32 v26, {NONCE}')
        A('s_lshl_b32 s48, 1, s43'); A('s_xor_b32 s48, s48, 15')
        if lazy:
            A(f's_mov_b32 s49, {lazy}')
            A.label('L_lazy')
            A('ds_read_b32 v27, v26 offset:8')
            A('s_waitcnt lgkmcnt(0)')
            A('v_readfirstlane_b32 s47, v27')
            A('s_sub_u32 s49, s49, 1')
            A('s_cbranch_scc1 L_lazyd')
            A('s_cmp_eq_u32 s47, 0')
            A('s_cbranch_scc1 L_lazy')
            A('s_branch L_fin')
            A.label('L_lazyd')
        A('s_mov_b32 s49, 0x100000')
        A('s_mov_b32 exec_lo, s48'); A('s_mov_b32 exec_hi, 0')
        A.label('L_poll2')
        A(f'global_load_dwordx2 v[30:31], v7, s[22:23] {pflags}')
        A('ds_read_b32 v27, v26 offset:8')
        A('s_waitcnt vmcnt(0) lgkmcnt(0)')
        A('v_cmp_eq_u64 vcc, v[28:29], v[30:31]')
        A('v_readfirstlane_b32 s47, v27')
        A('s_sub_u32 s49, s49, 1')
        A('s_cbranch_scc1 L_poll2_go')
        A('s_cmp_eq_u32 vcc_lo, s48')
        A('s_cbranch_scc1 L_poll2_go')
        A('s_cmp_eq_u32 s47, 0')
        A('s_cbranch_scc1 L_poll2')
        A.label('L_poll2_go')
        A('ds_write_b32 v26, v26 offset:8')
        A('s_mov_b64 exec, -1')
    A('s_branch L_fin')

    A.label('L_recv')
    A('v_mbcnt_lo_u32_b32 v0, -1, 0')
    A('v_mbcnt_hi_u32_b32 v0, -1, v0')
    A('s_and_b32 s43, s40, 3')
    A(f's_mul_i32 s42, s40, {3*MSG}')
    srd(A, 24, 22, 's42', 3*MSG)
    A('s_lshl_b32 s42, s41, 14')
    A('s_lshr_b32 s56, s43, 1'); A('s_lshl_b32 s56, s56, 13')
    A('s_add_u32 s42, s42, s56')
    srd(A, 32, 18, 's42', 8192)
    A('s_and_b32 s56, s43, 1'); A('s_lshl_b32 s56, s56, 7'); A('s_lshl_b32 s47, s3, 5'); A('s_add_u32 s56, s56, s47')
    A('v_and_b32 v4, 31, v0'); A('v_lshlrev_b32 v4, 8, v4')
    A('v_lshrrev_b32 v3, 5, v0'); A('v_lshl_or_b32 v4, v3, 4, v4')
    A(f's_lshl_b32 s42, s40, {FS}'); A(f's_add_u32 s42, s42, {WS_FLAGS + (512 if dual else 0)}')
    A('v_lshl_add_u32 v7, v0, 7, s42')
    A('v_lshlrev_b32 v5, 3, v0')
    A(f'v_add_u32 v1, {OWNS}, v5')
    A('v_add_u32 v5, 4096, v5')
    A('s_lshl_b32 s47, s3, 10'); A('v_lshl_add_u32 v2, v0, 4, s47')
    for k in range(3):
        A(f's_mov_b32 s{51+k}, {k*MSG}')
    A('s_mov_b32 s54, 0xffff0000')
    A('s_lshl_b32 s48, 1, s43'); A('s_xor_b32 s48, s48, 15')
    A('s_mov_b32 s49, 0x100000')
    A(f'v_mov_b32 v26, {NONCE}')
    A('ds_read_b64 v[28:29], v26')
    A('s_waitcnt lgkmcnt(0)')
    A('s_barrier')
    stamp(3, stamps == 4)
    R = 32; D = 40
    A('ds_read_b64 v[14:15], v1')
    for j in range(2): A(f'ds_read_b128 {vr(R+4*j,4)}, v2 offset:{j*4096}')
    A('s_cmp_eq_u32 s3, 1')
    A('s_cbranch_scc1 L_poller')
    A.label('L_gowait')
    A('ds_read_b32 v27, v26 offset:8')
    A('s_waitcnt lgkmcnt(0)')
    A('v_readfirstlane_b32 s47, v27')
    A('s_nop 0')
    A('s_cmp_eq_u32 s47, 0')
    A('s_cbranch_scc1 L_gowait')
    A('s_branch L_final')
    A.label('L_poller')
    A('s_mov_b32 exec_lo, s48'); A('s_mov_b32 exec_hi, 0')
    A.label('L_poll')
    A(f'global_load_dwordx2 v[30:31], v7, s[22:23] {pflags}')
    A('ds_read_b32 v27, v26 offset:8')
    A('s_waitcnt vmcnt(0) lgkmcnt(0)')
    A('v_cmp_eq_u64 vcc, v[28:29], v[30:31]')
    A('v_readfirstlane_b32 s47, v27')
    A('s_sub_u32 s49, s49, 1')
    A('s_cbranch_scc1 L_poll_go')
    A('s_cmp_eq_u32 vcc_lo, s48')
    A('s_cbranch_scc1 L_poll_go')
    A('s_cmp_eq_u32 s47, 0')
    A('s_cbranch_scc1 L_poll')
    A.label('L_poll_go')
    A('ds_write_b32 v26, v26 offset:8')
    A.label('L_final')
    A('s_mov_b64 exec, -1')
    for k in range(3): A(f'buffer_load_dwordx2 {vr(8+2*k,2)}, v5, s[24:27], s{51+k} offen sc1')
    for k in range(3): A(f'buffer_load_dwordx4 {vr(D+4*k,4)}, v2, s[24:27], s{51+k} offen sc1')
    stamp(4, stamps == 4)
    A('s_waitcnt vmcnt(3) lgkmcnt(0)')
    stamp(5, stamps == 4)
    A('v_max3_f32 v24, v8, v10, v12'); A('v_max_f32 v24, v24, v14')
    A('v_sub_f32 v16, v14, v24')
    for k in range(3): A(f'v_sub_f32 v{18+2*k}, v{8+2*k}, v24')
    for k in range(4): A(f'v_exp_f32 v{16+2*k}, v{16+2*k}')
    A('s_nop 0')
    A('v_mul_f32 v25, v15, v16')
    for k in range(3): A(f'v_fmac_f32 v25, v{9+2*k}, v{18+2*k}')
    A('v_rcp_f32 v26, v25')
    for x in range(4): A(f'v_pk_mul_f32 {vr(R+2*x,2)}, {vr(R+2*x,2)}, v[16:17] op_sel_hi:[1,0]')
    for k in range(3):
        A(f's_waitcnt vmcnt({2-k})')
        for b in range(4):
            A(f'v_lshlrev_b32 v{56+b}, 16, v{D+4*k+b}')
            A(f'v_and_b32 v{60+b}, s54, v{D+4*k+b}')
        for x in range(4):
            A(f'v_pk_fma_f32 {vr(R+2*x,2)}, {vr(56+2*x,2)}, {vr(18+2*k,2)}, {vr(R+2*x,2)} op_sel_hi:[1,0,1]')
    for x in range(4): A(f'v_pk_mul_f32 {vr(R+2*x,2)}, {vr(R+2*x,2)}, v[26:27] op_sel_hi:[1,0]')
    for b in range(4): A(f'v_cvt_pk_bf16_f32 v{52+b}, v{R+b}, v{R+4+b}')
    A(f'buffer_store_dwordx4 v[52:55], v4, s[32:35], s56 offen {oflags}')
    stamp(6, stamps == 4)
    A.label('L_fin')
    if diag:
        A('s_waitcnt vmcnt(0)')
        A('s_memrealtime s[84:85]')
        A('v_mov_b32 v18, 0x2000000')
        A('global_load_dword v17, v18, s[22:23] sc1')
        A('s_waitcnt vmcnt(0) lgkmcnt(0)')
        A('v_readfirstlane_b32 s81, v17')
        A('s_nop 1')
        A('s_mov_b32 s86, 0')
        A(f's_cmp_lg_u32 s3, {stw}')
        A('s_cbranch_scc1 L_dg')
        if diag.startswith('iv'):
            a_, b_ = int(diag[2]), int(diag[3])
            if len(diag) > 4:
                A('s_cmp_lg_u32 s2, 77'); A('s_cbranch_scc1 L_dg')
            ra = 84 if a_ == 9 else 60 + 2*a_
            rb = 84 if b_ == 9 else 60 + 2*b_
            A(f's_sub_u32 s86, s{rb}, s{ra}'); A('s_mul_i32 s86, s86, 20')
        if diag == 'tail': A('s_sub_u32 s86, s84, s82'); A('s_mul_i32 s86, s86, 10')
        if diag == 'send': A('s_sub_u32 s86, s82, s81'); A('s_sub_u32 s86, s86, 6500'); A('s_mul_i32 s86, s86, 10')
        if diag == 'fin': A('s_sub_u32 s86, s84, s81'); A('s_sub_u32 s86, s86, 6500'); A('s_mul_i32 s86, s86, 10')
        if diag == 'sendmin': A('s_sub_u32 s86, s82, s81'); A('s_sub_u32 s86, 9000, s86'); A('s_mul_i32 s86, s86, 10')
        A('s_min_u32 s86, s86, 100000')
        A.label('L_dg')
        A('s_add_u32 s86, s86, 10000')
        A.label('L_spin')
        A('s_memrealtime s[78:79]')
        A('s_waitcnt lgkmcnt(0)')
        A('s_sub_u32 s80, s78, s81')
        A(f's_cmp_lt_u32 s80, s86')
        A('s_cbranch_scc1 L_spin')
    if stamps and not diag:
        A('s_waitcnt vmcnt(0)')
        stamp(2)
        A('s_waitcnt lgkmcnt(0)')
        A(f's_cmp_lg_u32 s3, {stw}')
        A('s_cbranch_scc1 L_end')
        A('s_getreg_b32 s74, hwreg(HW_REG_XCC_ID)')
        A(f's_mov_b32 s75, {7 if stamps in (4, 6) else 6 if stamps == 2 else 4 if stamps == 5 else 3}')
        for i in range(16): A(f'v_mov_b32 v{8+i}, s{60+i}')
        A('v_mbcnt_lo_u32_b32 v0, -1, 0'); A('v_mbcnt_hi_u32_b32 v0, -1, v0')
        A('s_lshl_b32 s42, s2, 6')
        A('s_add_u32 s42, s42, 0x10000000')
        A('v_mov_b32 v1, s42')
        A('s_mov_b64 exec, 1')
        for i in range(4): A(f'global_store_dwordx4 v1, v[{8+4*i}:{11+4*i}], s[22:23] offset:{16*i}')
        if stamps in (3, 7):
            A('s_mov_b64 exec, -1')
            A('s_lshl_b32 s42, s2, 8')
            A('s_add_u32 s42, s42, 0x11000000')
            A('v_lshlrev_b32 v1, 2, v0')
            A('v_add_u32 v1, s42, v1')
            A('global_store_dword v1, v120, s[22:23]')
            A('v_add_u32 v1, 0x10000, v1')
            A('global_store_dword v1, v121, s[22:23]')
    A.label('L_end')
    A('s_endpgm')

    A('.section .rodata,"a"')
    A('.p2align 6')
    A(f'.amdhsa_kernel {main}')
    for l in ['.amdhsa_next_free_vgpr 192', '.amdhsa_next_free_sgpr 96', '.amdhsa_accum_offset 128',
              '.amdhsa_group_segment_fixed_size 0', '.amdhsa_kernarg_size 80', '.amdhsa_user_sgpr_count 2',
              '.amdhsa_user_sgpr_kernarg_segment_ptr 1', '.amdhsa_system_sgpr_workgroup_id_x 1',
              '.amdhsa_float_denorm_mode_32 3', '.amdhsa_float_denorm_mode_16_64 3']:
        A.lines.append('  ' + l)
    A('.end_amdhsa_kernel')
    return A.text()

if __name__ == '__main__':
    kw = eval('dict(' + (sys.argv[2] if len(sys.argv) > 2 else '') + ')')
    t = gen(**kw)
    errs = check_hazards(t)
    for e in errs: print('HAZARD', e)
    out = sys.argv[1] if len(sys.argv) > 1 and sys.argv[1] != '-' else f'cdna_kernels/{NAME}.s'
    open(out, 'w').write(t)
    import subprocess
    r = subprocess.run(['clang', '-x', 'assembler', '-target', 'amdgcn-amd-amdhsa', '-mcpu=gfx950', '-c', out, '-o', 'chk.o'], capture_output=True, text=True)
    print('wrote', out, len(t), 'bytes', 'hazards', len(errs), 'asm rc', r.returncode, r.stderr[:1500])
```
